```python
import torch

def _softmax(x, axis=-1):
    return torch.softmax(x, dim=axis)
def _gelu(x):
    return torch.nn.functional.gelu(x, approximate="tanh")
def _silu(x):
    return torch.nn.functional.silu(x)
def _sigmoid(x):
    return torch.sigmoid(x)
def _layernorm(x, axis=-1, eps=1e-5):
    m = x.mean(dim=axis, keepdim=True)
    v = x.var(dim=axis, keepdim=True, unbiased=False)
    return (x - m) / torch.sqrt(v + eps)
def _scatter_add(tgt, idx, src, axis=0):
    return tgt.clone().index_add_(axis, idx, src)
def _segment_sum(src, seg, n):
    out = torch.zeros((n,) + src.shape[1:], dtype=src.dtype)
    return out.index_add_(0, seg, src)
def _pad(x, pw):
    flat = tuple(v for pair in reversed(pw) for v in pair)
    return torch.nn.functional.pad(x, flat)

kernel_name = 'concat_heads__mha_block_cached__gqa_block_cached__near_ridge'

def setup_inputs():

    _w = (lambda a: (lambda t: t.to(torch.bfloat16) if t.is_floating_point() else t)(torch.as_tensor(a)))
    def _A_setup():
        B, Sq, D = 8, 144, 576
        H, Sk, Dh = 32, 512, 128
        return {
            "x": _w((lambda *s: torch.randn(*s, dtype=torch.bfloat16) * 0.8)(B, Sq, D)),
            "k_cache": _w((lambda *s: torch.randn(*s, dtype=torch.bfloat16) * 0.8)(B, H, Sk, Dh)),
            "v_cache": _w((lambda *s: torch.randn(*s, dtype=torch.bfloat16) * 0.05)(B, H, Sk, Dh)),
            "wq": _w((lambda *s: torch.randn(*s, dtype=torch.bfloat16) * 0.8)(D, H * Dh) * (D ** -0.5)),
            "wo": _w((lambda *s: torch.randn(*s, dtype=torch.bfloat16) * 0.05)(H * Dh, D) * ((H * Dh) ** -0.5)),
        }
    _A_in = _A_setup()

    def _B_setup():
        B, Sq, D = 8, 144, 576
        Hq, Hkv, Sk, Dh = 32, 32, 512, 128
        assert Hq % Hkv == 0, (Hq, Hkv)
        return {
            "x": _w((lambda *s: torch.randn(*s, dtype=torch.bfloat16) * 0.8)(B, Sq, D)),
            "k_cache": _w((lambda *s: torch.randn(*s, dtype=torch.bfloat16) * 0.8)(B, Hkv, Sk, Dh)),
            "v_cache": _w((lambda *s: torch.randn(*s, dtype=torch.bfloat16) * 0.05)(B, Hkv, Sk, Dh)),
            "wq": _w((lambda *s: torch.randn(*s, dtype=torch.bfloat16) * 0.8)(D, Hq * Dh) * (D ** -0.5)),
            "wo": _w((lambda *s: torch.randn(*s, dtype=torch.bfloat16) * 0.05)(Hq * Dh, D) * ((Hq * Dh) ** -0.5)),
        }
    _B_in = _B_setup()

    return {
        "A_x": _A_in["x"],
        "A_k_cache": _A_in["k_cache"],
        "A_v_cache": _A_in["v_cache"],
        "A_wq": _A_in["wq"],
        "A_wo": _A_in["wo"],
        "B_x": _B_in["x"],
        "B_k_cache": _B_in["k_cache"],
        "B_v_cache": _B_in["v_cache"],
        "B_wq": _B_in["wq"],
        "B_wo": _B_in["wo"],
    }

def reference(A_x, A_k_cache, A_v_cache, A_wq, A_wo, B_x, B_k_cache, B_v_cache, B_wq, B_wo):
    def _A_ref(x, k_cache, v_cache, wq, wo):
        B, Sq, D = x.shape
        H, Dh = 32, 128
        q = (lambda x, *d: x.permute(*d))((x @ wq).reshape(B, Sq, H, Dh), 0, 2, 1, 3)
        scores = torch.einsum("bhqd,bhkd->bhqk", q, k_cache) * (Dh ** -0.5)
        p = _softmax(scores, axis=-1)
        o = torch.einsum("bhqk,bhkd->bhqd", p, v_cache)
        return (lambda x, *d: x.permute(*d))(o, 0, 2, 1, 3).reshape(B, Sq, H * Dh) @ wo

    def _B_ref(x, k_cache, v_cache, wq, wo):
        B, Sq, D = x.shape
        Hq, Dh = 32, 128
        Hkv = k_cache.shape[1]
        rep = Hq // Hkv
        q = (lambda x, *d: x.permute(*d))((x @ wq).reshape(B, Sq, Hq, Dh), 0, 2, 1, 3)
        k = (lambda x, n, axis: torch.repeat_interleave(x, n, dim=axis))(k_cache, rep, axis=1)
        v = (lambda x, n, axis: torch.repeat_interleave(x, n, dim=axis))(v_cache, rep, axis=1)
        scores = torch.einsum("bhqd,bhkd->bhqk", q, k) * (Dh ** -0.5)
        p = _softmax(scores, axis=-1)
        o = torch.einsum("bhqk,bhkd->bhqd", p, v)
        return (lambda x, *d: x.permute(*d))(o, 0, 2, 1, 3).reshape(B, Sq, Hq * Dh) @ wo

    a = _A_ref(A_x, A_k_cache, A_v_cache, A_wq, A_wo)
    b = _B_ref(B_x, B_k_cache, B_v_cache, B_wq, B_wo)
    return torch.concatenate([a, b], axis=-1)
```

```python
import re

def regs_of(tok):
    tok = tok.strip()
    tok = tok.lstrip('-')
    m = re.fullmatch(r'abs\((.*)\)', tok)
    if m: tok = m.group(1)
    m = re.fullmatch(r'([vas])(\d+)', tok)
    if m: return [(m.group(1), int(m.group(2)))]
    m = re.fullmatch(r'([vas])\[(\d+):(\d+)\]', tok)
    if m: return [(m.group(1), i) for i in range(int(m.group(2)), int(m.group(3)) + 1)]
    if tok == 'm0': return [('m', 0)]
    if tok == 'vcc': return [('c', 0)]
    if tok == 'exec': return [('x', 0)]
    return []

TRANS = ('v_exp_f32', 'v_log_f32', 'v_rcp_f32', 'v_rsq_f32', 'v_sqrt_f32')

class Ins:
    def __init__(self, text):
        self.text = text
        self.nops = 0
        t = text.split(';')[0].strip()
        parts = t.split(None, 1)
        self.op = parts[0]
        rest = parts[1] if len(parts) > 1 else ''
        ops, depth, cur = [], 0, ''
        for ch in rest:
            if ch in '[(': depth += 1
            if ch in '])': depth -= 1
            if ch == ',' and depth == 0:
                ops.append(cur.strip()); cur = ''
            else: cur += ch
        if cur.strip(): ops.append(cur.strip())
        self.mods = ''
        if ops:
            last = ops[-1].split(None, 1)
            ops[-1] = last[0]
            self.mods = last[1] if len(last) > 1 else ''
        self.ops = ops
        op = self.op
        self.kind = 'other'
        self.dst, self.src = [], []
        self.srcC = []
        self.srcAB = []
        R = regs_of
        if op.startswith('v_mfma'):
            self.kind = 'mfma'
            self.dst = R(ops[0]); self.srcAB = R(ops[1]) + R(ops[2]); self.srcC = R(ops[3])
            self.src = self.srcAB + self.srcC
        elif op.startswith('v_permlane'):
            self.kind = 'valu'; self.dst = R(ops[0]) + R(ops[1]); self.src = list(self.dst)
        elif op.startswith('v_readfirstlane') or op.startswith('v_readlane'):
            self.kind = 'valu'; self.dst = R(ops[0]); self.src = sum((R(o) for o in ops[1:]), [])
        elif op.startswith('v_cmp'):
            self.kind = 'valu'; self.dst = R(ops[0]); self.src = sum((R(o) for o in ops[1:]), [])
        elif op.startswith('v_'):
            self.kind = 'valu'; self.dst = R(ops[0]); self.src = sum((R(o) for o in ops[1:]), [])
            if op.startswith('v_fmac') or op.startswith('v_pk_fmac'): self.src += self.dst
        elif op.startswith('ds_read'):
            self.kind = 'dsr'; self.dst = R(ops[0]); self.src = R(ops[1])
        elif op.startswith('ds_write') or op.startswith('ds_add') or op.startswith('ds_max'):
            self.kind = 'dsw'; self.src = sum((R(o) for o in ops), [])
        elif op.startswith('buffer_load') or op.startswith('global_load'):
            if re.search(r'\blds\b', self.mods):
                self.kind = 'dma'; self.src = sum((R(o) for o in ops), []) + [('m', 0)]
            else:
                self.kind = 'vload'; self.dst = R(ops[0]); self.src = sum((R(o) for o in ops[1:]), [])
        elif op.startswith('buffer_store'):
            self.kind = 'vstore'; self.src = sum((R(o) for o in ops), []); self.data = R(ops[0])
        elif op.startswith('global_store'):
            self.kind = 'vstore'; self.src = sum((R(o) for o in ops), []); self.data = R(ops[1])
        elif op.startswith('global_atomic') or op.startswith('buffer_atomic'):
            self.kind = 'vatomic'
            if 'sc0' in self.mods and op.startswith('global_atomic'):
                self.dst = R(ops[0]); self.src = sum((R(o) for o in ops[1:]), [])
            else:
                self.src = sum((R(o) for o in ops), [])
        elif op in ('buffer_wbl2', 'buffer_inv'):
            self.kind = 'vcache'
        elif op.startswith('s_load') or op.startswith('s_memtime') or op.startswith('s_memrealtime'):
            self.kind = 'smem'; self.dst = R(ops[0]); self.src = sum((R(o) for o in ops[1:]), [])
        elif op == 's_waitcnt':
            self.kind = 'wait'
            self.vm = self.lgkm = None
            m = re.search(r'vmcnt\((\d+)\)', t);  self.vm = int(m.group(1)) if m else None
            m = re.search(r'lgkmcnt\((\d+)\)', t); self.lgkm = int(m.group(1)) if m else None
        elif op == 's_nop':
            self.kind = 'nop'; self.n = int(ops[0], 0) + 1
        elif op.startswith('s_cmp') or op.startswith('s_bitcmp'):
            self.kind = 'salu'; self.src = sum((R(o) for o in ops), [])
        elif op.startswith('s_cbranch') or op in ('s_branch', 's_barrier', 's_endpgm', 's_setprio', 's_sleep'):
            self.kind = 'ctl'
        elif op.startswith('s_'):
            self.kind = 'salu'; self.dst = R(ops[0]); self.src = sum((R(o) for o in ops[1:]), [])
        self.trans = op in TRANS or op.replace('_e32', '').replace('_e64', '') in TRANS
        self.optional = False
    def states(self):
        return self.n if self.kind == 'nop' else 1

class Label:
    def __init__(self, name): self.name = name

class Variant:
    def __init__(self, sel, pre, A, jmp, labB, B, labE):
        self.sel, self.pre, self.A, self.jmp, self.labB, self.B, self.labE = sel, pre, A, jmp, labB, B, labE

class Prog:
    def __init__(self, name, wave_sreg):
        self.name = name
        self.items = []
        self.cur = self.items
        self.lg = []
        self.vm = []
        self.nlab = 0
        self.wreg = wave_sreg
    def e(self, text):
        i = Ins(text); self.cur.append(i); return i
    def lab(self, name): self.cur.append(Label(name))
    def newlab(self, base):
        self.nlab += 1; return f".L{self.name}_{base}_{self.nlab}"
    def ds(self, text, tag=None):
        assert len(self.lg) < 15 or True
        i = self.e(text); self.lg.append(tag);
        assert len(self.lg) <= 15, f"lgkm overflow at {text}"
        return i
    def vmem(self, text, tag=None, optional=False):
        i = self.e(text); i.optional = optional; self.vm.append((tag, optional))
        assert len(self.vm) <= 63, "vmcnt overflow"
        return i
    def _lg_n(self, tag):
        if tag == 'all': n = 0
        else:
            idx = [k for k, t in enumerate(self.lg) if t == tag]
            if not idx: return None
            n = len(self.lg) - 1 - idx[-1]
        if n >= len(self.lg): return None
        self.lg = self.lg[len(self.lg) - n:] if n else []
        return n
    def _vm_n(self, tag):
        if tag == 'all': keep = []
        else:
            idx = [k for k, t in enumerate(self.vm) if t[0] == tag]
            if not idx: return None
            keep = self.vm[idx[-1] + 1:]
        if len(keep) == len(self.vm): return None
        n = sum(1 for t in keep if not t[1])
        self.vm = keep
        return n
    def wait(self, lg=None, vm=None):
        a = self._lg_n(lg) if lg is not None else None
        b = self._vm_n(vm) if vm is not None else None
        if a is None and b is None: return
        s = 's_waitcnt'
        if b is not None: s += f' vmcnt({b})'
        if a is not None: s += f' lgkmcnt({a})'
        self.e(s)
    def variant(self, sel, fn):
        labB, labE = self.newlab('b'), self.newlab('e')
        outer = self.cur
        pre = [Ins(f's_cmp_eq_u32 {self.wreg}, {sel}'), Ins(f's_cbranch_scc0 {labB}')]
        st = (list(self.lg), list(self.vm))
        A = []; self.cur = A; fn(True)
        sa = (list(self.lg), list(self.vm))
        self.lg, self.vm = list(st[0]), list(st[1])
        B = []; self.cur = B; fn(False)
        assert sa == (self.lg, self.vm), "variant counter mismatch"
        self.cur = outer
        outer.append(Variant(sel, pre, A, Ins(f's_branch {labE}'), labB, B, labE))
    def only(self, sel, fn):
        labB = self.newlab('s')
        outer = self.cur
        pre = [Ins(f's_cmp_eq_u32 {self.wreg}, {sel}'), Ins(f's_cbranch_scc0 {labB}')]
        A = []; self.cur = A; fn(); self.cur = outer
        outer.append(Variant(sel, pre, A, None, labB, [], None))
    def trace(self, w, items=None):
        out = []
        for it in (self.items if items is None else items):
            if isinstance(it, Ins): out.append(it)
            elif isinstance(it, Variant):
                out += it.pre
                if it.sel == w:
                    out += self.trace(w, it.A)
                    if it.jmp: out.append(it.jmp)
                else: out += self.trace(w, it.B)
        return out
    def pad_hazards(self, nwaves=4):
        changed = True
        while changed:
            changed = False
            for w in range(nwaves):
                tr = self.trace(w)
                for k, c in enumerate(tr):
                    need = self._need(tr, k)
                    if need > 0:
                        c.nops += need; changed = True
    def _need(self, tr, k):
        c = tr[k]
        if c.kind in ('wait', 'nop', 'ctl'): return 0
        cs, cd = set(c.src), set(c.dst)
        dist = c.nops
        worst = 0
        j = k - 1
        while j >= 0 and dist < 12:
            p = tr[j]
            pd, req = set(p.dst), 0
            if p.kind == 'valu':
                v = {r for r in pd if r[0] in 'va'}
                s = {r for r in pd if r[0] in 'sc'}
                if c.kind == 'mfma' and v & cs: req = max(req, 2)
                if c.op.startswith('v_permlane') and v & cs: req = max(req, 2)
                if (c.op.startswith('v_readfirstlane') or c.op.startswith('v_readlane')) and v & cs: req = max(req, 1)
                if p.trans and c.kind in ('valu',) and not c.trans and v & cs: req = max(req, 1)
                if p.trans and c.kind in ('dsw', 'vstore', 'mfma') and v & cs: req = max(req, 2)
                if s & cs:
                    if c.kind in ('dma', 'vload', 'vstore', 'vatomic'): req = max(req, 5)
                    elif c.kind == 'valu': req = max(req, 2)
                    else: req = max(req, 4)
                if 'dpp' in c.mods or 'row_' in c.mods or 'quad_perm' in c.mods:
                    if v & cs: req = max(req, 2)
            if p.kind == 'mfma':
                big = '32x32' in p.op
                if c.kind == 'mfma':
                    if pd & set(c.srcAB): req = max(req, 12 if big else 8)
                    if pd & set(c.srcC) and not (p.dst == c.srcC and p.op == c.op): req = max(req, 10 if big else 6)
                    if pd & cd and not (pd & set(c.srcC)): req = max(req, 12 if big else 8)
                elif c.kind in ('valu', 'dsr', 'dsw', 'vload', 'vstore', 'dma', 'vatomic'):
                    if pd & (cs | cd): req = max(req, 12 if big else 8)
                if c.kind == 'valu' and set(p.srcC) & cd: req = max(req, 7 if big else 3)
            if p.kind == 'salu' and ('m', 0) in pd and c.kind == 'dma': req = max(req, 1)
            if p.kind == 'vstore' and len(p.data) >= 3 and set(p.data) & cd:
                req = max(req, 2 if c.kind == 'valu' else 1)
            if p.kind == 'dsw' and c.kind == 'valu' and set(p.src) & cd and len(p.src) > 3:
                req = max(req, 1)
            worst = max(worst, req - dist)
            dist += p.states() + p.nops
            j -= 1
        return worst
    def check_loads(self, nwaves=4):
        for w in range(nwaves):
            lg, vm = [], []
            for c in self.trace(w):
                if c.kind == 'wait':
                    if c.lgkm is not None:
                        if any(o.kind == 'smem' for o in lg):
                            assert c.lgkm == 0, "smem outstanding needs lgkmcnt(0)"
                        lg = lg[len(lg) - c.lgkm:] if c.lgkm and c.lgkm < len(lg) else ([] if c.lgkm == 0 else lg)
                    if c.vm is not None:
                        vm = vm[len(vm) - c.vm:] if c.vm and c.vm < len(vm) else ([] if c.vm == 0 else vm)
                    continue
                touch = set(c.src) | set(c.dst)
                for o in lg + vm:
                    if set(o.dst) & touch:
                        raise AssertionError(f"wave {w}: '{c.text}' touches pending result of '{o.text}'")
                if c.kind in ('dsr', 'dsw', 'smem'): lg.append(c)
                if c.kind in ('dma', 'vload', 'vstore', 'vatomic', 'vcache'): vm.append(c)
                assert len([o for o in lg if o.kind != 'smem']) <= 15 and len(vm) <= 63
    def emit(self, items=None):
        out = []
        def put(i):
            n = i.nops
            while n > 0:
                k = min(n, 16); out.append(f'  s_nop {k-1}'); n -= k
            out.append('  ' + i.text)
        for it in (self.items if items is None else items):
            if isinstance(it, Ins): put(it)
            elif isinstance(it, Label): out.append(it.name + ':')
            else:
                for i in it.pre: put(i)
                out += self.emit(it.A)
                if it.jmp: put(it.jmp)
                out.append(it.labB + ':')
                out += self.emit(it.B)
                if it.labE: out.append(it.labE + ':')
        return out
    def count(self, w=0):
        from collections import Counter
        return Counter(i.kind for i in self.trace(w))

def vr(a, n=1):
    return f'v{a}' if n == 1 else f'v[{a}:{a+n-1}]'
def sr(a, n=1):
    return f's{a}' if n == 1 else f's[{a}:{a+n-1}]'
```

```python
import sys, struct, math
from dsl import *

NAME = 'concat_heads__mha_block_cached__gqa_block_cached__near_ridge'
def fbits(x): return struct.unpack('<I', struct.pack('<f', x))[0]
CSC = math.log2(math.e) / math.sqrt(128.0)

OPT = dict(kv_pol='nt', x_pol='', w_pol='', o_st='sc1', o_ld='', wo_pol='', out_st='', pk=False, ts=False)

def mfma(P, d, a, b, first):
    c = '0' if first else vr(d, 4)
    P.e(f'v_mfma_f32_16x16x32_bf16 {vr(d,4)}, {vr(a,4)}, {vr(b,4)}, {c}')

def femit(P, dst, x, t1, t2):
    P.e(f'v_lshrrev_b32 v{t1}, 3, v{x}')
    P.e(f'v_and_b32 v{dst}, 7, v{x}')
    P.e(f'v_lshlrev_b32 v{t2}, 2, v{t1}')
    P.e(f'v_xor_b32 v{dst}, v{dst}, v{t2}')
    P.e(f'v_lshl_or_b32 v{dst}, v{dst}, 1, v{t1}')

def srd(P, d, lo, hi, size):
    P.e(f's_mov_b32 s{d}, s{lo}')
    P.e(f's_and_b32 s{d+1}, s{hi}, 0xffff')
    P.e(f's_mov_b32 s{d+2}, {size}')
    P.e(f's_mov_b32 s{d+3}, 0x20000')

def stamp(P, idx):
    if OPT['ts']:
        P.e(f's_memrealtime s[{60+2*idx}:{61+2*idx}]')
        P.e('s_waitcnt lgkmcnt(0)')
        P.lg = []

STG = 17408
XB = 9216
EXCH = 69632
K1_LDS = 73728
O0, O1, O8 = 0, 32, 64
Q0, Q1, Q8 = 96, 112, 128
S0, S1, S8 = 144, 176, 208
KF = 216
AK, AV = 232, 236
M_, L_ = 244, 247
VKV = 250
T0 = 251
QA = 0
QA8 = 64
AF = 208
SX, SW, SK, SV, SO = 28, 32, 36, 40, 44

def gen_k1():
    P = Prog('k1', 's4'); e = P.e
    kvp, xp, wp = OPT['kv_pol'], OPT['x_pol'], OPT['w_pol']
    e('s_cmp_ge_u32 s2, 512'); e('s_cbranch_scc1 .Lk1_end')
    e('s_load_dwordx8 s[8:15], s[0:1], 0')
    e('s_load_dwordx8 s[16:23], s[0:1], 40')
    e('s_load_dwordx2 s[24:25], s[0:1], 96')
    if OPT['ts']: e('s_memrealtime s[60:61]')
    e('v_lshrrev_b32 v1, 6, v0')
    e('v_readfirstlane_b32 s4, v1')
    e('s_and_b32 s48, s2, 7')
    e('s_lshr_b32 s49, s2, 3')
    e('s_lshr_b32 s50, s48, 2')
    e('s_and_b32 s51, s48, 3'); e('s_lshl_b32 s51, s51, 3')
    e('s_and_b32 s3, s49, 7'); e('s_add_u32 s51, s51, s3')
    e('s_lshr_b32 s52, s49, 3')
    e('s_lshl_b32 s5, s4, 10')
    e('s_sub_u32 s6, 8, s4'); e('s_mul_i32 s6, s6, 18432')
    e(f's_mov_b32 s7, {fbits(CSC):#x}')
    e('v_and_b32 v2, 63, v0'); e('v_and_b32 v3, 15, v0'); e('v_lshrrev_b32 v4, 4, v2')
    e('v_lshrrev_b32 v5, 2, v3'); e('v_and_b32 v6, 3, v3')
    AW, AX, AX8, VX, VW = 236, 232, 233, 234, 235
    e('v_lshl_add_u32 v7, v1, 2, v4')
    femit(P, 8, 7, 9, 10)
    e('v_xor_b32 v8, v8, v3'); e('v_lshlrev_b32 v8, 4, v8')
    e(f'v_lshl_add_u32 v{VKV}, v7, 8, v8')
    e(f'v_lshl_add_u32 v{VW}, v7, 13, v8')
    e('v_lshrrev_b32 v7, 2, v2'); e('v_lshrrev_b32 v8, 2, v7'); e('v_sub_u32 v8, 4, v8'); e('v_and_b32 v8, 3, v8')
    e('v_xor_b32 v8, v8, v6'); e('v_lshlrev_b32 v8, 4, v8')
    e('v_lshl_add_u32 v7, v1, 4, v7'); e('v_mul_u32_u24 v7, 1152, v7'); e(f'v_add_u32 v{VX}, v7, v8')
    e('v_sub_u32 v8, 4, v5'); e('v_and_b32 v8, 3, v8'); e('v_xor_b32 v8, v8, v4'); e('v_lshlrev_b32 v8, 4, v8')
    e(f'v_lshl_add_u32 v{AX8}, v3, 6, v8'); e(f'v_lshl_add_u32 v{AX}, v1, 11, v{AX8}')
    e('v_lshl_add_u32 v7, v4, 3, v5'); e('v_and_b32 v11, 15, v7')
    femit(P, 8, 11, 9, 10)
    e('v_lshrrev_b32 v9, 1, v6'); e('v_xor_b32 v8, v8, v9'); e('v_lshlrev_b32 v9, 2, v1'); e('v_xor_b32 v8, v8, v9')
    e('v_lshlrev_b32 v8, 4, v8'); e('v_and_b32 v9, 1, v6'); e('v_lshl_or_b32 v8, v9, 3, v8')
    e(f'v_lshl_add_u32 v{AW}, v7, 8, v8')
    for d in range(1, 8): e(f'v_xor_b32 v{AW+d}, {d<<5}, v{AW}')
    e('v_lshl_add_u32 v7, v4, 2, v5')
    femit(P, 8, 7, 9, 10)
    e('v_lshrrev_b32 v9, 1, v6'); e('v_xor_b32 v8, v8, v9')
    e('v_lshlrev_b32 v8, 4, v8'); e('v_and_b32 v9, 1, v6'); e('v_lshl_or_b32 v8, v9, 3, v8')
    e('v_lshl_add_u32 v251, v7, 8, v8')
    femit(P, 8, 3, 9, 10)
    e('v_lshl_add_u32 v9, v1, 2, v4'); e('v_xor_b32 v8, v8, v9'); e('v_lshlrev_b32 v8, 4, v8')
    e('v_lshl_add_u32 v252, v3, 8, v8')
    e('v_lshlrev_b32 v253, 4, v2')
    e('s_waitcnt lgkmcnt(0)')
    e('s_cmp_eq_u32 s50, 0')
    for k in range(4): e(f's_cselect_b64 s[{8+2*k}:{9+2*k}], s[{8+2*k}:{9+2*k}], s[{16+2*k}:{17+2*k}]')
    e('s_mul_i32 s3, s52, 165888'); e('s_add_u32 s8, s8, s3'); e('s_addc_u32 s9, s9, 0')
    srd(P, SX, 8, 9, 165888)
    e('s_lshl_b32 s3, s51, 8'); e('s_add_u32 s14, s14, s3'); e('s_addc_u32 s15, s15, 0')
    srd(P, SW, 14, 15, 575 * 8192 + 256)
    e('s_lshl_b32 s3, s52, 5'); e('s_add_u32 s3, s3, s51'); e('s_lshl_b32 s3, s3, 17')
    e('s_add_u32 s10, s10, s3'); e('s_addc_u32 s11, s11, 0'); srd(P, SK, 10, 11, 131072)
    e('s_add_u32 s12, s12, s3'); e('s_addc_u32 s13, s13, 0'); srd(P, SV, 12, 13, 131072)
    e('s_mul_i32 s3, s50, 72'); e('s_mul_i32 s26, s52, 9'); e('s_add_u32 s3, s3, s26'); e('s_lshl_b32 s3, s3, 7')
    e('s_lshl_b32 s26, s51, 2'); e('s_add_u32 s3, s3, s26'); e('s_lshl_b32 s3, s3, 10')
    e('s_add_u32 s24, s24, s3'); e('s_addc_u32 s25, s25, 0'); srd(P, SO, 24, 25, (8 * 128 + 4) * 1024)

    def stage(s): return ((s + 2) % 4) * STG
    def dma_q(s):
        st = stage(s)
        for u in range(2):
            e(f's_add_u32 m0, s5, {st + u*4096}')
            e(f's_mov_b32 s26, {s*64 + u*73728}')
            P.vmem(f'buffer_load_dwordx4 v{VX}, s[{SX}:{SX+3}], s26 offen {xp} lds', ('q', s))
        def x8():
            e(f's_mov_b32 m0, {st + 8192}')
            e(f's_add_u32 s26, s6, {s*64}')
            P.vmem(f'buffer_load_dwordx4 v{VX}, s[{SX}:{SX+3}], s26 offen {xp} lds', ('q', s), optional=True)
        P.only(s % 4, x8)
        for u in range(2):
            e(f's_add_u32 m0, s5, {st + XB + u*4096}')
            e(f's_mov_b32 s26, {(32*s + 16*u) * 8192}')
            P.vmem(f'buffer_load_dwordx4 v{VW}, s[{SW}:{SW+3}], s26 offen {wp} lds', ('q', s))
    def dma_kv(n):
        c, kind = n // 4, n % 4
        S = SK if kind < 2 else SV
        gb = c * 32768 + (kind % 2) * 16384
        for t in range(4):
            e(f's_add_u32 m0, s5, {kind*16384 + t*4096}')
            e(f's_mov_b32 s26, {gb + t*4096}')
            P.vmem(f'buffer_load_dwordx4 v{VKV}, s[{S}:{S+3}], s26 offen {kvp} lds', ('kv', n))

    AFb = [72, 76, 80, 84, 88, 92, 208, 212]
    BF = [[96, 100, 104], [108, 112, 116]]
    def rdA(s, d):
        st = stage(s) + XB
        P.ds(f'ds_read_b64_tr_b16 {vr(AFb[d],2)}, v{AW+d} offset:{st}', ('A', s, d))
        P.ds(f'ds_read_b64_tr_b16 {vr(AFb[d]+2,2)}, v{AW+(d^4)} offset:{st+1024}', ('A', s, d))
    def rdB(s):
        st = stage(s); b = BF[s % 2]
        P.ds(f'ds_read_b128 {vr(b[0],4)}, v{AX} offset:{st}', ('B', s))
        P.ds(f'ds_read_b128 {vr(b[1],4)}, v{AX} offset:{st+1024}', ('B', s))
        P.ds(f'ds_read_b128 {vr(b[2],4)}, v{AX8} offset:{st+8192}', ('B', s))
    def qm(s, d):
        b = BF[s % 2]
        mfma(P, QA + (d*2)*4, AFb[d], b[0], s == 0)
        mfma(P, QA + (d*2+1)*4, AFb[d], b[1], s == 0)
        if d < 2: mfma(P, QA8 + d*4, AFb[d], b[2], s == 0)
    for s in range(4): dma_q(s)
    P.wait(vm=('q', 0)); e('s_barrier')
    stamp(P, 1)
    rdB(0)
    for d in range(4): rdA(0, d)
    for s in range(18):
        rdA(s, 4); rdA(s, 5)
        P.wait(lg=('A', s, 0)); qm(s, 0)
        rdA(s, 6); rdA(s, 7)
        for d in (1, 2, 3):
            P.wait(lg=('A', s, d)); qm(s, d)
        if s < 17: P.wait(lg='all', vm=('q', s + 1))
        else: P.wait(lg='all')
        e('s_barrier')
        if s + 4 < 18: dma_q(s + 4)
        else: dma_kv(s - 14)
        if s < 17:
            rdB(s + 1)
            for d in range(4): rdA(s + 1, d)
        for d in range(4, 8): qm(s, d)
    stamp(P, 2)
    def pack_swap(dst, X, Y):
        e(f'v_cvt_pk_bf16_f32 v{dst}, v{X}, v{X+1}'); e(f'v_cvt_pk_bf16_f32 v{dst+1}, v{X+2}, v{X+3}')
        e(f'v_cvt_pk_bf16_f32 v{dst+2}, v{Y}, v{Y+1}'); e(f'v_cvt_pk_bf16_f32 v{dst+3}, v{Y+2}, v{Y+3}')
    def swaps(lst):
        for d in lst:
            e(f'v_permlane32_swap_b32 v{d}, v{d+2}'); e(f'v_permlane32_swap_b32 v{d+1}, v{d+3}')
        for d in lst:
            e(f'v_permlane16_swap_b32 v{d}, v{d+2}'); e(f'v_permlane16_swap_b32 v{d+1}, v{d+3}')
    pack_swap(KF, QA8, QA8 + 4)
    e(f'v_add_u32 v254, s5, v253')
    e(f'v_add_u32 v254, {EXCH}, v254')
    pack_swap(Q0, QA + 0, QA + 8)
    swaps([KF])
    P.ds(f'ds_write_b128 v254, {vr(KF,4)}', 'q8w')
    for j in range(2):
        for u in range(4):
            if (j, u) != (0, 0): pack_swap((Q0, Q1)[j] + 4*u, QA + ((2*u)*2 + j)*4, QA + ((2*u+1)*2 + j)*4)
    swaps([Q0 + 4*u for u in range(8)])
    e(f'v_mov_b32 v{AK}, v252')
    for u in range(1, 4): e(f'v_xor_b32 v{AK+u}, {u<<6}, v252')
    e(f'v_mov_b32 v{AV}, v251')
    for d in range(1, 8): e(f'v_xor_b32 v{AV+d}, {d<<5}, v251')
    P.wait(lg='all', vm=('kv', 0)); e('s_barrier')
    stamp(P, 3)
    for u in range(4):
        if u: e(f'v_xor_b32 v255, {u<<10}, v254')
        P.ds(f'ds_read_b128 {vr(Q8+4*u,4)}, v{254 if u == 0 else 255}', 'q8r')
    Sreg = lambda j, t: (S0, S1)[j] + (t // 2) * 8 + (t % 2) * 4
    VF = [(S0, S1)[k // 4] + (k % 4) * 8 + 4 for k in range(8)] + [S8 + 4]
    def rdK(c, n):
        t, u = n // 4, n % 4
        P.ds(f'ds_read_b128 {vr(KF + 4*(n%4),4)}, v{AK+u} offset:{t*4096}', ('K', c, n))
    def rdV(c, n):
        blk, d = n // 8, n % 8
        off = 32768 + blk * 8192
        b = VF[n % 9]
        P.ds(f'ds_read_b64_tr_b16 {vr(b,2)}, v{AV+d} offset:{off}', ('V', c, n))
        P.ds(f'ds_read_b64_tr_b16 {vr(b+2,2)}, v{AV+d} offset:{off+4096}', ('V', c, n))
    for n in range(4): rdK(0, n)
    for c in range(4):
        def sblk(i):
            def fn(w):
                for n in range(8*i, 8*i + 8):
                    t, u = n // 4, n % 4
                    P.wait(lg=('K', c, n))
                    a = KF + 4*(n % 4)
                    mfma(P, Sreg(0, t), a, Q0 + 4*u, u == 0)
                    mfma(P, Sreg(1, t), a, Q1 + 4*u, u == 0)
                    if w: mfma(P, S8 + (t % 2)*4, a, Q8 + 4*u, u == 0)
                    if n == 12: pass
                    elif n == 13:
                        P.wait(lg='all', vm=('kv', 4*c + 1)); e('s_barrier')
                        if c < 3: dma_kv(4*c + 4)
                        rdK(c, 16); rdK(c, 17)
                    elif n == 29:
                        P.wait(lg='all'); e('s_barrier')
                        if c < 3: dma_kv(4*c + 5)
                    elif n + 4 < 32: rdK(c, n + 4)
            return fn
        for i in range(4): P.variant(i, sblk(i))
        tiles = [(0, S0, 32, O0), (1, S1, 32, O1), (2, S8, 8, O8)]
        TM, MC, AL = KF, KF + 4, KF + 8
        for (j, S, n, O) in tiles:
            vals = list(range(S, S + n))
            t = TM + j
            if c == 0:
                e(f'v_max3_f32 v{t}, v{vals[0]}, v{vals[1]}, v{vals[2]}'); rest = vals[3:]
            else:
                e(f'v_max3_f32 v{t}, v{vals[0]}, v{vals[1]}, v{M_+j}'); rest = vals[2:]
            while len(rest) >= 2:
                e(f'v_max3_f32 v{t}, v{t}, v{rest[0]}, v{rest[1]}'); rest = rest[2:]
            if rest: e(f'v_max_f32 v{t}, v{t}, v{rest[0]}')
        for sw in ('32', '16'):
            for j in range(3): e(f'v_mov_b32 v{KF+12+j}, v{TM+j}')
            for j in range(3): e(f'v_permlane{sw}_swap_b32 v{TM+j}, v{KF+12+j}')
            for j in range(3): e(f'v_max_f32 v{TM+j}, v{TM+j}, v{KF+12+j}')
        for j in range(3): e(f'v_mul_f32 v{MC+j}, s7, v{TM+j}')
        if c > 0:
            for j in range(3): e(f'v_fma_f32 v{AL+j}, v{M_+j}, s7, -v{MC+j}')
            for j in range(3): e(f'v_exp_f32 v{AL+j}, v{AL+j}')
        for j in range(3): e(f'v_mov_b32 v{M_+j}, v{TM+j}')
        pend = None
        def fin(g):
            j, base, first = g
            for k in range(8):
                if first and k == 0:
                    if c == 0: e(f'v_add_f32 v{L_+j}, v{base}, v{base+1}')
                    else: e(f'v_fma_f32 v{L_+j}, v{L_+j}, v{AL+j}, v{base}')
                elif first and k == 1 and c == 0: pass
                else: e(f'v_add_f32 v{L_+j}, v{L_+j}, v{base+k}')
            for k in range(4): e(f'v_cvt_pk_bf16_f32 v{base+k}, v{base+2*k}, v{base+2*k+1}')
        for (j, S, n, O) in tiles:
            for base in range(S, S + n, 8):
                for k in range(8): e(f'v_fma_f32 v{base+k}, v{base+k}, s7, -v{MC+j}')
                for k in range(8): e(f'v_exp_f32 v{base+k}, v{base+k}')
                if pend: fin(pend)
                pend = (j, base, base == S)
        fin(pend)
        P.wait(vm=('kv', 4*c + 2)); e('s_barrier')
        for n in range(6): rdV(c, n)
        if c > 0:
            for (j, S, n, O) in tiles:
                for k in range(32): e(f'v_mul_f32 v{O+k}, v{O+k}, v{AL+j}')
        def pblk(i):
            def fn(w):
                for n in range(8*i, 8*i + 8):
                    d = n % 8
                    P.wait(lg=('V', c, n))
                    a = VF[n % 9]
                    mfma(P, O0 + 4*d, a, S0 + 8*i, c == 0 and i == 0)
                    mfma(P, O1 + 4*d, a, S1 + 8*i, c == 0 and i == 0)
                    if w: mfma(P, O8 + 4*d, a, S8, c == 0)
                    if n == 10: pass
                    elif n == 11:
                        P.wait(lg='all', vm=('kv', 4*c + 3)); e('s_barrier')
                        if c < 3: dma_kv(4*c + 6)
                        rdV(c, 16); rdV(c, 17)
                    elif n == 27:
                        if c < 3:
                            P.wait(lg='all', vm=('kv', 4*c + 4)); e('s_barrier')
                            dma_kv(4*c + 7)
                            for k in range(4): rdK(c + 1, k)
                        else:
                            P.wait(lg='all'); e('s_barrier')
                    elif n + 6 < 32: rdV(c, n + 6)
            return fn
        for i in range(4): P.variant(i, pblk(i))
    stamp(P, 4)
    T = KF
    for sw in ('32', '16'):
        for j in range(3): e(f'v_mov_b32 v{T+j}, v{L_+j}')
        for j in range(3): e(f'v_permlane{sw}_swap_b32 v{L_+j}, v{T+j}')
        for j in range(3): e(f'v_add_f32 v{L_+j}, v{L_+j}, v{T+j}')
    e('s_lshl_b32 s26, s4, 13')
    e('v_add_u32 v254, s26, v253')
    for d in range(8): P.ds(f'ds_write_b128 v254, {vr(O8+4*d,4)} offset:{d*1024}', 'cw')
    e('v_lshrrev_b32 v255, 1, v253')
    e('s_lshl_b32 s26, s4, 9')
    e('v_add_u32 v254, s26, v255')
    e(f'v_mov_b32 v{T+4}, v{M_+2}'); e(f'v_mov_b32 v{T+5}, v{L_+2}')
    P.ds(f'ds_write_b64 v254, {vr(T+4,2)} offset:32768', 'cw')
    for j in range(2): e(f'v_rcp_f32 v{T+j}, v{L_+j}')
    ost = OPT['o_st']
    for j in range(2):
        O = (O0, O1)[j]
        e(f's_lshl_b32 s26, s4, 18')
        if j: e('s_add_u32 s26, s26, 131072')
        for u in range(4):
            for k in range(8): e(f'v_mul_f32 v{O+8*u+k}, v{O+8*u+k}, v{T+j}')
            for k in range(4): e(f'v_cvt_pk_bf16_f32 v{O+8*u+k}, v{O+8*u+2*k}, v{O+8*u+2*k+1}')
            P.vmem(f'buffer_store_dwordx4 {vr(O+8*u,4)}, v253, s[{SO}:{SO+3}], s26 offen offset:{u*1024} {ost}', 'st')
    P.wait(lg='all'); e('s_barrier')
    e('s_lshl_b32 s26, s4, 11')
    e('v_add_u32 v254, s26, v253')
    CB = S0
    ST = S1
    for ww in range(4):
        P.ds(f'ds_read_b64 {vr(ST+2*ww,2)}, v255 offset:{32768+ww*512}', 'cs')
    for ww in range(4):
        P.ds(f'ds_read_b128 {vr(CB+8*ww,4)}, v254 offset:{ww*8192}', ('co', ww))
        P.ds(f'ds_read_b128 {vr(CB+8*ww+4,4)}, v254 offset:{ww*8192+1024}', ('co', ww))
    P.wait(lg='cs')
    e(f'v_max3_f32 v{T}, v{ST}, v{ST+2}, v{ST+4}'); e(f'v_max_f32 v{T}, v{T}, v{ST+6}')
    e(f'v_mul_f32 v{T}, s7, v{T}')
    for ww in range(4): e(f'v_fma_f32 v{T+4+ww}, v{ST+2*ww}, s7, -v{T}')
    for ww in range(4): e(f'v_exp_f32 v{T+4+ww}, v{T+4+ww}')
    e(f'v_mul_f32 v{T+1}, v{T+4}, v{ST+1}')
    for ww in range(1, 4): e(f'v_fma_f32 v{T+1}, v{T+4+ww}, v{ST+2*ww+1}, v{T+1}')
    e(f'v_rcp_f32 v{T+1}, v{T+1}')
    for ww in range(4): e(f'v_mul_f32 v{T+4+ww}, v{T+4+ww}, v{T+1}')
    for ww in range(4):
        P.wait(lg=('co', ww))
        for k in range(8):
            if ww == 0: e(f'v_mul_f32 v{O8+k}, v{CB+k}, v{T+4}')
            else: e(f'v_fma_f32 v{O8+k}, v{CB+8*ww+k}, v{T+4+ww}, v{O8+k}')
    for k in range(4): e(f'v_cvt_pk_bf16_f32 v{O8+k}, v{O8+2*k}, v{O8+2*k+1}')
    e('s_add_u32 s26, s5, 1048576')
    P.vmem(f'buffer_store_dwordx4 {vr(O8,4)}, v253, s[{SO}:{SO+3}], s26 offen {ost}', 'st')
    if OPT['ts']:
        P.wait(vm='all')
        stamp(P, 5)
        e('s_load_dwordx2 s[24:25], s[0:1], 96'); e('s_waitcnt lgkmcnt(0)')
        e('s_add_u32 s24, s24, 0x4000000'); e('s_addc_u32 s25, s25, 0')
        e('s_lshl_b32 s3, s2, 8'); e('s_lshl_b32 s26, s4, 6'); e('s_add_u32 s3, s3, s26')
        e('v_mov_b32 v0, s3')
        for k in range(6):
            e(f'v_mov_b32 v2, s{60+2*k}'); e(f'v_mov_b32 v3, s{61+2*k}')
            e(f'global_store_dwordx2 v0, v[2:3], s[24:25] offset:{8*k}')
            e('s_waitcnt vmcnt(0)')
    P.lab('.Lk1_end')
    e('s_endpgm')
    return P

K2_LDS = 73728
def gen_k2():
    P = Prog('k2', 's4'); e = P.e
    SO2, SWO, SOUT = 28, 32, 36
    e('s_cmp_ge_u32 s2, 216'); e('s_cbranch_scc1 .Lk2_end')
    e('s_load_dwordx2 s[8:9], s[0:1], 32')
    e('s_load_dwordx2 s[10:11], s[0:1], 72')
    e('s_load_dwordx2 s[12:13], s[0:1], 80')
    e('s_load_dwordx2 s[14:15], s[0:1], 96')
    if OPT['ts']: e('s_memrealtime s[60:61]')
    e('v_lshrrev_b32 v1, 6, v0')
    e('v_readfirstlane_b32 s4, v1')
    e('s_and_b32 s48, s2, 7'); e('s_lshr_b32 s49, s2, 3')
    e('s_lshr_b32 s50, s48, 2')
    e('s_mul_i32 s3, s49, 57'); e('s_lshr_b32 s3, s3, 9')
    e('s_mul_i32 s26, s3, 9'); e('s_sub_u32 s52, s49, s26')
    e('s_and_b32 s51, s48, 3'); e('s_mul_i32 s51, s51, 3'); e('s_add_u32 s51, s51, s3')
    e('v_and_b32 v2, 63, v0'); e('v_and_b32 v3, 15, v0'); e('v_lshrrev_b32 v4, 4, v2')
    e('v_lshrrev_b32 v5, 2, v3'); e('v_and_b32 v6, 3, v3')
    ACC = 0
    NST = 4
    BF = 96
    AF = 192
    AA = 224
    VO, VWO, L16 = 228, 229, 230
    RING = 4096 * NST
    e(f'v_lshlrev_b32 v{L16}, 4, v2')
    e(f'v_lshl_add_u32 v{VO}, v1, 15, v{L16}')
    e('v_lshrrev_b32 v7, 3, v2'); e('v_lshl_add_u32 v7, v1, 10, v7'); e('v_mul_u32_u24 v7, 1152, v7')
    e('v_and_b32 v8, 7, v2'); e('v_lshlrev_b32 v9, 1, v4'); e('v_xor_b32 v8, v8, v9')
    e(f'v_lshl_add_u32 v{VWO}, v8, 4, v7')
    e('v_lshl_add_u32 v7, v4, 2, v5'); e('v_lshrrev_b32 v8, 1, v7'); e('v_and_b32 v8, 3, v8')
    e('v_and_b32 v9, 2, v1'); e('v_xor_b32 v8, v8, v9'); e('v_lshlrev_b32 v8, 5, v8')
    e('v_lshl_or_b32 v8, v6, 3, v8'); e('v_lshl_add_u32 v8, v7, 7, v8')
    e(f'v_mul_u32_u24 v9, {RING}, v1'); e(f'v_add_u32 v{AA}, v8, v9')
    for k in range(1, 4): e(f'v_xor_b32 v{AA+k}, {k<<5}, v{AA}')
    e(f's_mul_i32 s5, s4, {RING}')
    e('v_mul_u32_u24 v7, 2304, v3'); e('v_lshl_add_u32 v7, v4, 4, v7')
    e('s_and_b32 s3, s4, 1'); e('s_mul_i32 s3, s3, 110592'); e('s_lshr_b32 s26, s4, 1'); e('s_lshl_b32 s26, s26, 6'); e('s_add_u32 s3, s3, s26')
    e('v_add_u32 v231, s3, v7')
    e('s_and_b32 s3, s4, 1'); e('s_mul_i32 s3, s3, 393216')
    for r in range(3): e(f's_add_u32 s{40+r}, s3, {r*131072}')
    e('s_sub_u32 s3, 393216, s3')
    for r in range(3): e(f's_add_u32 s{43+r}, s3, {r*131072}')
    e('s_waitcnt lgkmcnt(0)')
    e('s_cmp_eq_u32 s50, 0'); e('s_cselect_b64 s[8:9], s[8:9], s[10:11]')
    e('s_lshl_b32 s3, s52, 7'); e('s_add_u32 s8, s8, s3'); e('s_addc_u32 s9, s9, 0')
    srd(P, SWO, 8, 9, 4095 * 1152 + 128)
    e('s_mul_i32 s3, s50, 72'); e('s_mul_i32 s26, s51, 6'); e('s_add_u32 s3, s3, s26'); e('s_lshl_b32 s3, s3, 17')
    e('s_add_u32 s14, s14, s3'); e('s_addc_u32 s15, s15, 0'); srd(P, SO2, 14, 15, 6 * 131072)
    e('s_mul_i32 s3, s51, 221184'); e('s_mul_i32 s26, s50, 1152'); e('s_add_u32 s3, s3, s26')
    e('s_lshl_b32 s26, s52, 7'); e('s_add_u32 s3, s3, s26')
    e('s_add_u32 s12, s12, s3'); e('s_addc_u32 s13, s13, 0'); srd(P, SOUT, 12, 13, 95 * 2304 + 128)
    def load(s):
        st = s % NST
        for i in range(4):
            e(f's_add_u32 m0, s5, {st*4096 + i*1024}')
            e(f's_mov_b32 s26, {(32*s + 8*i) * 1152}')
            P.vmem(f'buffer_load_dwordx4 v{VWO}, s[{SWO}:{SWO+3}], s26 offen {OPT["wo_pol"]} lds', ('L', s))
        for r in range(6):
            P.vmem(f'buffer_load_dwordx4 {vr(BF+st*24+4*r,4)}, v{VO}, s[{SO2}:{SO2+3}], s{40+r} offen offset:{(s%4)*1024} {OPT["o_ld"]}', ('L', s))
        if s % 4 == 3: e(f'v_add_u32 v{VO}, 4096, v{VO}')
    def rdA(s):
        st = s % NST
        for k in range(4):
            b = AF + (s % 2) * 16 + 4 * k
            P.ds(f'ds_read_b64_tr_b16 {vr(b,2)}, v{AA+k} offset:{st*4096}', ('A', s, k))
            P.ds(f'ds_read_b64_tr_b16 {vr(b+2,2)}, v{AA+k} offset:{st*4096+2048}', ('A', s, k))
    for s in range(NST): load(s)
    P.wait(vm=('L', 0)); rdA(0)
    stamp(P, 1)
    for s in range(32):
        st = s % NST
        for k in range(4):
            P.wait(lg=('A', s, k))
            for r in range(6): mfma(P, ACC + (r*4 + k)*4, AF + (s % 2)*16 + 4*k, BF + st*24 + 4*r, s == 0)
            if k == 0 and s + 1 < 32:
                P.wait(vm=('L', s + 1)); rdA(s + 1)
        if s + NST < 32: load(s + NST)
    stamp(P, 2)
    e('s_barrier')
    for q in range(1, 4):
        e(f's_xor_b32 s3, s4, {q}'); e('s_mul_i32 s3, s3, 18432'); e(f's_add_u32 s3, s3, {(q-1)*6144}')
        e(f'v_add_u32 v{AA+q}, s3, v{L16}')
        a, bq = q & 1, q >> 1
        for r in range(3):
            for k in range(2):
                P.ds(f'ds_write_b128 v{AA+q}, {vr(ACC + ((3*a+r)*4 + 2*bq + k)*4, 4)} offset:{(r*2+k)*1024}', 'w')
        P.wait(lg='all') if q == 2 else None
    e('s_mul_i32 s3, s4, 18432'); e(f'v_add_u32 v{AA}, s3, v{L16}')
    P.wait(lg='all'); e('s_barrier')
    RB = 96
    for q in range(3):
        for t in range(6):
            P.ds(f'ds_read_b128 {vr(RB + (q*6+t)*4, 4)}, v{AA} offset:{q*6144 + t*1024}', ('r', q, t))
            if len(P.lg) >= 12: P.wait(lg=P.lg[5])
    P.wait(lg='all')
    for r in range(3):
        for k in range(2):
            d = ACC + (r*4 + k)*4
            for q in range(3):
                for i in range(4): e(f'v_add_f32 v{d+i}, v{d+i}, v{RB + (q*6 + r*2 + k)*4 + i}')
        X, Y, D = ACC + (r*4)*4, ACC + (r*4+1)*4, AF + 4*r
        e(f'v_cvt_pk_bf16_f32 v{D}, v{X}, v{X+1}'); e(f'v_cvt_pk_bf16_f32 v{D+1}, v{X+2}, v{X+3}')
        e(f'v_cvt_pk_bf16_f32 v{D+2}, v{Y}, v{Y+1}'); e(f'v_cvt_pk_bf16_f32 v{D+3}, v{Y+2}, v{Y+3}')
        e(f'v_permlane32_swap_b32 v{D}, v{D+2}'); e(f'v_permlane32_swap_b32 v{D+1}, v{D+3}')
        e(f'v_permlane16_swap_b32 v{D}, v{D+2}'); e(f'v_permlane16_swap_b32 v{D+1}, v{D+3}')
        e(f's_mov_b32 s26, {r*16*2304}')
        P.vmem(f'buffer_store_dwordx4 {vr(D,4)}, v231, s[{SOUT}:{SOUT+3}], s26 offen {OPT["out_st"]}', 'st')
    if OPT['ts']:
        P.wait(vm='all')
        stamp(P, 3)
        e('s_load_dwordx2 s[24:25], s[0:1], 96'); e('s_waitcnt lgkmcnt(0)')
        e('s_add_u32 s24, s24, 0x4100000'); e('s_addc_u32 s25, s25, 0')
        e('s_lshl_b32 s3, s2, 8'); e('s_lshl_b32 s26, s4, 6'); e('s_add_u32 s3, s3, s26')
        e('v_mov_b32 v0, s3')
        for k in range(4):
            e(f'v_mov_b32 v2, s{60+2*k}'); e(f'v_mov_b32 v3, s{61+2*k}')
            e(f'global_store_dwordx2 v0, v[2:3], s[24:25] offset:{8*k}')
            e('s_waitcnt vmcnt(0)')
    P.lab('.Lk2_end')
    e('s_endpgm')
    return P

HDR = open('cdna_kernels/' + NAME + '.s.ref').read().split('; Override launch')[0]

def kd(name, vg, sg):
    return f""".p2align 6
.amdhsa_kernel {name}
  .amdhsa_next_free_vgpr {vg}
  .amdhsa_next_free_sgpr {sg}
  .amdhsa_accum_offset {(vg+3)//4*4}
  .amdhsa_group_segment_fixed_size 0
  .amdhsa_kernarg_size 104
  .amdhsa_user_sgpr_count 2
  .amdhsa_user_sgpr_kernarg_segment_ptr 1
  .amdhsa_system_sgpr_workgroup_id_x 1
.end_amdhsa_kernel
"""

def build():
    k1, k2 = gen_k1(), gen_k2()
    out = HDR
    out += f'; @launch kernel=attn_kernel grid=(512,1,1) block=(256,1,1) lds={K1_LDS}\n'
    out += f'; @launch kernel=oproj_kernel grid=(216,1,1) block=(256,1,1) lds={K2_LDS}\n'
    out += '.amdgcn_target "amdgcn-amd-amdhsa--gfx950"\n.text\n'
    for nm, P in (('attn_kernel', k1), ('oproj_kernel', k2)):
        P.pad_hazards(); P.check_loads()
        sys.stderr.write(f'{nm}: {dict(P.count(0))}\n')
        out += f'.globl {nm}\n.p2align 8\n.type {nm},@function\n{nm}:\n' + '\n'.join(P.emit()) + '\n'
    out += '.section .rodata,"a"\n' + kd('attn_kernel', 256, 80) + kd('oproj_kernel', 256, 80)
    return out

if __name__ == '__main__':
    dst = 'cdna_kernels/' + NAME + '.s'
    for a in sys.argv[1:]:
        if '=' in a:
            k, v = a.split('=', 1)
            if k == 'out': dst = v
            else: OPT[k] = (v == '1') if isinstance(OPT[k], bool) else v.replace('+', ' ')
    open(dst, 'w').write(build())
```

```python
import re

def regs_of(tok):
    tok = tok.strip()
    tok = tok.lstrip('-')
    m = re.fullmatch(r'abs\((.*)\)', tok)
    if m: tok = m.group(1)
    m = re.fullmatch(r'([vas])(\d+)', tok)
    if m: return [(m.group(1), int(m.group(2)))]
    m = re.fullmatch(r'([vas])\[(\d+):(\d+)\]', tok)
    if m: return [(m.group(1), i) for i in range(int(m.group(2)), int(m.group(3)) + 1)]
    if tok == 'm0': return [('m', 0)]
    if tok in ('vcc', 'vcc_lo', 'vcc_hi'): return [('c', 0)]
    if tok == 'exec': return [('x', 0)]
    return []

TRANS = ('v_exp_f32', 'v_log_f32', 'v_rcp_f32', 'v_rsq_f32', 'v_sqrt_f32')

class Ins:
    def __init__(self, text):
        self.text = text
        self.nops = 0
        t = text.split(';')[0].strip()
        parts = t.split(None, 1)
        self.op = parts[0]
        rest = parts[1] if len(parts) > 1 else ''
        ops, depth, cur = [], 0, ''
        for ch in rest:
            if ch in '[(': depth += 1
            if ch in '])': depth -= 1
            if ch == ',' and depth == 0:
                ops.append(cur.strip()); cur = ''
            else: cur += ch
        if cur.strip(): ops.append(cur.strip())
        self.mods = ''
        if ops:
            last = ops[-1].split(None, 1)
            ops[-1] = last[0]
            self.mods = last[1] if len(last) > 1 else ''
        self.ops = ops
        op = self.op
        self.kind = 'other'
        self.dst, self.src = [], []
        self.srcC = []
        self.srcAB = []
        R = regs_of
        if op.startswith('v_mfma'):
            self.kind = 'mfma'
            self.dst = R(ops[0]); self.srcAB = R(ops[1]) + R(ops[2]); self.srcC = R(ops[3])
            self.src = self.srcAB + self.srcC
        elif op.startswith('v_permlane'):
            self.kind = 'valu'; self.dst = R(ops[0]) + R(ops[1]); self.src = list(self.dst)
        elif op.startswith('v_readfirstlane') or op.startswith('v_readlane'):
            self.kind = 'valu'; self.dst = R(ops[0]); self.src = sum((R(o) for o in ops[1:]), [])
        elif op.startswith('v_writelane'):
            self.kind = 'valu'; self.dst = R(ops[0]); self.src = sum((R(o) for o in ops), [])
        elif op.startswith('v_cmp'):
            self.kind = 'valu'; self.dst = R(ops[0]); self.src = sum((R(o) for o in ops[1:]), [])
        elif op.startswith('v_'):
            self.kind = 'valu'; self.dst = R(ops[0]); self.src = sum((R(o) for o in ops[1:]), [])
            if op.startswith('v_fmac') or op.startswith('v_pk_fmac'): self.src += self.dst
        elif op.startswith('ds_read'):
            self.kind = 'dsr'; self.dst = R(ops[0]); self.src = R(ops[1])
        elif op.startswith('ds_write') or op.startswith('ds_add') or op.startswith('ds_max'):
            self.kind = 'dsw'; self.src = sum((R(o) for o in ops), [])
        elif op.startswith('buffer_load') or op.startswith('global_load'):
            if re.search(r'\blds\b', self.mods):
                self.kind = 'dma'; self.src = sum((R(o) for o in ops), []) + [('m', 0)]
            else:
                self.kind = 'vload'; self.dst = R(ops[0]); self.src = sum((R(o) for o in ops[1:]), [])
        elif op.startswith('buffer_store'):
            self.kind = 'vstore'; self.src = sum((R(o) for o in ops), []); self.data = R(ops[0])
        elif op.startswith('global_store'):
            self.kind = 'vstore'; self.src = sum((R(o) for o in ops), []); self.data = R(ops[1])
        elif op.startswith('global_atomic') or op.startswith('buffer_atomic'):
            self.kind = 'vatomic'
            if 'sc0' in self.mods and op.startswith('global_atomic'):
                self.dst = R(ops[0]); self.src = sum((R(o) for o in ops[1:]), [])
            else:
                self.src = sum((R(o) for o in ops), [])
        elif op in ('buffer_wbl2', 'buffer_inv'):
            self.kind = 'vcache'
        elif op.startswith('s_atomic'):
            self.kind = 'smem'; self.src = sum((R(o) for o in ops), [])
        elif op.startswith('s_load') or op.startswith('s_memtime') or op.startswith('s_memrealtime'):
            self.kind = 'smem'; self.dst = R(ops[0]); self.src = sum((R(o) for o in ops[1:]), [])
        elif op == 's_waitcnt':
            self.kind = 'wait'
            self.vm = self.lgkm = None
            m = re.search(r'vmcnt\((\d+)\)', t);  self.vm = int(m.group(1)) if m else None
            m = re.search(r'lgkmcnt\((\d+)\)', t); self.lgkm = int(m.group(1)) if m else None
        elif op == 's_nop':
            self.kind = 'nop'; self.n = int(ops[0], 0) + 1
        elif op.startswith('s_cmp') or op.startswith('s_bitcmp'):
            self.kind = 'salu'; self.src = sum((R(o) for o in ops), [])
        elif op.startswith('s_cbranch') or op in ('s_branch', 's_barrier', 's_endpgm', 's_setprio', 's_sleep'):
            self.kind = 'ctl'
        elif op.startswith('s_'):
            self.kind = 'salu'; self.dst = R(ops[0]); self.src = sum((R(o) for o in ops[1:]), [])
        self.trans = op in TRANS or op.replace('_e32', '').replace('_e64', '') in TRANS
        self.optional = False
    def states(self):
        return self.n if self.kind == 'nop' else 1

class Label:
    def __init__(self, name): self.name = name

class Variant:
    def __init__(self, pred, pre, A, jmp, labB, B, labE):
        self.pred, self.pre, self.A, self.jmp, self.labB, self.B, self.labE = pred, pre, A, jmp, labB, B, labE
        self.ool = False

class Loop:
    def __init__(self, n, lab, body, tail):
        self.n, self.lab, self.body, self.tail = n, lab, body, tail

class Prog:
    def __init__(self, name, wave_sreg):
        self.name = name
        self.items = []
        self.cur = self.items
        self.lg = []
        self.vm = []
        self.nlab = 0
        self.wreg = wave_sreg
    def e(self, text):
        i = Ins(text); self.cur.append(i); return i
    def lab(self, name): self.cur.append(Label(name))
    def newlab(self, base):
        self.nlab += 1; return f".L{self.name}_{base}_{self.nlab}"
    def ds(self, text, tag=None):
        assert len(self.lg) < 15 or True
        i = self.e(text); self.lg.append(tag);
        assert len(self.lg) <= 15, f"lgkm overflow at {text}"
        return i
    def vmem(self, text, tag=None, optional=False):
        i = self.e(text); i.optional = optional; self.vm.append((tag, optional))
        assert len(self.vm) <= 63, "vmcnt overflow"
        return i
    def _lg_n(self, tag):
        if tag == 'all': n = 0
        else:
            idx = [k for k, t in enumerate(self.lg) if t == tag]
            if not idx: return None
            n = len(self.lg) - 1 - idx[-1]
        if n >= len(self.lg): return None
        self.lg = self.lg[len(self.lg) - n:] if n else []
        return n
    def _vm_n(self, tag):
        if tag == 'all': keep = []
        else:
            idx = [k for k, t in enumerate(self.vm) if t[0] == tag]
            if not idx: return None
            keep = self.vm[idx[-1] + 1:]
        if len(keep) == len(self.vm): return None
        n = sum(1 for t in keep if not t[1])
        self.vm = keep
        return n
    def wait(self, lg=None, vm=None):
        a = self._lg_n(lg) if lg is not None else None
        b = self._vm_n(vm) if vm is not None else None
        if a is None and b is None: return
        s = 's_waitcnt'
        if b is not None: s += f' vmcnt({b})'
        if a is not None: s += f' lgkmcnt({a})'
        self.e(s)
    def variant(self, sel, fn, pred=None, cmp=None):
        labB, labE = self.newlab('b'), self.newlab('e')
        outer = self.cur
        if pred is None: pred = lambda w, it: (w & 3) == sel
        pre = [Ins(cmp or f's_cmp_eq_u32 {self.wreg}, {sel}'), Ins(f's_cbranch_scc0 {labB}')]
        st = (list(self.lg), list(self.vm))
        A = []; self.cur = A; fn(True)
        sa = (list(self.lg), list(self.vm))
        self.lg, self.vm = list(st[0]), list(st[1])
        B = []; self.cur = B; fn(False)
        assert sa[0] == self.lg, "variant lg mismatch"
        ma = [t for t in sa[1] if not t[1]]; mb = [t for t in self.vm if not t[1]]
        assert ma == mb, f"variant vm mismatch {ma} {mb}"
        if len(sa[1]) > len(self.vm): self.vm = sa[1]
        self.cur = outer
        outer.append(Variant(pred, pre, A, Ins(f's_branch {labE}'), labB, B, labE))
    def only(self, sel, fn, pred=None, cmp=None):
        labB = self.newlab('s')
        outer = self.cur
        if pred is None: pred = lambda w, it: (w & 3) == sel
        pre = [Ins(cmp or f's_cmp_eq_u32 {self.wreg}, {sel}'), Ins(f's_cbranch_scc0 {labB}')]
        A = []; self.cur = A; fn(); self.cur = outer
        outer.append(Variant(pred, pre, A, None, labB, [], None))
    def ool(self, pre, br, fn_rare, pred, fn_common=None):
        labB, labE = self.newlab('o'), self.newlab('k')
        outer = self.cur
        st = (list(self.lg), list(self.vm))
        A = []; self.cur = A; fn_rare()
        sa = (list(self.lg), list(self.vm))
        self.lg, self.vm = list(st[0]), list(st[1])
        B = []; self.cur = B
        if fn_common: fn_common()
        if fn_common:
            assert sa[0] == self.lg, f"ool lg mismatch {sa[0]} {self.lg}"
            assert [t for t in sa[1] if not t[1]] == [t for t in self.vm if not t[1]], "ool vm mismatch"
        if len(sa[1]) > len(self.vm): self.vm = sa[1]
        self.cur = outer
        v = Variant(pred, [Ins(x) for x in pre] + [Ins(f'{br} {labB}')], A, Ins(f's_branch {labE}'), labB, B, labE)
        v.ool = True
        outer.append(v)
    def rare(self, pre, br, fn):
        labB = self.newlab('r')
        outer = self.cur
        A = []; self.cur = A; fn(); self.cur = outer
        outer.append(Variant(lambda w, it: False, [Ins(x) for x in pre] + [Ins(f'{br} {labB}')], A, None, labB, [], None))
    def loop(self, n, creg, body, rename):
        self.e(f's_mov_b32 {creg}, 0')
        lab = self.newlab('loop')
        outer = self.cur
        ent = (list(self.lg), list(self.vm))
        B = []; self.cur = B; body(); self.cur = outer
        lg2 = [rename(t) for t in self.lg]; vm2 = [(rename(t), o) for t, o in self.vm]
        assert lg2 == ent[0], f"loop lg mismatch {lg2} vs {ent[0]}"
        assert [t for t in vm2 if not t[1]] == [t for t in ent[1] if not t[1]], f"loop vm mismatch {vm2} vs {ent[1]}"
        tail = [Ins(f's_add_u32 {creg}, {creg}, 1'), Ins(f's_cmp_lt_u32 {creg}, {n}'), Ins(f's_cbranch_scc1 {lab}')]
        outer.append(Loop(n, lab, B, tail))
    def trace(self, w, items=None, it=0):
        out = []
        for x in (self.items if items is None else items):
            if isinstance(x, Ins): out.append(x)
            elif isinstance(x, Variant):
                out += x.pre
                if x.pred(w, it):
                    out += self.trace(w, x.A, it)
                    if x.jmp: out.append(x.jmp)
                else: out += self.trace(w, x.B, it)
            elif isinstance(x, Loop):
                for k in range(x.n): out += self.trace(w, x.body, k) + x.tail
        return out
    def pad_hazards(self, nwaves=32):
        changed = True
        while changed:
            changed = False
            for w in range(nwaves):
                tr = self.trace(w)
                for k, c in enumerate(tr):
                    need = self._need(tr, k)
                    if need > 0:
                        c.nops += need; changed = True
    def _need(self, tr, k):
        c = tr[k]
        if c.kind in ('wait', 'nop', 'ctl'): return 0
        cs, cd = set(c.src), set(c.dst)
        dist = c.nops
        worst = 0
        j = k - 1
        while j >= 0 and dist < 12:
            p = tr[j]
            pd, req = set(p.dst), 0
            if p.kind == 'valu':
                v = {r for r in pd if r[0] in 'va'}
                s = {r for r in pd if r[0] in 'sc'}
                if c.kind == 'mfma' and v & cs: req = max(req, 2)
                if c.op.startswith('v_permlane') and v & cs: req = max(req, 2)
                if (c.op.startswith('v_readfirstlane') or c.op.startswith('v_readlane')) and v & cs: req = max(req, 1)
                if p.trans and c.kind in ('valu',) and not c.trans and v & cs: req = max(req, 1)
                if p.trans and c.kind in ('dsw', 'vstore', 'mfma') and v & cs: req = max(req, 2)
                if s & cs:
                    if c.kind in ('dma', 'vload', 'vstore', 'vatomic'): req = max(req, 5)
                    elif c.kind == 'valu': req = max(req, 2)
                    else: req = max(req, 4)
                if 'dpp' in c.mods or 'row_' in c.mods or 'quad_perm' in c.mods:
                    if v & cs: req = max(req, 2)
            if p.kind == 'mfma':
                big = '32x32' in p.op
                if c.kind == 'mfma':
                    if pd & set(c.srcAB): req = max(req, 12 if big else 8)
                    if pd & set(c.srcC) and not (p.dst == c.srcC and p.op == c.op): req = max(req, 10 if big else 6)
                    if pd & cd and not (pd & set(c.srcC)): req = max(req, 12 if big else 8)
                elif c.kind in ('valu', 'dsr', 'dsw', 'vload', 'vstore', 'dma', 'vatomic'):
                    if pd & (cs | cd): req = max(req, 12 if big else 8)
                if c.kind == 'valu' and set(p.srcC) & cd: req = max(req, 7 if big else 3)
            if p.kind == 'salu' and ('m', 0) in pd and c.kind == 'dma': req = max(req, 1)
            if p.kind == 'vstore' and len(p.data) >= 3 and set(p.data) & cd:
                req = max(req, 2 if c.kind == 'valu' else 1)
            if p.kind == 'dsw' and c.kind == 'valu' and set(p.src) & cd and len(p.src) > 3:
                req = max(req, 1)
            worst = max(worst, req - dist)
            dist += p.states() + p.nops
            j -= 1
        return worst
    def check_loads(self, nwaves=32):
        for w in range(nwaves):
            lg, vm = [], []
            for c in self.trace(w):
                if c.kind == 'wait':
                    if c.lgkm is not None:
                        if any(o.kind == 'smem' for o in lg):
                            assert c.lgkm == 0, "smem outstanding needs lgkmcnt(0)"
                        lg = lg[len(lg) - c.lgkm:] if c.lgkm and c.lgkm < len(lg) else ([] if c.lgkm == 0 else lg)
                    if c.vm is not None:
                        vm = vm[len(vm) - c.vm:] if c.vm and c.vm < len(vm) else ([] if c.vm == 0 else vm)
                    continue
                touch = set(c.src) | set(c.dst)
                for o in lg + vm:
                    if set(o.dst) & touch and not (c.kind == 'vload' and o.kind == 'vload' and set(o.dst) == set(c.dst) and not (set(o.dst) & set(c.src))):
                        raise AssertionError(f"wave {w}: '{c.text}' touches pending result of '{o.text}'")
                if c.kind in ('dsr', 'dsw', 'smem'): lg.append(c)
                if c.kind in ('dma', 'vload', 'vstore', 'vatomic', 'vcache'): vm.append(c)
                assert len([o for o in lg if o.kind != 'smem']) <= 15 and len(vm) <= 63
    def emit(self, items=None):
        out = []
        if items is None: self.tail = []
        def put(i):
            n = i.nops
            while n > 0:
                k = min(n, 16); out.append(f'  s_nop {k-1}'); n -= k
            out.append('  ' + i.text)
        for it in (self.items if items is None else items):
            if isinstance(it, Ins): put(it)
            elif isinstance(it, Label): out.append(it.name + ':')
            elif isinstance(it, Loop):
                out.append(it.lab + ':')
                out += self.emit(it.body)
                for i in it.tail: put(i)
            elif it.ool:
                for i in it.pre: put(i)
                out += self.emit(it.B)
                out.append(it.labE + ':')
                blk = [it.labB + ':'] + self.emit(it.A) + ['  s_nop 0'] * (1 if it.jmp.nops else 0) + ['  ' + it.jmp.text]
                self.tail += blk
            else:
                for i in it.pre: put(i)
                out += self.emit(it.A)
                if it.jmp: put(it.jmp)
                out.append(it.labB + ':')
                out += self.emit(it.B)
                if it.labE: out.append(it.labE + ':')
        if items is None: out += self.tail
        return out
    def count(self, w=0):
        from collections import Counter
        return Counter(i.kind for i in self.trace(w))

def vr(a, n=1):
    return f'v{a}' if n == 1 else f'v[{a}:{a+n-1}]'
def sr(a, n=1):
    return f's{a}' if n == 1 else f's[{a}:{a+n-1}]'
```

```python
import sys, struct, math, re
from dsl import *

NAME = 'concat_heads__mha_block_cached__gqa_block_cached__near_ridge'
def fbits(x): return struct.unpack('<I', struct.pack('<f', x))[0]
CSC = math.log2(math.e) / math.sqrt(128.0)
BIG = 0x20000000

OPT = dict(kv_pol='nt', x_pol='', w_pol='', o_st='sc1', o_ld='sc1', wo_pol='', out_st='', ts=False, ts2=False, clk=False,
           qrot=True, k2a=1, k2b=0, cpf=True, abl='', abl2='', t0=24, lak=4, w2=True, cyc=False, krot=0, slp=1, nw=8, nw0=2, pa=27, dyn=True, nf=True, rtc=1, abl3='', wpf=True, spread=True, dla=4, ela=4, la=4, kvq='5,8,11,14', st='', sti=1, hprio=0, post4=3)

def mfma(P, d, a, b, first=False):
    c = '0' if first else vr(d, 4)
    P.e(f'v_mfma_f32_16x16x32_bf16 {vr(d,4)}, {vr(a,4)}, {vr(b,4)}, {c}')

def mfma32(P, d, a, b, first=False):
    c = '0' if first else vr(d, 16)
    P.e(f'v_mfma_f32_32x32x16_bf16 {vr(d,16)}, {vr(a,4)}, {vr(b,4)}, {c}')

def femit(P, dst, x, t1, t2):
    P.e(f'v_lshrrev_b32 v{t1}, 3, v{x}')
    P.e(f'v_lshrrev_b32 v{t2}, 2, v{x}')
    P.e(f'v_xor_b32 v{t2}, v{t2}, v{t1}')
    P.e(f'v_and_b32 v{t2}, 1, v{t2}')
    P.e(f'v_lshl_or_b32 v{t1}, v{t2}, 1, v{t1}')
    P.e(f'v_and_b32 v{dst}, 3, v{x}')
    P.e(f'v_lshl_or_b32 v{dst}, v{dst}, 2, v{t1}')

def srd(P, d, lo, hi, size):
    P.e(f's_mov_b32 s{d}, s{lo}')
    P.e(f's_and_b32 s{d+1}, s{hi}, 0xffff')
    P.e(f's_mov_b32 s{d+2}, {size}')
    P.e(f's_mov_b32 s{d+3}, 0x20000')

def stamp(P, idx, cond=True):
    if OPT['ts'] and cond:
        P.e(f's_memrealtime s[{60+2*idx}:{61+2*idx}]')
        if OPT['clk'] and idx in (3, 4): P.e(f's_memtime s[{70+2*idx}:{71+2*idx}]')
        P.e('s_waitcnt lgkmcnt(0)')
def stamp_it(P, idx, itv):
    if OPT['ts'] and OPT['ts2']:
        def f():
            P.e(f'{"s_memtime" if OPT["cyc"] else "s_memrealtime"} s[{60+2*idx}:{61+2*idx}]')
            if not OPT['cyc']: P.e('s_waitcnt lgkmcnt(0)')
        P.ool([f's_cmp_eq_u32 s27, {itv}'], 's_cbranch_scc1', f, lambda w, it: it == itv)
def stamps_out(P, off, wreg, wg_shift):
    e = P.e
    P.wait(vm='all')
    stamp(P, 7)
    if OPT['clk']:
        e('s_sub_u32 s72, s78, s76'); e('s_mov_b32 s73, 0')
    if False:
        e('s_sub_u32 s70, s12, s10'); e('s_mov_b32 s71, 0')
        if P.name == 'k1':
            e('s_sub_u32 s72, s16, s14'); e('s_mov_b32 s73, 0')
    e('s_load_dwordx2 s[24:25], s[0:1], 96'); e('s_waitcnt lgkmcnt(0)')
    e(f's_add_u32 s24, s24, {off}'); e('s_addc_u32 s25, s25, 0')
    e(f's_lshl_b32 s3, s2, {wg_shift}'); e(f's_lshl_b32 s26, {wreg}, 6'); e('s_add_u32 s3, s3, s26')
    e('v_mov_b32 v0, s3')
    for k in range(8):
        e(f'v_mov_b32 v2, s{60+2*k}'); e(f'v_mov_b32 v3, s{61+2*k}')
        e(f'global_store_dwordx2 v0, v[2:3], s[24:25] offset:{8*k}')
        e('s_waitcnt vmcnt(0)')

def code_prefetch(P, start, end, dst):
    e = P.e
    e('s_getpc_b64 s[56:57]')
    P.lab(f'.Lpc_{P.name}')
    e(f's_sub_u32 s56, s56, .Lpc_{P.name}-{start}'); e('s_subb_u32 s57, s57, 0')
    e('v_lshlrev_b32 v12, 7, v0')
    e(f's_mov_b32 s3, {end}-{start}-4')
    e(f'v_min_u32 v13, s3, v12')
    P.vmem(f'global_load_dword v{dst}, v13, s[56:57]', 'pf')

STG, XB = 25600, 9216
QB0, NQ = 0, 5
XCH = 131072
FLG = 161792
K1_LDS = 163840
SX, SW, SK, SV, SO = 28, 32, 36, 40, 44
FW, FRL, FRC, FT, FV, LANE = 186, 187, 188, 189, 190, 191

class Flags:
    def __init__(s, P): s.P = P
    def post(s, val, off=0):
        s.P.e(f'v_mov_b32 v{FV}, {val}')
        s.P.ds(f'ds_write_b32 v{FW}, v{FV} offset:{off}', 'fw')
    def read(s, ad): s.P.ds(f'ds_read_b32 v{FT}, v{ad}', 'fr')
    def check(s, ad, val):
        P = s.P
        P.wait(lg='fr')
        def spin():
            sp = P.newlab('sp'); P.lab(sp)
            if OPT['slp']: P.e(f's_sleep {OPT["slp"]}')
            P.e(f'ds_read_b32 v{FT}, v{ad}'); P.e('s_waitcnt lgkmcnt(0)')
            P.e(f'v_cmp_gt_u32 vcc, {val}, v{FT}'); P.e('s_nop 0'); P.e(f's_cbranch_vccnz {sp}')
        P.ool([f'v_cmp_gt_u32 vcc, {val}, v{FT}'], 's_cbranch_vccnz', spin, lambda w, it: False)
    def need(s, ad, val): s.read(ad); s.check(ad, val)

KNAME = NAME + '_kernel'
FLAGOFF = 0x2000000
NONCE = FLG + 1024

def gen_k1():
    P = Prog('k1', 's4'); e = P.e
    F = Flags(P)
    e('s_cmp_ge_u32 s2, 256'); e('s_cbranch_scc1 .Lk1_end')
    e('s_load_dwordx8 s[8:15], s[0:1], 0')
    e('s_load_dwordx8 s[16:23], s[0:1], 40')
    e('s_load_dwordx2 s[24:25], s[0:1], 96')
    e('s_load_dwordx2 s[82:83], s[0:1], 88')
    if OPT['ts']:
        e('s_memrealtime s[60:61]')
        for k in range(62, 76): e(f's_mov_b32 s{k}, 0')
    if OPT['cpf']: code_prefetch(P, KNAME, '.Lcode_end', 87)
    e('v_lshrrev_b32 v14, 6, v0')
    e('v_readfirstlane_b32 s87, v14')
    e(f'v_and_b32 v{LANE}, 63, v0')
    e('s_and_b32 s4, s87, 3'); e('s_lshr_b32 s81, s87, 2')
    e('s_and_b32 s48, s2, 7'); e('s_lshr_b32 s49, s2, 3')
    e('s_lshr_b32 s50, s48, 2')
    e('s_and_b32 s51, s48, 3'); e('s_lshl_b32 s51, s51, 3')
    e('s_and_b32 s55, s49, 3'); e('s_lshl_b32 s55, s55, 1'); e('s_add_u32 s51, s51, s55')
    e('s_lshr_b32 s52, s49, 2')
    e(f's_mov_b32 s7, {fbits(CSC):#x}')
    e(f'v_and_b32 v2, 31, v0'); e('v_lshlrev_b32 v2, 2, v2'); e('v_lshl_add_u32 v2, v14, 7, v2'); e(f'v_add_u32 v{FW}, {FLG}, v2')
    e('v_and_b32 v2, 3, v0'); e('v_lshlrev_b32 v2, 7, v2'); e(f'v_add_u32 v{FRL}, {FLG + 1536}, v2')
    e('v_and_b32 v2, 7, v0'); e('v_lshlrev_b32 v2, 7, v2'); e(f'v_add_u32 v{FRC}, {FLG}, v2')
    e(f'v_mov_b32 v{FV}, 0')
    e(f'ds_write_b32 v{FW}, v{FV}'); e(f'ds_write_b32 v{FW}, v{FV} offset:1024')
    def role(m):
        (gen_main if m else gen_helper)(P, F)
        P.lg = []; P.vm = []
    P.variant(None, role, pred=lambda w, it: (w & 4) == 0, cmp='s_cmp_eq_u32 s81, 0')
    if OPT['ts']:
        e('s_waitcnt vmcnt(0) lgkmcnt(0)')
        stamps_out(P, 0x4000000, 's87', 9)
    P.lab('.Lk1_end')
    e('s_endpgm')
    return P

def o_srd(P):
    e = P.e
    e('s_mul_i32 s3, s50, 72'); e('s_mul_i32 s26, s52, 9'); e('s_add_u32 s3, s3, s26'); e('s_lshl_b32 s3, s3, 7')
    e('s_lshl_b32 s26, s51, 2'); e('s_add_u32 s3, s3, s26'); e('s_lshl_b32 s3, s3, 10')
    e('s_add_u32 s24, s24, s3'); e('s_addc_u32 s25, s25, 0'); srd(P, SO, 24, 25, (8 * 128 + 8) * 1024)

def qrot(P):
    e = P.e
    if OPT['qrot']:
        e('s_add_u32 s53, s55, s52'); e('s_and_b32 s53, s53, 7'); e('s_mul_i32 s53, s53, 9'); e('s_lshr_b32 s53, s53, 2')
    else: e('s_mov_b32 s53, 0')

def latest(P, tags):
    need = [t for t in tags if t in P.lg]
    if need: P.wait(lg=max(need, key=lambda t: len(P.lg) - 1 - P.lg[::-1].index(t)))

def ablate(items, ab):
    out = []
    for x in items:
        if isinstance(x, Ins):
            if 'mfma' in ab and x.kind == 'mfma': continue
            if 'valu' in ab and x.op in ('v_exp_f32', 'v_add_f32', 'v_cvt_pk_bf16_f32', 'v_max3_f32'): continue
            if 'exp' in ab and x.op in ('v_exp_f32', 'v_add_f32', 'v_cvt_pk_bf16_f32'): continue
            if 'pv' in ab and x.kind == 'mfma' and re.match(r'v\[(0|16|32|48):', x.ops[0]): continue
            if 'tr' in ab and 'tr_b16' in x.op: continue
            if 'ds' in ab and x.kind == 'dsr' and f'v{FT},' not in x.text: continue
            if 'dma' in ab and x.kind == 'dma' and ' nt ' in x.text: continue
            if 'st' in ab and x.kind == 'vstore' and 's[44:47]' in x.text: continue
            if 'qdma' in ab and x.kind == 'dma' and ' nt ' not in x.text: continue
        elif isinstance(x, Variant): x.A = ablate(x.A, ab); x.B = ablate(x.B, ab)
        elif isinstance(x, Loop): x.body = ablate(x.body, ab)
        out.append(x)
    return out

def gen_main(P, F):
    e = P.e
    O, S, FB, AK, AV, QA, QBr = 0, 64, 128, 160, 168, 192, 224
    M_, L_, LC, R_, T1 = 184, 185, FRC, LANE, FV
    AW, AX, BFm = 160, 168, 170
    def lanes(t):
        e(f'v_and_b32 v{t}, 31, v{LANE}'); e(f'v_lshrrev_b32 v{t+1}, 5, v{LANE}'); e(f'v_bfe_u32 v{t+2}, v{LANE}, 4, 1')
        e(f'v_bfe_u32 v{t+3}, v{LANE}, 2, 2'); e(f'v_and_b32 v{t+4}, 3, v{LANE}')
    def traddr(t, dst, base):
        femit(P, t+6, t+5, t+7, t+8)
        e(f'v_lshrrev_b32 v{t+7}, 1, v{t+4}'); e(f'v_lshl_or_b32 v{t+7}, v{t+2}, 1, v{t+7}'); e(f'v_xor_b32 v{t+6}, v{t+6}, v{t+7}')
        e(f'v_lshlrev_b32 v{t+6}, 4, v{t+6}'); e(f'v_and_b32 v{t+7}, 1, v{t+4}'); e(f'v_lshl_or_b32 v{t+6}, v{t+7}, 3, v{t+6}')
        e(f'v_lshl_add_u32 v{t+6}, v{t+5}, 8, v{t+6}'); e(f'v_add_u32 v{dst}, {base}, v{t+6}')
    t = 20
    lanes(t)
    for hf in range(2):
        e(f'v_lshl_add_u32 v{t+5}, v{t+1}, 3, v{t+3}')
        if hf: e(f'v_add_u32 v{t+5}, 4, v{t+5}')
        traddr(t, AW + hf, QB0 + XB)
        for dt in range(1, 4): e(f'v_xor_b32 v{AW + 2*dt + hf}, {dt << 6}, v{AW + hf}')
    e(f'v_bfe_u32 v{t+6}, v{t}, 2, 2'); e(f'v_sub_u32 v{t+6}, 4, v{t+6}'); e(f'v_and_b32 v{t+6}, 3, v{t+6}')
    e(f'v_xor_b32 v{t+6}, v{t+6}, v{t+1}'); e(f'v_lshlrev_b32 v{t+6}, 4, v{t+6}')
    e(f'v_lshl_add_u32 v{t+6}, v{t}, 6, v{t+6}'); e('s_lshl_b32 s3, s4, 11'); e(f's_add_u32 s3, s3, {QB0}'); e(f'v_add_u32 v{AX}, s3, v{t+6}')
    e(f'v_xor_b32 v{AX+1}, 32, v{AX}')
    AW2 = 192
    for k in range(10): e(f'v_add_u32 v{AW2+k}, {2*STG}, v{AW+k}')
    def qa(s): return (AW, (s % NQ)*STG) if s % NQ < 2 else (AW2, (s % NQ - 2)*STG)
    VW = 202
    e(f'v_and_b32 v{t+9}, 15, v{LANE}'); e(f'v_lshrrev_b32 v{t+10}, 4, v{LANE}')
    for u in range(2):
        e('s_lshl_b32 s3, s4, 3'); e(f's_add_u32 s3, s3, {4*u}'); e(f'v_add_u32 v{t+11}, s3, v{t+10}'); e(f'v_and_b32 v{t+5}, 15, v{t+11}')
        femit(P, t+6, t+5, t+7, t+8)
        e(f'v_xor_b32 v{t+6}, v{t+6}, v{t+9}'); e(f'v_lshlrev_b32 v{t+6}, 4, v{t+6}'); e(f'v_lshl_add_u32 v{VW+u}, v{t+11}, 13, v{t+6}')
    e('s_lshl_b32 s6, s4, 11')
    e('s_waitcnt lgkmcnt(0)')
    e('s_cmp_eq_u32 s50, 0'); e('s_cselect_b64 s[14:15], s[14:15], s[22:23]')
    e('s_lshl_b32 s3, s51, 8'); e('s_add_u32 s14, s14, s3'); e('s_addc_u32 s15, s15, 0')
    srd(P, SW, 14, 15, 575 * 8192 + 512)
    qrot(P); e('s_lshl_b32 s54, s53, 18')
    def wpiece(s, k):
        hd, u = k // 2, k % 2
        def pre(): e(f's_add_u32 m0, s6, {QB0 + (s % NQ)*STG + XB + hd*8192 + u*1024 - hd*256}')
        def post():
            P.vmem(f'buffer_load_dwordx4 v{VW+u}, s[{SW}:{SW+3}], s54 offen offset:{hd*256} {OPT["w_pol"]} lds', ('q', s))
        return pre, post
    def wadv(): e('s_add_u32 s54, s54, 262144'); e(f's_cmp_eq_u32 s54, {18*262144}'); e('s_cselect_b32 s54, 0, s54')
    for s in range(2):
        for k in range(4): a_, b_ = wpiece(s, k); a_(); b_()
        wadv()
    o_srd(P)
    P.wait(vm=('q', 0))
    seq = [(s, k2, hd, dt) for s in range(18) for k2 in range(2) for hd in range(2) for dt in range(4)]
    NB, LA = 8, 5
    def rdA(i):
        s, k2, hd, dt = seq[i]; b = FB + 4*(i % NB); a, off = qa(s); off += hd*8192 + k2*4096
        P.ds(f'ds_read_b64_tr_b16 {vr(b,2)}, v{a + 2*dt} offset:{off}', ('A', i))
        P.ds(f'ds_read_b64_tr_b16 {vr(b+2,2)}, v{a + 2*dt + 1} offset:{off}', ('A', i))
    def rdB(s, k2):
        a, off = qa(s)
        P.ds(f'ds_read_b128 {vr(BFm + 8*(s % 2) + 4*k2, 4)}, v{a + 8 + k2} offset:{off}', ('B', s, k2))
    e('s_barrier')
    stamp(P, 1, not OPT['ts2'])
    rdB(0, 0); rdB(0, 1)
    for i in range(LA): rdA(i)
    for k in range(4): a_, b_ = wpiece(2, k); a_(); b_()
    wadv()
    i0 = len(P.cur)
    for i, (s, k2, hd, dt) in enumerate(seq):
        k = i % 16
        WP = {1: 0, 3: 1, 5: 2, 7: 3}
        if k in WP and s + 3 < 18: wpiece(s + 3, WP[k])[0]()
        latest(P, [('A', i), ('B', s, k2)])
        mfma32(P, hd*64 + dt*16, FB + 4*(i % NB), BFm + 8*(s % 2) + 4*k2, s == 0 and k2 == 0)
        if k in WP and s + 3 < 18: wpiece(s + 3, WP[k])[1]()
        if k == 8 and s + 3 < 18: wadv()
        if s < 17:
            if k == 16 - LA - 1: P.wait(vm=('q', s + 1))
            if k == 16 - LA - 1: e('s_barrier')
            if k == 12: rdB(s + 1, 0)
            if k == 14: rdB(s + 1, 1)
        if i == len(seq) - 1: e('s_barrier')
        if i + LA < len(seq): rdA(i + LA)
    if OPT['abl']: P.cur[i0:] = ablate(P.cur[i0:], OPT['abl'].split())
    stamp(P, 2, not OPT['ts2'])
    P.wait(vm='all')
    t = FB
    lanes(t)
    e(f'v_and_b32 v{t+5}, 15, v{t}'); femit(P, t+6, t+5, t+7, t+8)
    e(f'v_xor_b32 v{t+6}, v{t+6}, v{t+1}'); e(f'v_lshlrev_b32 v{t+6}, 4, v{t+6}'); e(f'v_lshl_add_u32 v{AK}, v{t}, 8, v{t+6}')
    for ks in range(1, 8): e(f'v_xor_b32 v{AK+ks}, {ks << 5}, v{AK}')
    for hf in range(2):
        e(f'v_lshl_add_u32 v{t+5}, v{t+1}, 2, v{t+3}')
        if hf: e(f'v_add_u32 v{t+5}, 8, v{t+5}')
        traddr(t, AV + hf, 32768)
        for dt in range(1, 4): e(f'v_xor_b32 v{AV + 2*dt + hf}, {dt << 6}, v{AV + hf}')
    NB = 6
    VST = 152
    PX = 176
    order = [('S', 0), ('S', 1), ('P', 2), ('S', 2), ('S', 3), ('P', 3), ('P', 0), ('P', 1)]
    pbase = lambda b, h: PX + 4*h if b == 3 else S + 16*b + 8*h
    mf, reads = [], []
    for kind, b in order:
        for k in range(8):
            if kind == 'S':
                reads.append((('K', b, k), 1, AK + k, b*8192)); mf.append((S + 16*b, QA + 4*k, k == 0))
            else:
                h, dt = k // 4, k % 4
                reads.append((('V', b, k), 2, AV + 2*dt, b*8192 + h*4096)); mf.append((O + 16*dt, pbase(b, h), False))
    prev = lambda m: order[m // 8] in (('P', 2), ('P', 3))
    CHK, LA = 48, OPT['lak']
    def rd(i, it=0):
        tag, n, ad, off = reads[i]; b = FB + 4*(i % NB)
        if n == 1: P.ds(f'ds_read_b128 {vr(b,4)}, v{ad} offset:{off}', (it,) + tag)
        else:
            P.ds(f'ds_read_b64_tr_b16 {vr(b,2)}, v{ad} offset:{off}', (it,) + tag)
            P.ds(f'ds_read_b64_tr_b16 {vr(b+2,2)}, v{ad+1} offset:{off}', (it,) + tag)
    groups = [(b, h) for b in range(4) for h in range(2)]
    gb = {g: S + 16*g[0] + 8*g[1] for g in groups}
    sdone = {0: 7, 1: 15, 2: 31, 3: 39}
    dline = {(0,0): 48, (0,1): 52, (1,0): 56, (1,1): 60, (2,0): 80, (2,1): 84, (3,0): 96, (3,1): 96}
    def valu_plan():
        T0 = OPT['t0']
        at = {m: [] for m in range(128)}
        for b in range(4):
            for k in range(8): at[min(sdone[b] + 2 + k, CHK - 1)].append(((b, k // 4), 'max', k % 4))
        fin = []
        for i, g in enumerate(groups):
            for k in range(8):
                m = T0 + 8*i + k
                at[m].insert(0, (g, 'exp', k))
                at[m + 1].append((g, 'add', k))
                if k % 2 == 1: at[m + 1].append((g, 'cvt', k // 2))
            assert T0 + 8*i + 8 < dline[g] and T0 + 8*i > min(sdone[g[0]] + 2 + 4*g[1] + 3, CHK - 1)
        post = {m: [(1,) + o for o in at[m + 64]] + [(0,) + o for o in at[m]] for m in range(64)}
        for m in post: post[m].sort(key=lambda o: o[2] != 'exp')
        sys.stderr.write(f'valu per slot {[sum(2 if o[2] == "exp" else 1 for o in post[m]) for m in range(64)]}\n')
        return {m: [] for m in range(65)}, post
    vpre, vpost = valu_plan()
    lc0 = next(o for m in range(CHK) for o in vpre[m] + vpost[m] if o[0] == 0 and o[2] == 'add')
    def vop(o, m, slow=False):
        lag, g, k_, k = o; r = gb[g]
        if k_ == 'max': e(f'v_max3_f32 v{M_}, v{M_}, v{r+2*k}, v{r+2*k+1}')
        elif k_ == 'exp': e(f'v_exp_f32 v{r+k}, v{r+k}')
        elif k_ == 'cvt': e(f'v_cvt_pk_bf16_f32 v{pbase(*g)+k}, v{r+2*k}, v{r+2*k+1}')
        elif lag == 0 and m < CHK and not slow:
            e(f'v_mov_b32 v{LC}, v{r+k}' if o == lc0 else f'v_add_f32 v{LC}, v{LC}, v{r+k}')
        else: e(f'v_add_f32 v{L_}, v{L_}, v{r+k}')
    CK = {16 - LA - 1: 's90', 24 - LA - 1: 's91', 48 - LA - 1: 's92', 64 - LA - 1: 's93'}
    POST = {47: 's94', 49: 's95', 63: 's96'}
    def slots(lo, hi, mode, events=True, zero=False):
        STS = {x: i + 1 for i, x in enumerate(OPT['st'].split(','))} if mode == 'fast' else {}
        skip = lambda m: (mode in ('first', 'redo') and prev(m)) or (mode == 'tail' and not prev(m))
        keep = lambda o: mode == 'fast' or (mode == 'first' and o[0] == 0) or (mode == 'tail' and o[0] == 1)
        for m in range(lo, hi):
            acc, B, first = mf[m]
            if m != CHK:
                for o in vpre[m]:
                    if keep(o): vop(o, m)
            if not skip(m):
                w2 = m + 1 if (OPT['w2'] and m % 2 == 0 and (0,) + reads[m + 1][0] in P.lg) else m
                P.wait(lg=(0,) + reads[w2][0])
                mfma32(P, acc, FB + 4*(m % NB), B, first or zero)
            if f'{m}' in STS: stamp_it(P, STS[f'{m}'], OPT['sti'])
            if events:
                if m + 2 in CK and not (mode == 'first' and CK[m + 2] == 's90'): F.read(FRL)
                if f'{m}b' in STS: stamp_it(P, STS[f'{m}b'], OPT['sti'])
                if m in CK and not (mode == 'first' and CK[m] == 's90'): F.check(FRL, CK[m])
                if f'{m}c' in STS: stamp_it(P, STS[f'{m}c'], OPT['sti'])
                if m == 45 and mode == 'fast': P.ool(['s_cmp_eq_u32 s27, 6'], 's_cbranch_scc1', lambda: e('s_waitcnt vmcnt(0)'), lambda w, it: it == 6)
                if m in POST: F.post(POST[m])
            i = m + LA
            if i >= 64:
                if events: rd(i - 64, 1)
            elif not skip(i) and not (mode in ('redo', 'tail') and i >= CHK): rd(i)
            for o in vpost[m]:
                if keep(o): vop(o, m)
            if events and OPT['spread'] and m % 16 == 6 and mode != 'first':
                P.ool(['s_cmp_eq_u32 s27, 5'], 's_cbranch_scc1', lambda: (ostore(QBr, m // 16 * 2), ostore(QBr, m // 16 * 2 + 1)), lambda w, it: it == 5)
            if events and 50 <= m < 54:
                for k in range(2): e(f'v_xor_b32 v{AK + 2*(m-50) + k}, 0x10000, v{AK + 2*(m-50) + k}')
            if events and m == 47 - LA and mode != 'first':
                for k in range(8): e(f'v_xor_b32 v{AV + k}, 0x10000, v{AV + k}')
    F.need(FRL, 19)
    for i in range(LA):
        if i == LA - 1: F.post(18)
        rd(i)
    for hd in range(2):
        for dt in range(4):
            a = hd*64 + dt*16
            for k in range(0, 16, 2): e(f'v_pk_mul_f32 {vr(a+k,2)}, {vr(a+k,2)}, s[6:7] op_sel:[0,1]')
            for h in range(2):
                q = (QA, QBr)[hd] + 4*(2*dt + h)
                for k in range(4): e(f'v_cvt_pk_bf16_f32 v{q+k}, v{a+8*h+2*k}, v{a+8*h+2*k+1}')
            for h in range(2):
                q = (QA, QBr)[hd] + 4*(2*dt + h)
                e(f'v_permlane32_swap_b32 v{q}, v{q+2}'); e(f'v_permlane32_swap_b32 v{q+1}, v{q+3}')
    def reset():
        e(f'v_mov_b32 v{L_}, 0'); e(f'v_mov_b32 v{R_}, 0'); e(f's_mov_b32 s7, {fbits(64.0):#x}')
    reset()
    e(f'v_mov_b32 v{M_}, {fbits(-1e30):#x}')
    e(f's_mov_b32 s89, {fbits(64.0):#x}'); e('s_mov_b32 s90, 19'); e('s_mov_b32 s94, 19'); e('s_mov_b32 s97, 0xee'); e('s_lshl_b32 s88, s4, 18')
    stamp(P, 3, not OPT['ts2'])
    def ostore(D, k): P.vmem(f'buffer_store_dwordx4 {vr(D + 4*k,4)}, v{VST}, s[{SO}:{SO+3}], s88 offen offset:{k*512} {OPT["o_st"]}', 'st', optional=True)
    def finish(D, store):
        e(f'v_mov_b32 v{T1}, v{L_}'); e(f'v_permlane32_swap_b32 v{L_}, v{T1}'); e(f'v_add_f32 v{L_}, v{L_}, v{T1}')
        e(f'v_rcp_f32 v{M_+0 if False else D}, v{L_}')
        e(f'v_mbcnt_lo_u32_b32 v{T1}, -1, 0'); e(f'v_mbcnt_hi_u32_b32 v{T1}, -1, v{T1}')
        e(f'v_and_b32 v{VST}, 15, v{T1}'); e(f'v_lshlrev_b32 v{VST}, 4, v{VST}')
        e(f'v_lshrrev_b32 v{D+1}, 5, v{T1}'); e(f'v_lshl_add_u32 v{VST}, v{D+1}, 8, v{VST}')
        e(f'v_bfe_u32 v{D+1}, v{T1}, 4, 1'); e(f'v_lshl_add_u32 v{VST}, v{D+1}, 17, v{VST}')
        e(f'v_mov_b32 v{L_}, v{D}')
        for dt in range(4):
            a = O + 16*dt
            for k in range(0, 16, 2): e(f'v_pk_mul_f32 {vr(a+k,2)}, {vr(a+k,2)}, {vr(M_,2)} op_sel:[0,1]')
            for G in range(2):
                d = D + 8*dt + 4*G
                for k, src in enumerate((4*G, 4*G + 2, 4*G + 8, 4*G + 10)): e(f'v_cvt_pk_bf16_f32 v{d+k}, v{a+src}, v{a+src+1}')
                if store: ostore(D, 2*dt + G)
    def body():
        for k in range(1, 4): e(f's_add_u32 s{90+k}, s90, {k}')
        for k in range(1, 3): e(f's_add_u32 s{94+k}, s94, {k}')
        if OPT['st'] == 'I':
            for k in range(1, 7): stamp_it(P, k, k + OPT['sti'])
        def switch():
            for k in range(32): e(f'v_mov_b32 v{QA+k}, v{QBr+k}')
            e(f'v_mov_b32 v{M_}, {fbits(-1e30):#x}')
        P.ool(['s_cmp_eq_u32 s27, 4'], 's_cbranch_scc1', switch, lambda w, it: it == 4)
        P.ool(['s_cmp_eq_u32 s27, 0'], 's_cbranch_scc1', lambda: slots(0, CHK, 'first'), lambda w, it: it == 0, lambda: slots(0, CHK, 'fast'))
        for o in vpre[CHK]: vop(o, CHK)
        def fin_a():
            finish(QBr, not OPT['spread']); reset()
        P.ool(['s_cmp_eq_u32 s27, 4'], 's_cbranch_scc1', fin_a, lambda w, it: it == 4)
        e(f'v_cmp_lt_f32 vcc, s7, abs(v{M_})')
        def pv(mode):
            P.ool(['s_bitcmp0_b32 s97, s27'], 's_cbranch_scc1', lambda: slots(CHK, CHK + 4, mode, zero=True), lambda w, it: it % 4 == 0,
                  lambda: slots(CHK, CHK + 4, mode))
            slots(CHK + 4, 64, mode)
        def rest(fast):
            if fast:
                e(f'v_add_f32 v{L_}, v{L_}, v{LC}')
                pv('fast'); return
            P.wait(lg='all')
            for i in range(LA): rd(i)
            slots(0, CHK, 'redo', events=False)
            e(f'v_mov_b32 v{T1}, v{M_}'); e(f'v_permlane32_swap_b32 v{M_}, v{T1}'); e(f'v_max_f32 v{M_}, v{M_}, v{T1}')
            e(f'v_sub_f32 v{T1}, v{R_}, v{M_}'); e(f'v_min_f32 v{T1}, s89, v{T1}'); e(f'v_exp_f32 v{T1}, v{T1}')
            e(f'v_mov_b32 v{R_}, v{M_}'); e('s_mov_b32 s7, -1.0')
            e(f'v_mul_f32 v{L_}, v{L_}, v{T1}')
            for k in range(64): e(f'v_sub_f32 v{S+k}, v{S+k}, v{M_}')
            for k in range(64): e(f'v_mul_f32 v{O+k}, v{O+k}, v{T1}')
            for m in range(64):
                for o in vpre[m] + vpost[m]:
                    if o[0] == 0 and o[2] != 'max': vop(o, m, slow=True)
            for i in range(CHK, CHK + LA): rd(i)
            pv('slow')
        P.ool([], 's_cbranch_vccnz', lambda: rest(False), lambda w, it: (w >> 3) % 2 == 1, lambda: rest(True))
        e('s_add_u32 s90, s90, 4'); e('s_add_u32 s94, s94, 3')
    i0 = len(P.cur)
    P.vm = []
    P.loop(8, 's27', body, lambda t: (t[0] - 1,) + tuple(t[1:]) if isinstance(t, tuple) else t)
    P.wait(lg='all')
    slots(0, CHK, 'tail', events=False)
    e('s_add_u32 s88, s88, 4096')
    finish(S, True)
    if OPT['abl2']: P.cur[i0:] = ablate(P.cur[i0:], OPT['abl2'].split())
    stamp(P, 4, not OPT['ts2'])
    gen_oproj(P)

def gen_helper(P, F):
    e = P.e
    kvp, xp, wp = OPT['kv_pol'], OPT['x_pol'], OPT['w_pol']
    O8, Q8, S8, FB, QA8 = 0, 32, 64, 72, 136
    VKV, VW, VX, AK8, AV8, AW8, AX8, L16, FRH = 152, 156, 158, 161, 165, 173, 175, 176, 177
    R_, L_, T, M_, FA, TK = 178, 179, 180, 156, 157, 240
    i00 = len(P.cur)
    if OPT['hprio']: e(f's_setprio {OPT["hprio"]}')
    e(f'v_and_b32 v3, 15, v{LANE}'); e(f'v_lshrrev_b32 v4, 4, v{LANE}'); e('v_lshrrev_b32 v5, 2, v3'); e('v_and_b32 v6, 3, v3')
    e(f'v_lshrrev_b32 v7, 2, v{LANE}'); e('v_lshrrev_b32 v8, 2, v7'); e('v_sub_u32 v8, 4, v8'); e('v_and_b32 v8, 3, v8')
    e('v_xor_b32 v8, v8, v6'); e('v_lshlrev_b32 v8, 4, v8')
    e('v_mul_u32_u24 v9, 1152, v7'); e('v_add_u32 v9, v9, v8'); e(f'v_add_u32 v{VX+2}, {128*1152}, v9')
    e('s_mul_i32 s3, s4, 18432'); e(f'v_add_u32 v{VX}, s3, v9'); e(f'v_add_u32 v{VX+1}, 73728, v{VX}')
    e('s_lshl_b32 s5, s4, 10'); e('s_lshl_b32 s6, s4, 11'); e('s_lshl_b32 s59, s4, 12')
    e('s_waitcnt lgkmcnt(0)')
    e('s_cmp_eq_u32 s50, 0')
    for k in range(4): e(f's_cselect_b64 s[{8+2*k}:{9+2*k}], s[{8+2*k}:{9+2*k}], s[{16+2*k}:{17+2*k}]')
    e('s_mul_i32 s3, s52, 165888'); e('s_add_u32 s8, s8, s3'); e('s_addc_u32 s9, s9, 0')
    srd(P, SX, 8, 9, 165888)
    qrot(P); e('s_lshl_b32 s53, s53, 6')
    def qstage(s):
        st, tag = QB0 + (s % NQ)*STG, ('q', s)
        for u in range(2):
            e(f's_add_u32 m0, s5, {st + u*4096}')
            P.vmem(f'buffer_load_dwordx4 v{VX+u}, s[{SX}:{SX+3}], s53 offen {xp} lds', tag)
        def x8():
            e(f's_mov_b32 m0, {st + 8192}')
            P.vmem(f'buffer_load_dwordx4 v{VX+2}, s[{SX}:{SX+3}], s53 offen {xp} lds', tag, optional=True)
        P.only(s % 4, x8)
        e('s_add_u32 s53, s53, 64'); e('s_cmp_eq_u32 s53, 1152'); e('s_cselect_b32 s53, 0, s53')
    qstage(0); qstage(1)
    def tag():
        e('s_memrealtime s[84:85]'); e('s_waitcnt lgkmcnt(0)'); e('s_or_b32 s84, s84, 1')
        e('v_mov_b32 v7, 0'); e('v_mov_b32 v8, s84')
        e('s_mov_b64 exec, 1')
        P.vmem('global_store_dword v7, v8, s[82:83] sc1', 'tag', optional=True)
        e('s_mov_b64 exec, -1')
    e('s_lshl_b32 s3, s2, 3'); e('s_add_u32 s3, s3, s87')
    P.ool(['s_cmp_eq_u32 s3, 4'], 's_cbranch_scc1', tag, lambda w, it: w == 4)
    if OPT['krot'] == 1: e('s_lshr_b32 s58, s2, 3')
    elif OPT['krot'] == 2: e('s_mov_b32 s58, s2')
    elif OPT['krot'] == 3:
        e('s_lshr_b32 s58, s2, 3'); e('s_add_u32 s58, s58, s2'); e('s_lshr_b32 s3, s2, 6'); e('s_add_u32 s58, s58, s3')
    else: e('s_mov_b32 s58, 0')
    e('s_and_b32 s58, s58, 7'); e('s_lshl_b32 s58, s58, 14')
    e('s_lshl_b32 s3, s52, 5'); e('s_add_u32 s3, s3, s51'); e('s_lshl_b32 s3, s3, 17')
    e('s_add_u32 s10, s10, s3'); e('s_addc_u32 s11, s11, 0'); srd(P, SK, 10, 11, 262144)
    e('s_add_u32 s12, s12, s3'); e('s_addc_u32 s13, s13, 0'); srd(P, SV, 12, 13, 262144)
    o_srd(P)
    for t in range(4):
        e(f'v_add_u32 v7, {4*t}, v4'); femit(P, 8, 7, 9, 10)
        e('v_xor_b32 v8, v8, v3'); e('v_lshlrev_b32 v8, 4, v8'); e('v_lshl_add_u32 v8, v4, 8, v8'); e(f'v_add_u32 v{VKV+t}, s59, v8')
    femit(P, 8, 3, 9, 10)
    e('v_xor_b32 v8, v8, v4'); e('v_lshlrev_b32 v8, 4, v8'); e('v_lshl_add_u32 v8, v3, 8, v8'); e(f'v_add_u32 v{AK8}, s59, v8')
    for u in range(1, 4): e(f'v_xor_b32 v{AK8+u}, {u << 6}, v{AK8}')
    def traddr16(dst, shift, base_s, base):
        e(f'v_lshl_add_u32 v7, v4, {shift}, v5'); e('v_and_b32 v11, 15, v7'); femit(P, 8, 11, 9, 10)
        e('v_lshrrev_b32 v9, 1, v6'); e('v_xor_b32 v8, v8, v9'); e('s_lshl_b32 s3, s4, 2'); e('v_xor_b32 v8, s3, v8')
        e('v_lshlrev_b32 v8, 4, v8'); e('v_and_b32 v9, 1, v6'); e('v_lshl_or_b32 v8, v9, 3, v8'); e('v_lshl_add_u32 v8, v7, 8, v8')
        if base_s: e(f'v_add_u32 v8, {base_s}, v8')
        e(f'v_add_u32 v{dst}, {base}, v8')
    traddr16(AV8, 2, 's59', 32768)
    for d in range(1, 8): e(f'v_xor_b32 v{AV8+d}, {d << 5}, v{AV8}')
    traddr16(AW8, 3, None, QB0 + XB); e(f'v_xor_b32 v{AW8+1}, 32, v{AW8}')
    e('v_sub_u32 v8, 4, v5'); e('v_and_b32 v8, 3, v8'); e('v_xor_b32 v8, v8, v4'); e('v_lshlrev_b32 v8, 4, v8')
    e('v_lshl_add_u32 v8, v3, 6, v8'); e(f'v_add_u32 v{AX8}, {QB0 + 8192}, v8')
    e(f'v_lshlrev_b32 v{L16}, 4, v{LANE}')
    AW8b, AD, PF = 183, 182, 192
    for k in range(3): e(f'v_add_u32 v{AW8b+k}, {2*STG}, v{AW8+k}')
    e(f'v_add_u32 v{AD}, s59, v{L16}')
    PFB = [0, 16, 32, 48, 88, 104, 120, 192, 208, 224, 240]
    pfreg = lambda n, t: PFB[n] + 4*t
    e(f'v_add_u32 v{FRH}, {FLG + 512 - (FLG + 1536)}, v{FRL}')
    def item(n):
        S = SK if n % 4 < 2 else SV
        e(f's_add_u32 m0, s59, {(n % 8)*16384}')
        e(f's_xor_b32 s26, s58, {(n // 4)*32768 + (n % 2)*16384}')
        for t in range(4):
            if 'kv8' in OPT['abl2'] and n >= 8: continue
            P.vmem(f'buffer_load_dwordx4 v{VKV+t}, s[{S}:{S+3}], s26 offen offset:{t*1024} {kvp} lds', ('kv', n))
    def pf(p):
        n = SEQ[p]
        S = SK if n % 4 < 2 else SV
        e(f's_xor_b32 s26, s58, {(n // 4)*32768 + (n % 2)*16384}')
        for t in range(4):
            P.vmem(f'buffer_load_dwordx4 {vr(pfreg(p, t), 4)}, v{VKV+t}, s[{S}:{S+3}], s26 offen offset:{t*1024} {kvp}', ('kv', n))
    SEQ = [0, 1, 2] + [x for c in range(1, 8) for x in (4*c, 4*c - 1, 4*c + 1, 4*c + 2)] + [31]
    def cneed(n):
        c, k = (n - 8) // 4, n % 4
        return 19 + 3*c + (1, 1, 2, 3)[k]
    kvl = [int(x) for x in OPT['kvq'].split(',')] if OPT['kvq'] else []
    NPF = len(kvl)
    ND = min(NPF, 7)
    P.wait(vm=('q', 0)); e('s_barrier')
    stamp(P, 1, not OPT['ts2'])
    qstage(2)
    for s in range(18):
        a, off = (AW8, (s % NQ)*STG) if s % NQ < 2 else (AW8b, (s % NQ - 2)*STG)
        P.ds(f'ds_read_b128 {vr(FB,4)}, v{a+2} offset:{off}', 'b')
        for hd in range(2):
            for dd in range(2):
                b = FB + 4 + 8*hd + 4*dd if hd == 0 else S8 + 4*dd
                P.ds(f'ds_read_b64_tr_b16 {vr(b,2)}, v{a+dd} offset:{off + hd*8192}', ('a', hd, dd))
                P.ds(f'ds_read_b64_tr_b16 {vr(b+2,2)}, v{a+(dd^1)} offset:{off + hd*8192 + 1024}', ('a', hd, dd))
        if s + 3 < 18: qstage(s + 3)
        for i, x in enumerate(kvl):
            if x == s: pf(i)
        for hd in range(2):
            for dd in range(2):
                P.wait(lg=('a', hd, dd)); mfma(P, QA8 + 8*hd + 4*dd, FB + 4 + 8*hd + 4*dd if hd == 0 else S8 + 4*dd, FB, s == 0)
        if s < 17: P.wait(vm=('q', s + 1))
        e('s_barrier')
    stamp(P, 2, not OPT['ts2'])
    LAH = OPT['la']
    issued = NPF
    def dump(p):
        n = SEQ[p]
        P.wait(vm=('kv', n))
        for t in range(4):
            ad, off = (AD, (n % 8)*16384 + t*1024) if n % 8 < 4 else (AW8b, (n % 8 - 4)*16384 + t*1024)
            P.ds(f'ds_write_b128 v{ad}, {vr(pfreg(p, t), 4)} offset:{off}', ('d', p))
    AD2 = AW8b
    e(f'v_add_u32 v{AD2}, 65536, v{AD}')
    if ND: dump(0)
    for k in range(OPT['post4']):
        if SEQ[issued] < 8: item(SEQ[issued]); issued += 1
    for n in range(1, ND):
        P.wait(lg=('d', n - 1)); F.post(19 + n - 1, 1024); dump(n)
    if ND:
        P.wait(lg='all'); F.post(19 + ND - 1, 1024)
    dumped = ND
    for k in range(16): e(f'v_mul_f32 v{QA8+k}, s7, v{QA8+k}')
    e(f's_add_u32 s3, s5, {XCH}'); e(f'v_add_u32 v{T}, s3, v{L16}')
    for hd in range(2):
        d, X, Y = FB + 4*hd, QA8 + 8*hd, QA8 + 8*hd + 4
        e(f'v_cvt_pk_bf16_f32 v{d}, v{X}, v{X+1}'); e(f'v_cvt_pk_bf16_f32 v{d+1}, v{X+2}, v{X+3}')
        e(f'v_cvt_pk_bf16_f32 v{d+2}, v{Y}, v{Y+1}'); e(f'v_cvt_pk_bf16_f32 v{d+3}, v{Y+2}, v{Y+3}')
        for sw in ('32', '16'):
            e(f'v_permlane{sw}_swap_b32 v{d}, v{d+2}'); e(f'v_permlane{sw}_swap_b32 v{d+1}, v{d+3}')
        P.ds(f'ds_write_b128 v{T}, {vr(d,4)} offset:{hd*4096}', 'xw')
    e(f's_mov_b32 s89, {fbits(64.0):#x}')
    hep = [1000]
    def hsync():
        P.wait(lg='all'); hep[0] += 1
        F.post(hep[0]); F.need(FRH, hep[0])
    hsync()
    e(f'v_add_u32 v{T}, {XCH}, v{L16}')
    for k in range(8): P.ds(f'ds_read_b128 {vr(Q8+4*k,4)}, v{T} offset:{k*1024}', 'q8')
    P.wait(lg='all')
    stamp(P, 3, not OPT['ts2'])
    assert NPF == 4 and issued == 7
    e('s_mov_b32 s98, 22')
    def postL(v):
        e(f's_max_u32 s98, s98, {v}'); F.post('s98', 1024)
    def touch():
        e('s_getpc_b64 s[56:57]'); lb = P.newlab('pc'); P.lab(lb)
        e(f's_sub_u32 s56, s56, {lb}-{KNAME}'); e('s_subb_u32 s57, s57, 0')
        e(f'v_lshlrev_b32 v242, 7, v{LANE}'); e('s_lshl_b32 s3, s4, 14'); e('v_add_u32 v242, s3, v242')
        e(f's_mov_b32 s3, .Lcode_end-{KNAME}-4')
        for k in range(2):
            e(f'v_min_u32 v243, s3, v242'); P.vmem(f'global_load_dword v{244+k}, v243, s[56:57]', 'ct', optional=True)
            e('v_add_u32 v242, 8192, v242')
    def need_free(val, lv, nxt):
        F.read(FRC); P.wait(lg='fr')
        def slow():
            done = P.newlab('nf')
            vm0 = list(P.vm)
            for i, tg in enumerate(nxt):
                if not any(t[0] == tg for t in P.vm): break
                P.wait(vm=tg); e(f's_add_u32 s3, {lv}, {i + 1}'); postL('s3')
                e(f'ds_read_b32 v{FT}, v{FRC}'); e('s_waitcnt lgkmcnt(0)')
                e(f'v_cmp_gt_u32 vcc, {val}, v{FT}'); e(f's_cbranch_vccz {done}')
            sp = P.newlab('sp'); P.lab(sp)
            e('s_sleep 1'); e(f'ds_read_b32 v{FT}, v{FRC}'); e('s_waitcnt lgkmcnt(0)')
            e(f'v_cmp_gt_u32 vcc, {val}, v{FT}'); e(f's_cbranch_vccnz {sp}')
            P.lab(done)
            P.vm = vm0
        P.ool([f'v_cmp_gt_u32 vcc, {val}, v{FT}'], 's_cbranch_vccnz', slow, lambda w, it: False)
    def scores():
        for tt in range(2):
            for u in range(4): P.ds(f'ds_read_b128 {vr(FB + 16*tt + 4*u, 4)}, v{AK8+u} offset:{tt*16384}', ('k', tt, u))
        for tt in range(2):
            for u in range(4):
                P.wait(lg=('k', tt, u)); mfma(P, S8 + 4*tt, FB + 16*tt + 4*u, Q8 + 4*u, u == 0)
        for u in range(4): e(f'v_xor_b32 v{AK8+u}, 0x10000, v{AK8+u}')
        for k in range(4): e(f'v_max3_f32 v{M_}, v{M_}, v{S8+2*k}, v{S8+2*k+1}')
        e(f'v_cmp_lt_f32 vcc, s7, abs(v{M_})')
        def shift():
            for sw in ('32', '16'):
                e(f'v_mov_b32 v{T}, v{M_}'); e(f'v_permlane{sw}_swap_b32 v{M_}, v{T}'); e(f'v_max_f32 v{M_}, v{M_}, v{T}')
            e(f'v_sub_f32 v{T}, v{R_}, v{M_}'); e(f'v_min_f32 v{T}, s89, v{T}'); e(f'v_exp_f32 v{T}, v{T}')
            e(f'v_mov_b32 v{R_}, v{M_}'); e('s_mov_b32 s7, -1.0')
            for k in range(8): e(f'v_sub_f32 v{S8+k}, v{S8+k}, v{M_}')
            e(f'v_mul_f32 v{L_}, v{L_}, v{T}')
            for k in range(32): e(f'v_mul_f32 v{O8+k}, v{O8+k}, v{T}')
        P.ool([], 's_cbranch_vccnz', shift, lambda w, it: (w >> 3) % 2 == 1)
        for k in range(8): e(f'v_exp_f32 v{S8+k}, v{S8+k}')
        for k in range(8): e(f'v_add_f32 v{L_}, v{L_}, v{S8+k}')
        for k in range(4): e(f'v_cvt_pk_bf16_f32 v{S8+k}, v{S8+2*k}, v{S8+2*k+1}')
    def pv8():
        def rv(d):
            P.ds(f'ds_read_b64_tr_b16 {vr(FB + 4*d, 2)}, v{AV8+d}', ('v', d))
            P.ds(f'ds_read_b64_tr_b16 {vr(FB + 4*d + 2, 2)}, v{AV8+d} offset:16384', ('v', d))
        for d in range(6): rv(d)
        for d in range(8):
            P.wait(lg=('v', d)); mfma(P, O8 + 4*d, FB + 4*d, S8)
            if d < 2: rv(6 + d)
        for d in range(8): e(f'v_xor_b32 v{AV8+d}, 0x10000, v{AV8+d}')
    def hreset():
        for k in range(32): e(f'v_mov_b32 v{O8+k}, 0')
        e(f'v_mov_b32 v{M_}, {fbits(-1e30):#x}'); e(f'v_mov_b32 v{L_}, 0'); e(f'v_mov_b32 v{R_}, 0'); e(f's_mov_b32 s7, {fbits(64.0):#x}')
    def combine(head):
        for sw in ('32', '16'):
            e(f'v_mov_b32 v{T}, v{L_}'); e(f'v_permlane{sw}_swap_b32 v{L_}, v{T}'); e(f'v_add_f32 v{L_}, v{L_}, v{T}')
        for q in range(1, 4):
            e(f's_xor_b32 s3, s4, {q}'); e('s_mul_i32 s3, s3, 6144'); e(f's_add_u32 s3, s3, {XCH + (q-1)*2048}')
            e(f'v_add_u32 v{T}, s3, v{L16}')
            for k in range(2): P.ds(f'ds_write_b128 v{T}, {vr(O8 + 8*q + 4*k, 4)} offset:{k*1024}', 'cw')
        e(f'v_lshrrev_b32 v{T+1}, 1, v{L16}'); e('s_lshl_b32 s3, s4, 9'); e(f's_add_u32 s3, s3, {XCH + 24576}')
        e(f'v_add_u32 v{T+1}, s3, v{T+1}')
        P.ds(f'ds_write_b64 v{T+1}, {vr(R_,2)}', 'cw')
        hsync()
        e('s_mul_i32 s3, s4, 6144'); e(f's_add_u32 s3, s3, {XCH}'); e(f'v_add_u32 v{T}, s3, v{L16}')
        ST, CB, W = FB, FB + 8, S8
        for q in range(1, 4):
            e(f'v_xor_b32 v{FT}, {q << 9}, v{T+1}')
            P.ds(f'ds_read_b64 {vr(ST + 2*q, 2)}, v{FT}', 'cs')
        for q in range(1, 4):
            for k in range(2): P.ds(f'ds_read_b128 {vr(CB + 8*q + 4*k, 4)}, v{T} offset:{(q-1)*2048 + k*1024}', ('co', q))
        e(f'v_mov_b32 v{ST}, v{R_}'); e(f'v_mov_b32 v{ST+1}, v{L_}')
        P.wait(lg='cs')
        e(f'v_max3_f32 v{W}, v{ST}, v{ST+2}, v{ST+4}'); e(f'v_max_f32 v{W}, v{W}, v{ST+6}')
        for q in range(4): e(f'v_sub_f32 v{W+4+q}, v{ST+2*q}, v{W}')
        for q in range(4): e(f'v_exp_f32 v{W+4+q}, v{W+4+q}')
        e(f'v_mul_f32 v{W+1}, v{W+4}, v{ST+1}')
        for q in range(1, 4): e(f'v_fma_f32 v{W+1}, v{W+4+q}, v{ST+2*q+1}, v{W+1}')
        e(f'v_rcp_f32 v{W+1}, v{W+1}')
        for q in range(4): e(f'v_mul_f32 v{W+4+q}, v{W+4+q}, v{W+1}')
        for k in range(8): e(f'v_mul_f32 v{O8+k}, v{O8+k}, v{W+4}')
        for q in range(1, 4):
            P.wait(lg=('co', q))
            for k in range(8): e(f'v_fma_f32 v{O8+k}, v{CB+8*q+k}, v{W+4+q}, v{O8+k}')
        for k in range(4): e(f'v_cvt_pk_bf16_f32 v{W+k}, v{O8+2*k}, v{O8+2*k+1}')
        e(f's_add_u32 s26, s5, {1048576 + head*4096}')
        P.vmem(f'buffer_store_dwordx4 {vr(W,4)}, v{L16}, s[{SO}:{SO+3}], s26 offen {OPT["o_st"]}', 'st', optional=True)
    hreset(); scores()
    e('s_load_dwordx2 s[8:9], s[0:1], 32'); e('s_load_dwordx2 s[10:11], s[0:1], 72'); e('s_load_dwordx2 s[12:13], s[0:1], 96')
    e(f'v_mov_b32 v{VX}, 0')
    P.vmem(f'global_load_dword v{VX+1}, v{VX}, s[82:83] sc1', 'tagld', optional=True)
    e('s_lshl_b32 s3, s50, 3'); e('s_add_u32 s3, s3, s52'); e('s_lshl_b32 s3, s3, 4'); e('s_lshr_b32 s26, s51, 1'); e('s_add_u32 s3, s3, s26')
    e('s_lshl_b32 s3, s3, 7'); e(f's_add_u32 s3, s3, {FLAGOFF}'); e(f'v_mov_b32 v{FA}, s3')
    e('s_mov_b32 s20, 22'); e('s_mov_b32 s21, 19'); e('s_mov_b32 s22, 65536'); e('s_mov_b32 s23, s59')
    e('s_mov_b32 s18, 32768'); e('s_add_u32 s19, s59, 65536')
    e('s_waitcnt lgkmcnt(0)'); P.lg = []
    P.vm = [(('kv', -1), False)] * 4 + [(('kv', k), False) for k in range(3) for _ in range(4)] + [('tagld', True)]
    KIND = [(0, 1, 1), (3, 0, 0), (1, 1, 1), (2, 1, 2)]
    def step(k, issue=True):
        P.wait(vm=('kv', k - 1)); e(f's_add_u32 s24, s20, {k}'); postL('s24')
        if not issue: return
        kind, nx, co = KIND[k]
        e(f's_add_u32 s25, s21, {co}')
        need_free('s25', 's24', [('kv', k + i) for i in range(3)])
        S = SK if kind < 2 else SV
        e(f's_add_u32 m0, {"s23" if nx else "s19"}, {kind*16384}')
        e(f's_add_u32 s26, {"s22" if nx else "s18"}, {(kind % 2)*16384}')
        for t in range(4):
            P.vmem(f'buffer_load_dwordx4 v{VKV+t}, s[{S}:{S+3}], s26 offen offset:{t*1024} {kvp} lds', ('kv', k + 3))
    def hbody():
        step(0)
        step(1); pv8()
        def mid():
            combine(0); hreset()
            for k in range(16): e(f'v_mov_b32 v{Q8+k}, v{Q8+16+k}')
            if OPT['rtc']: touch()
        P.ool(['s_cmp_eq_u32 s27, 3'], 's_cbranch_scc1', mid, lambda w, it: it == 3)
        step(2); scores()
        step(3)
        e('s_add_u32 s20, s20, 4'); e('s_add_u32 s21, s21, 3'); e('s_mov_b32 s18, s22'); e('s_add_u32 s22, s22, 32768')
        e('s_xor_b32 s23, s23, 65536'); e('s_xor_b32 s19, s19, 65536')
    P.loop(6, 's27', hbody, lambda t: ('kv', t[1] - 4) if t[0] == 'kv' else t)
    P.vm = [(('kv', t[0][1] - 4), t[1]) if t[0][0] == 'kv' else t for t in P.vm]
    step(0, False)
    if OPT['rtc']: touch()
    def respin():
        sp = P.newlab('tg'); P.lab(sp)
        e('s_sleep 8'); e(f'global_load_dword v{VX+1}, v{VX}, s[82:83] sc1'); e('s_waitcnt vmcnt(0)')
        e(f'v_cmp_eq_u32 vcc, 0, v{VX+1}'); e(f's_cbranch_vccnz {sp}')
    P.ool([f'v_cmp_eq_u32 vcc, 0, v{VX+1}'], 's_cbranch_vccnz', respin, lambda w, it: False)
    step(1)
    hsync()
    def sig_a():
        e('s_and_b32 s3, s2, 7'); e('s_lshl_b32 s3, s3, 4'); e('s_add_u32 s3, s3, 64')
        e(f'v_mov_b32 v{TK+1}, s3'); e(f'v_mov_b32 v{TK}, 1')
        e('s_mov_b64 exec, 1')
        P.vmem(f'global_store_dword v{FA}, v{VX+1}, s[12:13] offset:64 sc1', 'fa', optional=True)
        if OPT['dyn']: P.vmem(f'global_atomic_add v{TK}, v{TK+1}, v{TK}, s[82:83] sc0 sc1', 'tk', optional=True)
        e('s_mov_b64 exec, -1')
    P.only(0, sig_a)
    pv8()
    step(2, False); scores()
    step(3, False)
    P.wait(vm=('kv', 4)); postL(50)
    e(f'v_lshlrev_b32 v{VX+2}, 7, v{LANE}'); e('s_lshl_b32 s3, s4, 13'); e(f'v_add_u32 v{VX+2}, s3, v{VX+2}')
    e('s_and_b32 s3, s2, 127'); e('s_mul_i32 s3, s3, 36864')
    e('s_cmp_lt_u32 s2, 128'); e('s_cselect_b64 s[8:9], s[8:9], s[10:11]')
    e('s_add_u32 s8, s8, s3'); e('s_addc_u32 s9, s9, 0'); srd(P, SX, 8, 9, 36864)
    if OPT['wpf']:
        e('s_mov_b32 s26, 32768')
        P.vmem(f'buffer_load_dword v{VKV}, v{VX+2}, s[{SX}:{SX+3}], 0 offen', 'wt')
        P.vmem(f'buffer_load_dword v{VKV+1}, v{VX+2}, s[{SX}:{SX+3}], s26 offen', 'wt')
    pv8(); combine(1)
    ab = (OPT['abl'] + ' ' + OPT['abl2']).split()
    if ab: P.cur[i00:] = ablate(P.cur[i00:], [x for x in ab if x in ('dma', 'qdma', 'st')] + (['mfma', 'ds', 'valu'] if 'hc' in ab else []))
    stamp(P, 4, not OPT['ts2'])
    P.wait(vm='all')
    def give():
        if not OPT['dyn']:
            e('s_lshr_b32 s3, s2, 3'); e(f'v_mov_b32 v{TK}, s3')
        e(f'v_mov_b32 v{TK+1}, v{VX+1}'); e(f'v_mov_b32 v{T}, {NONCE}')
        e('s_mov_b64 exec, 1'); e(f'ds_write_b64 v{T}, {vr(TK,2)}'); e('s_mov_b64 exec, -1'); e('s_waitcnt lgkmcnt(0)')
    P.only(0, give)
    e('s_barrier')
    def signal():
        e('s_mov_b64 exec, 1')
        e(f'global_store_dword v{FA}, v{VX+1}, s[12:13] sc1')
        e('s_mov_b64 exec, -1')
    P.only(0, signal)

K2_LDS = 73728
def gen_oproj(P):
    e = P.e
    SO2, SWO, SOUT = 28, 32, 36
    e('s_load_dwordx2 s[8:9], s[0:1], 32')
    e('s_load_dwordx2 s[10:11], s[0:1], 72')
    e('s_load_dwordx2 s[12:13], s[0:1], 80')
    e('s_load_dwordx2 s[14:15], s[0:1], 96')
    e('v_mbcnt_lo_u32_b32 v0, -1, 0'); e('v_mbcnt_hi_u32_b32 v0, -1, v0'); e('v_mov_b32 v1, s4')
    e(f'v_mov_b32 v96, {NONCE}')
    for i in range(2, 96): e(f'v_mov_b32 v{i}, 0') if i > 9 else None
    P.wait(vm='all')
    e('s_barrier')
    P.ds('ds_read_b64 v[234:235], v96', 'n'); P.wait(lg='all')
    e('v_readfirstlane_b32 s49, v234')
    e('s_cmp_ge_u32 s49, 27'); e('s_cbranch_scc1 .Lk1_fin')
    e('s_and_b32 s48, s2, 7')
    e('s_lshr_b32 s50, s48, 2')
    e('s_mul_i32 s3, s49, 57'); e('s_lshr_b32 s3, s3, 9')
    e('s_mul_i32 s26, s3, 9'); e('s_sub_u32 s52, s49, s26')
    e('s_and_b32 s51, s48, 3'); e('s_mul_i32 s51, s51, 3'); e('s_add_u32 s51, s51, s3')
    e('v_and_b32 v2, 63, v0'); e('v_and_b32 v3, 15, v0'); e('v_lshrrev_b32 v4, 4, v2')
    e('v_lshrrev_b32 v5, 2, v3'); e('v_and_b32 v6, 3, v3')
    ACC, NST, BF, AF, AA = 0, 4, 96, 192, 224
    NW = OPT['nw']
    VO, VWO, L16, VOUT, VO2 = 228, 229, 230, 231, 232
    RING = 4096 * NW
    e(f'v_lshlrev_b32 v{L16}, 4, v2')
    e(f'v_lshl_add_u32 v{VO}, v1, 15, v{L16}')
    e('v_lshrrev_b32 v7, 3, v2'); e('v_lshl_add_u32 v7, v1, 10, v7'); e('v_mul_u32_u24 v7, 1152, v7')
    e('v_and_b32 v8, 7, v2'); e('v_lshlrev_b32 v9, 1, v4'); e('v_xor_b32 v8, v8, v9')
    e(f'v_lshl_add_u32 v{VWO}, v8, 4, v7')
    e(f's_mul_i32 s5, s4, {RING}')
    e('s_and_b32 s3, s4, 1'); e('s_mul_i32 s3, s3, 393216')
    for r in range(3): e(f's_add_u32 s{40+r}, s3, {r*131072}')
    e('s_sub_u32 s3, 393216, s3')
    for r in range(3): e(f's_add_u32 s{43+r}, s3, {r*131072}')
    e('s_mov_b32 s53, 0')
    e('s_waitcnt lgkmcnt(0)')
    e('s_cmp_eq_u32 s50, 0'); e('s_cselect_b64 s[8:9], s[8:9], s[10:11]')
    e('s_lshl_b32 s3, s52, 7'); e('s_add_u32 s8, s8, s3'); e('s_addc_u32 s9, s9, 0')
    srd(P, SWO, 8, 9, 4095 * 1152 + 128)
    e('s_mul_i32 s3, s50, 72'); e('s_mul_i32 s26, s51, 6'); e('s_add_u32 s3, s3, s26'); e('s_lshl_b32 s3, s3, 17')
    e('s_mov_b64 s[16:17], s[14:15]')
    e('s_add_u32 s14, s14, s3'); e('s_addc_u32 s15, s15, 0'); srd(P, SO2, 14, 15, 6 * 131072)
    e('s_mov_b32 s56, s53')
    def kstep(cnt, dst):
        e(f's_and_b32 {dst}, {cnt}, 31'); e(f's_add_u32 {cnt}, {cnt}, 1'); e(f's_and_b32 s3, {cnt}, 4'); e(f's_bitcmp1_b32 {cnt}, 6')
        e(f's_cselect_b32 s57, 4, 0'); e('s_xor_b32 s3, s3, s57'); e(f's_add_u32 {cnt}, {cnt}, s3')
        e(f's_cmp_eq_u32 {cnt}, 32'); e(f's_cselect_b32 {cnt}, 68, {cnt}')
    def wpieces(s):
        def pw(i):
            def f():
                if i == 0:
                    kstep('s56', 's54'); e('s_mul_i32 s54, s54, 36864')
                e(f's_add_u32 m0, s5, {(s % NW)*4096 + i*1024}')
                e(f's_add_u32 s26, s54, {8*i*1152}')
                P.vmem(f'buffer_load_dwordx4 v{VWO}, s[{SWO}:{SWO+3}], s26 offen {OPT["wo_pol"]} lds', ('W', s))
            return f
        return [pw(i) for i in range(4)]
    def opieces(s):
        def po(r):
            def f():
                if r == 0:
                    kstep('s53', 's55'); e('s_lshl_b32 s55, s55, 10'); e(f'v_add_u32 v{VO2}, s55, v{VO}')
                P.vmem(f'buffer_load_dwordx4 {vr(BF+(s % NST)*24+4*r,4)}, v{VO2}, s[{SO2}:{SO2+3}], s{40+r} offen {OPT["o_ld"]}', ('L', s))
            return f
        return [po(r) for r in range(6)]
    e('v_lshl_add_u32 v7, v4, 2, v5'); e('v_lshrrev_b32 v8, 1, v7'); e('v_and_b32 v8, 3, v8')
    e('v_and_b32 v9, 2, v1'); e('v_xor_b32 v8, v8, v9'); e('v_lshlrev_b32 v8, 5, v8')
    e('v_lshl_or_b32 v8, v6, 3, v8'); e('v_lshl_add_u32 v8, v7, 7, v8')
    e(f'v_mul_u32_u24 v9, {RING}, v1'); e(f'v_add_u32 v{AA}, v8, v9')
    for k in range(1, 4): e(f'v_xor_b32 v{AA+k}, {k<<5}, v{AA}')
    e('v_mul_u32_u24 v7, 2304, v3'); e('v_lshl_add_u32 v7, v4, 4, v7')
    e('s_and_b32 s3, s4, 1'); e('s_mul_i32 s3, s3, 110592'); e('s_lshr_b32 s26, s4, 1'); e('s_lshl_b32 s26, s26, 6'); e('s_add_u32 s3, s3, s26')
    e(f'v_add_u32 v{VOUT}, s3, v7')
    e('s_mul_i32 s3, s51, 221184'); e('s_mul_i32 s26, s50, 1152'); e('s_add_u32 s3, s3, s26')
    e('s_lshl_b32 s26, s52, 7'); e('s_add_u32 s3, s3, s26')
    e('s_add_u32 s12, s12, s3'); e('s_addc_u32 s13, s13, 0'); srd(P, SOUT, 12, 13, 95 * 2304 + 128)
    e('s_mul_i32 s3, s51, 43'); e('s_lshr_b32 s3, s3, 6')
    e('s_mul_i32 s26, s51, 6'); e('s_add_u32 s26, s26, 5'); e('s_mul_i32 s26, s26, 57'); e('s_lshr_b32 s26, s26, 9')
    FLA, FLV, TAG = 233, 236, 235
    e('v_mov_b32 v96, s3'); e('v_mov_b32 v97, s26'); e(f'v_and_b32 v98, 64, v{L16}'); e('v_cmp_eq_u32 vcc, 0, v98'); e('s_nop 1')
    e('v_cndmask_b32 v96, v97, v96, vcc')
    e('s_lshl_b32 s3, s50, 5'); e('s_add_u32 s3, s3, s4'); e('s_lshl_b32 s3, s3, 2')
    e('v_lshlrev_b32 v96, 4, v96'); e(f'v_bfe_u32 v97, v{L16}, 4, 2'); e('v_add3_u32 v96, v96, v97, s3')
    e('v_lshlrev_b32 v96, 7, v96'); e(f'v_add_u32 v{FLA}, {FLAGOFF + 64}, v96')
    for i in range(10): e(f'v_mov_b32 v{i}, 0')
    def poll():
        sp = P.newlab('fl'); P.lab(sp)
        e('s_sleep 4'); e(f'global_load_dword v{FLV}, v{FLA}, s[16:17] sc1'); e('s_waitcnt vmcnt(0)')
        e(f'v_cmp_ne_u32 vcc, v{TAG}, v{FLV}'); e(f's_cbranch_vccnz {sp}')
    P.vmem(f'global_load_dword v{FLV}, v{FLA}, s[16:17] sc1', 'f')
    for s in range(OPT['nw0']):
        for f in wpieces(s): f()
    P.wait(vm='f')
    P.ool([f'v_cmp_ne_u32 vcc, v{TAG}, v{FLV}'], 's_cbranch_vccnz', poll, lambda w, it: False)
    stamp(P, 5, not OPT['ts2'])
    for s in range(NST):
        for f in opieces(s): f()
        if s == 0:
            for s2 in range(OPT['nw0'], NW):
                for f in wpieces(s2): f()
    def rdA2(s, k, hf):
        b = AF + (s % 2) * 16 + 4 * k + 2 * hf
        return lambda: P.ds(f'ds_read_b64_tr_b16 {vr(b,2)}, v{AA+k} offset:{(s % NW)*4096 + 2048*hf}', ('A', s))
    P.wait(vm=('L', 0))
    for k in range(4):
        rdA2(0, k, 0)(); rdA2(0, k, 1)()
    P.wait(vm=('L', 2))
    P.vm = []
    for s in range(-NST, 0):
        P.vm += [(('W', s + NW), False)] * 4 + [(('L', s + NST), False)] * 6
    while P.vm[0][0] != ('W', 1 - NST + NW): P.vm.pop(0)
    NIT = 32 // NW
    def body():
        for s in range(NW):
            st = s % NST
            if s == 0:
                e(f's_cmp_eq_u32 s27, {NIT - 1}'); e(f's_cselect_b32 s59, {BIG}, 0'); e(f'v_add_u32 v{VWO}, s59, v{VWO}')
            if s == NW - NST: e(f'v_add_u32 v{VO}, s59, v{VO}')
            pw, po = wpieces(s + NW), opieces(s + NST)
            fill = {k: [] for k in range(24)}
            for i in range(4): fill[(0, 1, 2, 2)[i]].append(pw[i])
            for r in range(6): fill[4*r + 3].append(po[r])
            rd = [rdA2(s + 1, k, hf) for k in range(4) for hf in range(2)]
            fill[8].insert(0, lambda: P.wait(vm=('L', s + 1)))
            for k in range(8): fill[8 + k + (k > 1) + (k > 4)].append(rd[k])
            CS = (16 - NST) % NW
            if s == (CS - 3) % NW:
                def ld():
                    e(f's_cmp_eq_u32 s27, {(16 - NST - 3) // NW}'); e('s_cselect_b32 s57, 64, 0'); e(f'v_subrev_u32 v{FLA}, s57, v{FLA}')
                    P.vmem(f'global_load_dword v{FLV}, v{FLA}, s[16:17] sc1', ('F', s))
                fill[0].insert(0, ld)
            if s == CS:
                def ck():
                    P.wait(vm=('F', (CS - 3) % NW))
                    P.ool([f'v_cmp_ne_u32 vcc, v{TAG}, v{FLV}'], 's_cbranch_vccnz', poll, lambda w, it: False)
                fill[2].append(ck)
            P.wait(lg=('A', s))
            for n in range(24):
                r, k = n // 4, n % 4
                mfma(P, ACC + (r*4 + k)*4, AF + (s % 2)*16 + 4*k, BF + st*24 + 4*r)
                for f in fill[n]: f()
    i0 = len(P.cur)
    P.loop(NIT, 's27', body, lambda t: (t[0], t[1] - NW) + tuple(t[2:]))
    if OPT['abl3']:
        ab = OPT['abl3'].split()
        lp = P.cur[-1]
        lp.body = [x for x in lp.body if not (('o' in ab and x.kind == 'vload') or ('w' in ab and x.kind == 'dma') or ('mfma' in ab and x.kind == 'mfma') or ('ds' in ab and x.kind == 'dsr'))]
    stamp(P, 6, not OPT['ts2'])
    P.wait(lg='all', vm='all')
    e('s_barrier')
    for q in range(1, 4):
        e(f's_xor_b32 s3, s4, {q}'); e('s_mul_i32 s3, s3, 18432'); e(f's_add_u32 s3, s3, {(q-1)*6144}')
        e(f'v_add_u32 v{AA+q}, s3, v{L16}')
        a, bq = q & 1, q >> 1
        for r in range(3):
            for k in range(2):
                P.ds(f'ds_write_b128 v{AA+q}, {vr(ACC + ((3*a+r)*4 + 2*bq + k)*4, 4)} offset:{(r*2+k)*1024}', 'w')
        if q == 2: P.wait(lg='all')
    e('s_mul_i32 s3, s4, 18432'); e(f'v_add_u32 v{AA}, s3, v{L16}')
    P.wait(lg='all'); e('s_barrier')
    RB = 96
    for q in range(3):
        for t in range(6):
            P.ds(f'ds_read_b128 {vr(RB + (q*6+t)*4, 4)}, v{AA} offset:{q*6144 + t*1024}', ('r', q, t))
            if len(P.lg) >= 12: P.wait(lg=P.lg[5])
    P.wait(lg='all')
    for r in range(3):
        for k in range(2):
            d = ACC + (r*4 + k)*4
            for q in range(3):
                for i in range(4): e(f'v_add_f32 v{d+i}, v{d+i}, v{RB + (q*6 + r*2 + k)*4 + i}')
        X, Y, D = ACC + (r*4)*4, ACC + (r*4+1)*4, AF + 4*r
        e(f'v_cvt_pk_bf16_f32 v{D}, v{X}, v{X+1}'); e(f'v_cvt_pk_bf16_f32 v{D+1}, v{X+2}, v{X+3}')
        e(f'v_cvt_pk_bf16_f32 v{D+2}, v{Y}, v{Y+1}'); e(f'v_cvt_pk_bf16_f32 v{D+3}, v{Y+2}, v{Y+3}')
        e(f'v_permlane32_swap_b32 v{D}, v{D+2}'); e(f'v_permlane32_swap_b32 v{D+1}, v{D+3}')
        e(f'v_permlane16_swap_b32 v{D}, v{D+2}'); e(f'v_permlane16_swap_b32 v{D+1}, v{D+3}')
        e(f's_mov_b32 s26, {r*16*2304}')
        P.vmem(f'buffer_store_dwordx4 {vr(D,4)}, v{VOUT}, s[{SOUT}:{SOUT+3}], s26 offen {OPT["out_st"]}', 'st')
    P.lab('.Lk1_fin')

HDR = open('cdna_kernels/' + NAME + '.s.ref').read().split('; Override launch')[0]

def kd(name, vg, sg):
    return f""".p2align 6
.amdhsa_kernel {name}
  .amdhsa_next_free_vgpr {vg}
  .amdhsa_next_free_sgpr {sg}
  .amdhsa_accum_offset {(vg+3)//4*4}
  .amdhsa_group_segment_fixed_size 0
  .amdhsa_kernarg_size 104
  .amdhsa_user_sgpr_count 2
  .amdhsa_user_sgpr_kernarg_segment_ptr 1
  .amdhsa_system_sgpr_workgroup_id_x 1
.end_amdhsa_kernel
"""

def build():
    P = gen_k1()
    out = HDR
    out += f'; @launch grid=(256,1,1) block=(512,1,1) lds={K1_LDS}\n'
    out += '.amdgcn_target "amdgcn-amd-amdhsa--gfx950"\n.text\n'
    P.pad_hazards()
    if not OPT["abl"] and not OPT["abl2"] and not OPT["abl3"] and not OPT.get("cyc"): P.check_loads()
    sys.stderr.write(f'{dict(P.count(0))}\n')
    out += f'.globl {KNAME}\n.p2align 8\n.type {KNAME},@function\n{KNAME}:\n' + '\n'.join(P.emit()) + '\n'
    out += '.Lcode_end:\n'
    out += '.section .rodata,"a"\n' + kd(KNAME, 256, 102)
    return out

if __name__ == '__main__':
    dst = 'cdna_kernels/' + NAME + '.s'
    for a in sys.argv[1:]:
        if '=' in a:
            k, v = a.split('=', 1)
            if k == 'out': dst = v
            elif isinstance(OPT[k], bool): OPT[k] = (v == '1')
            elif isinstance(OPT[k], int): OPT[k] = int(v)
            else: OPT[k] = v.replace('+', ' ')
    open(dst, 'w').write(build())
```

```python
import sys, struct, math, re
from dsl import *

NAME = 'concat_heads__mha_block_cached__gqa_block_cached__near_ridge'
def fbits(x): return struct.unpack('<I', struct.pack('<f', x))[0]
CSC = math.log2(math.e) / math.sqrt(128.0)
BIG = 0x20000000

OPT = dict(kv_pol='nt', x_pol='', w_pol='', o_st='sc1', o_ld='sc1', wo_pol='', out_st='', ts=False, ts2=False, clk=False,
           qrot=True, k2a=1, k2b=0, cpf=True, abl='', abl2='', t0=22, lak=4, w2=True, cyc=False, krot=0, slp=1, nw=8, nw0=2, pa=27, dyn=False, nf=True, rtc=1, trace=False, abl3='', wpf=True, spread=True, dla=4, ela=4, la=4, kvq='5,8,11,14', st='', sti=1, hprio=0, post4=3)

def mfma(P, d, a, b, first=False):
    c = '0' if first else vr(d, 4)
    P.e(f'v_mfma_f32_16x16x32_bf16 {vr(d,4)}, {vr(a,4)}, {vr(b,4)}, {c}')

def mfma32(P, d, a, b, first=False):
    c = '0' if first else vr(d, 16)
    P.e(f'v_mfma_f32_32x32x16_bf16 {vr(d,16)}, {vr(a,4)}, {vr(b,4)}, {c}')

def femit(P, dst, x, t1, t2):
    P.e(f'v_lshrrev_b32 v{t1}, 3, v{x}')
    P.e(f'v_lshrrev_b32 v{t2}, 2, v{x}')
    P.e(f'v_xor_b32 v{t2}, v{t2}, v{t1}')
    P.e(f'v_and_b32 v{t2}, 1, v{t2}')
    P.e(f'v_lshl_or_b32 v{t1}, v{t2}, 1, v{t1}')
    P.e(f'v_and_b32 v{dst}, 3, v{x}')
    P.e(f'v_lshl_or_b32 v{dst}, v{dst}, 2, v{t1}')

def srd(P, d, lo, hi, size):
    P.e(f's_mov_b32 s{d}, s{lo}')
    P.e(f's_and_b32 s{d+1}, s{hi}, 0xffff')
    P.e(f's_mov_b32 s{d+2}, {size}')
    P.e(f's_mov_b32 s{d+3}, 0x20000')

def stamp(P, idx, cond=True):
    if OPT['ts'] and cond:
        P.e(f's_memrealtime s[{60+2*idx}:{61+2*idx}]')
        if OPT['clk'] and idx in (3, 4): P.e(f's_memtime s[{70+2*idx}:{71+2*idx}]')
        if OPT['clk'] and idx in (1, 2): P.e(f's_memtime s[{74+2*idx}:{75+2*idx}]')
        if OPT['clk'] and idx == 2: P.e('s_waitcnt lgkmcnt(0)'); P.e('s_sub_u32 s80, s78, s76')
        P.e('s_waitcnt lgkmcnt(0)')
def stamp_it(P, idx, itv):
    if OPT['ts'] and OPT['ts2']:
        def f():
            P.e(f'{"s_memtime" if OPT["cyc"] else "s_memrealtime"} s[{60+2*idx}:{61+2*idx}]')
            if not OPT['cyc']: P.e('s_waitcnt lgkmcnt(0)')
        P.ool([f's_cmp_eq_u32 s27, {itv}'], 's_cbranch_scc1', f, lambda w, it: it == itv)
def stamps_out(P, off, wreg, wg_shift):
    e = P.e
    P.wait(vm='all')
    stamp(P, 7)
    if OPT['clk']:
        e('s_sub_u32 s72, s78, s76'); e('s_mov_b32 s73, 0'); e('s_mov_b32 s70, s80'); e('s_mov_b32 s71, 0')
    if False:
        e('s_sub_u32 s70, s12, s10'); e('s_mov_b32 s71, 0')
        if P.name == 'k1':
            e('s_sub_u32 s72, s16, s14'); e('s_mov_b32 s73, 0')
    e('s_load_dwordx2 s[24:25], s[0:1], 96'); e('s_waitcnt lgkmcnt(0)')
    e(f's_add_u32 s24, s24, {off}'); e('s_addc_u32 s25, s25, 0')
    e(f's_lshl_b32 s3, s2, {wg_shift}'); e(f's_lshl_b32 s26, {wreg}, 6'); e('s_add_u32 s3, s3, s26')
    e('v_mov_b32 v0, s3')
    for k in range(8):
        e(f'v_mov_b32 v2, s{60+2*k}'); e(f'v_mov_b32 v3, s{61+2*k}')
        e(f'global_store_dwordx2 v0, v[2:3], s[24:25] offset:{8*k}')
        e('s_waitcnt vmcnt(0)')

def code_prefetch(P, start, end, dst):
    e = P.e
    e('s_getpc_b64 s[56:57]')
    P.lab(f'.Lpc_{P.name}')
    e(f's_sub_u32 s56, s56, .Lpc_{P.name}-{start}'); e('s_subb_u32 s57, s57, 0')
    e('v_lshlrev_b32 v12, 7, v0')
    e(f's_mov_b32 s3, {end}-{start}-4')
    e(f'v_min_u32 v13, s3, v12')
    P.vmem(f'global_load_dword v{dst}, v13, s[56:57]', 'pf')

STG, XB = 25600, 9216
QB0, NQ = 0, 5
XCH = 131072
FLG = 161792
K1_LDS = 163840
SX, SW, SK, SV, SO = 28, 32, 36, 40, 44
FW, FRL, FRC, FT, FV, LANE = 186, 187, 188, 189, 190, 191

def sidx(s): return (s + 2) % NQ

class Flags:
    def __init__(s, P): s.P = P
    def post(s, val, off=0):
        s.P.e(f'v_mov_b32 v{FV}, {val}')
        s.P.ds(f'ds_write_b32 v{FW}, v{FV} offset:{off}', 'fw')
    def read(s, ad): s.P.ds(f'ds_read_b32 v{FT}, v{ad}', 'fr')
    def check(s, ad, val):
        P = s.P
        P.wait(lg='fr')
        def spin():
            sp = P.newlab('sp'); P.lab(sp)
            if OPT['slp']: P.e(f's_sleep {OPT["slp"]}')
            P.e(f'ds_read_b32 v{FT}, v{ad}'); P.e('s_waitcnt lgkmcnt(0)')
            P.e(f'v_cmp_gt_u32 vcc, {val}, v{FT}'); P.e('s_nop 0'); P.e(f's_cbranch_vccnz {sp}')
        P.ool([f'v_cmp_gt_u32 vcc, {val}, v{FT}'], 's_cbranch_vccnz', spin, lambda w, it: False)
    def need(s, ad, val): s.read(ad); s.check(ad, val)

KNAME = NAME + '_kernel'
FLAGOFF = 0x2000000
NONCE = FLG + 1024

def gen_k1():
    P = Prog('k1', 's4'); e = P.e
    F = Flags(P)
    e('s_cmp_ge_u32 s2, 256'); e('s_cbranch_scc1 .Lk1_end')
    e('s_load_dwordx8 s[8:15], s[0:1], 0')
    e('s_load_dwordx8 s[16:23], s[0:1], 40')
    e('s_load_dwordx2 s[24:25], s[0:1], 96')
    e('s_load_dwordx2 s[82:83], s[0:1], 88')
    if OPT['ts']:
        e('s_memrealtime s[60:61]')
        for k in range(62, 76): e(f's_mov_b32 s{k}, 0')
    if OPT['cpf']: code_prefetch(P, KNAME, '.Lcode_end', 87)
    e('v_lshrrev_b32 v14, 6, v0')
    e('v_readfirstlane_b32 s87, v14')
    e(f'v_and_b32 v{LANE}, 63, v0')
    e('s_and_b32 s4, s87, 3'); e('s_lshr_b32 s81, s87, 2')
    e('s_and_b32 s48, s2, 7'); e('s_lshr_b32 s49, s2, 3')
    e('s_lshr_b32 s50, s48, 2')
    e('s_and_b32 s51, s48, 3'); e('s_lshl_b32 s51, s51, 3')
    e('s_and_b32 s55, s49, 3'); e('s_lshl_b32 s55, s55, 1'); e('s_add_u32 s51, s51, s55')
    e('s_lshr_b32 s52, s49, 2')
    e(f's_mov_b32 s7, {fbits(CSC):#x}')
    e(f'v_and_b32 v2, 31, v0'); e('v_lshlrev_b32 v2, 2, v2'); e('v_lshl_add_u32 v2, v14, 7, v2'); e(f'v_add_u32 v{FW}, {FLG}, v2')
    e('v_and_b32 v2, 3, v0'); e('v_lshlrev_b32 v2, 7, v2'); e(f'v_add_u32 v{FRL}, {FLG + 1536}, v2')
    e('v_and_b32 v2, 7, v0'); e('v_lshlrev_b32 v2, 7, v2'); e(f'v_add_u32 v{FRC}, {FLG}, v2')
    e(f'v_mov_b32 v{FV}, 0')
    e(f'ds_write_b32 v{FW}, v{FV}'); e(f'ds_write_b32 v{FW}, v{FV} offset:1024')
    def role(m):
        (gen_main if m else gen_helper)(P, F)
        P.lg = []; P.vm = []
    P.variant(None, role, pred=lambda w, it: (w & 4) == 0, cmp='s_cmp_eq_u32 s81, 0')
    if OPT['ts']:
        e('s_waitcnt vmcnt(0) lgkmcnt(0)')
        stamps_out(P, 0x4000000, 's87', 9)
    P.lab('.Lk1_end')
    e('s_endpgm')
    return P

def o_srd(P):
    e = P.e
    e('s_mul_i32 s3, s50, 72'); e('s_mul_i32 s26, s52, 9'); e('s_add_u32 s3, s3, s26'); e('s_lshl_b32 s3, s3, 7')
    e('s_lshl_b32 s26, s51, 2'); e('s_add_u32 s3, s3, s26'); e('s_lshl_b32 s3, s3, 10')
    e('s_add_u32 s24, s24, s3'); e('s_addc_u32 s25, s25, 0'); srd(P, SO, 24, 25, (8 * 128 + 8) * 1024)

def qrot(P):
    e = P.e
    if OPT['qrot']:
        e('s_add_u32 s53, s55, s52'); e('s_and_b32 s53, s53, 7'); e('s_mul_i32 s53, s53, 9'); e('s_lshr_b32 s53, s53, 2')
    else: e('s_mov_b32 s53, 0')

def latest(P, tags):
    need = [t for t in tags if t in P.lg]
    if need: P.wait(lg=max(need, key=lambda t: len(P.lg) - 1 - P.lg[::-1].index(t)))

def ablate(items, ab):
    out = []
    for x in items:
        if isinstance(x, Ins):
            if 'mfma' in ab and x.kind == 'mfma': continue
            if 'valu' in ab and x.op in ('v_exp_f32', 'v_add_f32', 'v_cvt_pk_bf16_f32', 'v_max3_f32'): continue
            if 'exp' in ab and x.op in ('v_exp_f32', 'v_add_f32', 'v_cvt_pk_bf16_f32'): continue
            if 'pv' in ab and x.kind == 'mfma' and re.match(r'v\[(0|16|32|48):', x.ops[0]): continue
            if 'tr' in ab and 'tr_b16' in x.op: continue
            if 'ds' in ab and x.kind == 'dsr' and f'v{FT},' not in x.text: continue
            if 'dma' in ab and x.kind == 'dma' and ' nt ' in x.text: continue
            if 'st' in ab and x.kind == 'vstore' and 's[44:47]' in x.text: continue
            if 'qdma' in ab and x.kind == 'dma' and ' nt ' not in x.text: continue
        elif isinstance(x, Variant): x.A = ablate(x.A, ab); x.B = ablate(x.B, ab)
        elif isinstance(x, Loop): x.body = ablate(x.body, ab)
        out.append(x)
    return out

def gen_main(P, F):
    e = P.e
    O, S, FB, AK, AV, QA, QBr = 0, 64, 128, 160, 168, 192, 224
    VST, M_, L_, LC, R_, T1 = 152, 164, 166, 154, 156, 158
    AW, AX, BFm, AW2, VW, SAV = 160, 168, 170, 192, 202, 204
    t = 20
    e(f'v_and_b32 v{t}, 15, v{LANE}'); e(f'v_lshrrev_b32 v{t+1}, 4, v{LANE}')
    for u in range(2):
        e('s_lshl_b32 s3, s4, 3'); e(f's_add_u32 s3, s3, {4*u}'); e(f'v_add_u32 v{t+4}, s3, v{t+1}'); e(f'v_and_b32 v{t+5}, 15, v{t+4}')
        femit(P, t+6, t+5, t+7, t+8)
        e(f'v_xor_b32 v{t+6}, v{t+6}, v{t}'); e(f'v_lshlrev_b32 v{t+6}, 4, v{t+6}'); e(f'v_lshl_add_u32 v{VW+u}, v{t+4}, 13, v{t+6}')
    e('s_lshl_b32 s6, s4, 11')
    qrot(P); e('s_lshl_b32 s54, s53, 18')
    e('s_waitcnt lgkmcnt(0)')
    e('s_cmp_eq_u32 s50, 0'); e('s_cselect_b64 s[14:15], s[14:15], s[22:23]')
    e('s_lshl_b32 s3, s51, 8'); e('s_add_u32 s14, s14, s3'); e('s_addc_u32 s15, s15, 0')
    srd(P, SW, 14, 15, 575 * 8192 + 512)
    def wpiece(s, k):
        hd, u = k // 2, k % 2
        def pre(): e(f's_add_u32 m0, s6, {QB0 + sidx(s)*STG + XB + hd*8192 + u*1024 - hd*256}')
        def post():
            P.vmem(f'buffer_load_dwordx4 v{VW+u}, s[{SW}:{SW+3}], s54 offen offset:{hd*256} {OPT["w_pol"]} lds', ('q', s))
        return pre, post
    def wadv(): e('s_add_u32 s54, s54, 262144'); e(f's_cmp_eq_u32 s54, {18*262144}'); e('s_cselect_b32 s54, 0, s54')
    for s in range(2):
        for k in range(4): a_, b_ = wpiece(s, k); a_(); b_()
        wadv()
    e(f'v_lshrrev_b32 v{t+2}, 2, v{t}'); e(f'v_and_b32 v{t+3}, 3, v{t}')
    def traddr(dst, shift, base):
        e(f'v_lshl_add_u32 v{t+4}, v{t+1}, {shift}, v{t+2}'); e(f'v_and_b32 v{t+5}, 15, v{t+4}'); femit(P, t+6, t+5, t+7, t+8)
        e(f'v_lshrrev_b32 v{t+7}, 1, v{t+3}'); e(f'v_xor_b32 v{t+6}, v{t+6}, v{t+7}')
        e(f'v_lshlrev_b32 v{t+6}, 4, v{t+6}'); e(f'v_and_b32 v{t+7}, 1, v{t+3}'); e(f'v_lshl_or_b32 v{t+6}, v{t+7}, 3, v{t+6}')
        e(f'v_lshl_add_u32 v{t+6}, v{t+4}, 8, v{t+6}'); e(f'v_add_u32 v{dst}, {base}, v{t+6}')
    traddr(AW, 3, QB0 + XB)
    for d in range(1, 8): e(f'v_xor_b32 v{AW+d}, {d << 5}, v{AW}')
    e(f'v_sub_u32 v{t+6}, 4, v{t+2}'); e(f'v_and_b32 v{t+6}, 3, v{t+6}'); e(f'v_xor_b32 v{t+6}, v{t+6}, v{t+1}'); e(f'v_lshlrev_b32 v{t+6}, 4, v{t+6}')
    e(f'v_lshl_add_u32 v{t+6}, v{t}, 6, v{t+6}'); e(f's_add_u32 s3, s6, {QB0}'); e(f'v_add_u32 v{AX}, s3, v{t+6}')
    for k in range(9): e(f'v_add_u32 v{AW2+k}, {2*STG}, v{AW+k}')
    def qa(s): return (AW, sidx(s)*STG) if sidx(s) < 2 else (AW2, (sidx(s) - 2)*STG)
    traddr(SAV, 2, 32768)
    femit(P, t+6, t, t+7, t+8)
    e(f'v_xor_b32 v{t+6}, v{t+6}, v{t+1}'); e(f'v_lshlrev_b32 v{t+6}, 4, v{t+6}'); e(f'v_lshl_add_u32 v{FRC}, v{t}, 8, v{t+6}')
    o_srd(P)
    P.wait(vm=('q', 0))
    seq = [(s, hd, dt) for s in range(18) for hd in range(2) for dt in range(8)]
    NB, LA = 8, 5
    def rdA(i, hf):
        s, hd, dt = seq[i]; a, off = qa(s)
        P.ds(f'ds_read_b64_tr_b16 {vr(FB + 4*(i % NB) + 2*hf, 2)}, v{a + (dt ^ hf)} offset:{off + hd*8192 + 1024*hf}', ('A', i))
    def rdB(s, j):
        a, off = qa(s)
        P.ds(f'ds_read_b128 {vr(BFm + 8*(s % 2) + 4*j, 4)}, v{a + 8} offset:{off + 1024*j}', ('B', s, j))
    e('s_barrier')
    stamp(P, 1, not OPT['ts2'])
    rdB(0, 0); rdB(0, 1)
    for i in range(LA): rdA(i, 0); rdA(i, 1)
    for k in range(4): a_, b_ = wpiece(2, k); a_(); b_()
    wadv()
    i0 = len(P.cur)
    for i, (s, hd, dt) in enumerate(seq):
        k = i % 16
        WP = {1: 0, 3: 1, 5: 2, 7: 3}
        if k in WP and s + 3 < 18: wpiece(s + 3, WP[k])[0]()
        latest(P, [('A', i), ('B', s, 0), ('B', s, 1)])
        mfma(P, hd*64 + dt*8, FB + 4*(i % NB), BFm + 8*(s % 2), s == 0)
        if k in WP and s + 3 < 18: wpiece(s + 3, WP[k])[1]()
        if k == 8 and s + 3 < 18: wadv()
        if s < 17 and k == 16 - LA - 1:
            P.wait(vm=('q', s + 1)); e('s_barrier')
        if i + LA < len(seq): rdA(i + LA, 0)
        mfma(P, hd*64 + dt*8 + 4, FB + 4*(i % NB), BFm + 8*(s % 2) + 4, s == 0)
        if i + LA < len(seq): rdA(i + LA, 1)
        if s < 17:
            if k == 11: rdB(s + 1, 0)
            if k == 12: rdB(s + 1, 1)
        if i == len(seq) - 1: e('s_barrier')
    if OPT['abl']: P.cur[i0:] = ablate(P.cur[i0:], OPT['abl'].split())
    stamp(P, 2, not OPT['ts2'])
    P.wait(vm='all')
    e(f'v_mov_b32 v{AK}, v{FRC}')
    for u in range(1, 4): e(f'v_xor_b32 v{AK+u}, {u << 6}, v{AK}')
    e(f'v_mov_b32 v{AV}, v{SAV}')
    for d in range(1, 8): e(f'v_xor_b32 v{AV+d}, {d << 5}, v{AV}')
    e(f'v_lshlrev_b32 v{VST}, 4, v{LANE}')
    NB = 6
    PX = 176
    order = [('S', 0), ('S', 1), ('P', 2), ('S', 2), ('S', 3), ('P', 3), ('P', 0), ('P', 1)]
    pbase = lambda b, j: PX + 4*j if b == 3 else S + 16*b + 8*j
    mf, reads = [], []
    for kind, b in order:
        for k in range(8):
            if kind == 'S':
                tt, u = k // 4, k % 4
                reads.append((('K', b, k), 1, AK + u, b*8192 + tt*4096))
                mf.append([(S + 16*b + 8*j + 4*tt, QA + 16*j + 4*u, u == 0) for j in range(2)])
            else:
                reads.append((('V', b, k), 2, AV + k, b*8192))
                mf.append([(O + 32*j + 4*k, pbase(b, j), False) for j in range(2)])
    prev = lambda m: order[m // 8] in (('P', 2), ('P', 3))
    CHK, LA = 48, OPT['lak']
    def rd(i, it=0):
        tag, n, ad, off = reads[i]; b = FB + 4*(i % NB)
        if n == 1: P.ds(f'ds_read_b128 {vr(b,4)}, v{ad} offset:{off}', (it,) + tag)
        else:
            P.ds(f'ds_read_b64_tr_b16 {vr(b,2)}, v{ad} offset:{off}', (it,) + tag)
            P.ds(f'ds_read_b64_tr_b16 {vr(b+2,2)}, v{ad} offset:{off + 4096}', (it,) + tag)
    groups = [(b, j) for b in range(4) for j in range(2)]
    gb = {g: S + 16*g[0] + 8*g[1] for g in groups}
    sdone = {0: 7, 1: 15, 2: 31, 3: 39}
    dline = {0: 48, 1: 56, 2: 80, 3: 96}
    def valu_plan():
        T0 = OPT['t0']
        at = {m: [] for m in range(128)}
        for b in range(4):
            for k in range(8): at[min(sdone[b] + 1 + k, CHK - 1)].append(((b, k // 4), 'max', k % 4))
        for i, g in enumerate(groups):
            for k in range(8):
                m = T0 + 8*i + k
                at[m].insert(0, (g, 'exp', k))
                at[m + 1].append((g, 'add', k))
                if k % 2 == 1: at[m + 1].append((g, 'cvt', k // 2))
            assert T0 + 8*i + 8 < dline[g[0]] and T0 + 8*i > min(sdone[g[0]] + 1 + 4*g[1] + 3, CHK - 1)
        post = {m: [(1,) + o for o in at[m + 64]] + [(0,) + o for o in at[m]] for m in range(64)}
        for m in post: post[m].sort(key=lambda o: o[2] != 'exp')
        return post
    vpost = valu_plan()
    lc0 = [next(o for m in range(CHK) for o in vpost[m] if o[0] == 0 and o[2] == 'add' and o[1][1] == j) for j in range(2)]
    def vop(o, m, slow=False):
        lag, g, k_, k = o; r = gb[g]; j = g[1]
        if k_ == 'max': e(f'v_max3_f32 v{M_+j}, v{M_+j}, v{r+2*k}, v{r+2*k+1}')
        elif k_ == 'exp': e(f'v_exp_f32 v{r+k}, v{r+k}')
        elif k_ == 'cvt': e(f'v_cvt_pk_bf16_f32 v{pbase(*g)+k}, v{r+2*k}, v{r+2*k+1}')
        elif lag == 0 and m < CHK and not slow:
            e(f'v_mov_b32 v{LC+j}, v{r+k}' if o == lc0[j] else f'v_add_f32 v{LC+j}, v{LC+j}, v{r+k}')
        else: e(f'v_add_f32 v{L_+j}, v{L_+j}, v{r+k}')
    CK = {16 - LA - 1: 's90', 24 - LA - 1: 's91', 48 - LA - 1: 's92', 64 - LA - 1: 's93'}
    POST = {47: 's94', 49: 's95', 63: 's96'}
    def ostore(D, k): P.vmem(f'buffer_store_dwordx4 {vr(D + 4*k,4)}, v{VST}, s[{SO}:{SO+3}], s{88 if k < 4 else 99} offen offset:{(k % 4)*1024} {OPT["o_st"]}', 'st', optional=True)
    def slots(lo, hi, mode, events=True, zero=False):
        STS = {x: i + 1 for i, x in enumerate(OPT['st'].split(','))} if mode == 'fast' else {}
        skip = lambda m: (mode in ('first', 'redo') and prev(m)) or (mode == 'tail' and not prev(m))
        keep = lambda o: mode == 'fast' or (mode == 'first' and o[0] == 0) or (mode == 'tail' and o[0] == 1)
        for m in range(lo, hi):
            ops = [o for o in vpost[m] if keep(o)]
            if not skip(m):
                w2 = m + 1 if (OPT['w2'] and m % 2 == 0 and (0,) + reads[m + 1][0] in P.lg) else m
                P.wait(lg=(0,) + reads[w2][0])
                mfma(P, mf[m][0][0], FB + 4*(m % NB), mf[m][0][1], mf[m][0][2] or zero)
            if ops: vop(ops.pop(0), m)
            if not skip(m): mfma(P, mf[m][1][0], FB + 4*(m % NB), mf[m][1][1], mf[m][1][2] or zero)
            if f'{m}' in STS: stamp_it(P, STS[f'{m}'], OPT['sti'])
            if events:
                if m + 2 in CK and not (mode == 'first' and CK[m + 2] == 's90'): F.read(FRL)
                if m in CK and not (mode == 'first' and CK[m] == 's90'): F.check(FRL, CK[m])
                if m == 45 and mode == 'fast': P.ool(['s_cmp_eq_u32 s27, 6'], 's_cbranch_scc1', lambda: e('s_waitcnt vmcnt(0)'), lambda w, it: it == 6)
                if m in POST: F.post(POST[m])
            i = m + LA
            if i >= 64:
                if events: rd(i - 64, 1)
            elif not skip(i) and not (mode in ('redo', 'tail') and i >= CHK): rd(i)
            for o in ops: vop(o, m)
            if events and m % 16 == 6 and mode != 'first':
                P.ool(['s_cmp_eq_u32 s27, 5'], 's_cbranch_scc1', lambda: (ostore(QBr, m // 16 * 2), ostore(QBr, m // 16 * 2 + 1)), lambda w, it: it == 5)
            if events and 50 <= m < 54: e(f'v_xor_b32 v{AK + m - 50}, 0x10000, v{AK + m - 50}')
            if events and m == 47 - LA and mode != 'first':
                for k in range(8): e(f'v_xor_b32 v{AV + k}, 0x10000, v{AV + k}')
    F.need(FRL, 19)
    for i in range(LA):
        if i == LA - 1: F.post(18)
        rd(i)
    for hd in range(2):
        for k in range(0, 64, 2): e(f'v_pk_mul_f32 {vr(hd*64+k,2)}, {vr(hd*64+k,2)}, s[6:7] op_sel:[0,1]')
        qs = []
        for j in range(2):
            for u in range(4):
                q, X, Y = (QA, QBr)[hd] + 16*j + 4*u, hd*64 + 16*u + 4*j, hd*64 + 16*u + 8 + 4*j
                e(f'v_cvt_pk_bf16_f32 v{q}, v{X}, v{X+1}'); e(f'v_cvt_pk_bf16_f32 v{q+1}, v{X+2}, v{X+3}')
                e(f'v_cvt_pk_bf16_f32 v{q+2}, v{Y}, v{Y+1}'); e(f'v_cvt_pk_bf16_f32 v{q+3}, v{Y+2}, v{Y+3}')
                qs.append(q)
        for sw in ('32', '16'):
            for q in qs: e(f'v_permlane{sw}_swap_b32 v{q}, v{q+2}'); e(f'v_permlane{sw}_swap_b32 v{q+1}, v{q+3}')
    def reset():
        for j in range(2): e(f'v_mov_b32 v{L_+j}, 0'); e(f'v_mov_b32 v{R_+j}, 0')
        e(f's_mov_b32 s7, {fbits(64.0):#x}')
    def mreset():
        for j in range(2): e(f'v_mov_b32 v{M_+j}, {fbits(-1e30):#x}')
    reset(); mreset()
    e(f's_mov_b32 s89, {fbits(64.0):#x}'); e('s_mov_b32 s90, 19'); e('s_mov_b32 s94, 19'); e('s_mov_b32 s97, 0xee')
    e('s_lshl_b32 s88, s4, 18'); e('s_add_u32 s99, s88, 131072')
    stamp(P, 3, not OPT['ts2'])
    def xlane(R, op):
        for sw in ('32', '16'):
            for j in range(2): e(f'v_mov_b32 v{T1+j}, v{R+j}')
            for j in range(2): e(f'v_permlane{sw}_swap_b32 v{R+j}, v{T1+j}')
            for j in range(2): e(f'{op} v{R+j}, v{R+j}, v{T1+j}')
    def finish(D, store):
        xlane(L_, 'v_add_f32')
        for j in range(2): e(f'v_rcp_f32 v{L_+j}, v{L_+j}')
        for j in range(2):
            for u in range(4):
                a = O + 32*j + 8*u
                for k in range(0, 8, 2): e(f'v_pk_mul_f32 {vr(a+k,2)}, {vr(a+k,2)}, {vr(L_,2)} ' + ('op_sel:[0,1]' if j else 'op_sel_hi:[1,0]'))
                for k in range(4): e(f'v_cvt_pk_bf16_f32 v{D + 16*j + 4*u + k}, v{a+2*k}, v{a+2*k+1}')
                if store: ostore(D, 4*j + u)
    def body():
        for k in range(1, 4): e(f's_add_u32 s{90+k}, s90, {k}')
        for k in range(1, 3): e(f's_add_u32 s{94+k}, s94, {k}')
        if OPT['st'] == 'I':
            for k in range(1, 7): stamp_it(P, k, k + OPT['sti'])
        def switch():
            for k in range(32): e(f'v_mov_b32 v{QA+k}, v{QBr+k}')
            mreset()
        P.ool(['s_cmp_eq_u32 s27, 4'], 's_cbranch_scc1', switch, lambda w, it: it == 4)
        P.ool(['s_cmp_eq_u32 s27, 0'], 's_cbranch_scc1', lambda: slots(0, CHK, 'first'), lambda w, it: it == 0, lambda: slots(0, CHK, 'fast'))
        def fin_a():
            finish(QBr, False); reset()
        P.ool(['s_cmp_eq_u32 s27, 4'], 's_cbranch_scc1', fin_a, lambda w, it: it == 4)
        e(f'v_max_f32 v{T1}, abs(v{M_}), abs(v{M_+1})')
        e(f'v_cmp_lt_f32 vcc, s7, v{T1}')
        def pv(mode):
            P.ool(['s_bitcmp0_b32 s97, s27'], 's_cbranch_scc1', lambda: slots(CHK, CHK + 8, mode, zero=True), lambda w, it: it % 4 == 0,
                  lambda: slots(CHK, CHK + 8, mode))
            slots(CHK + 8, 64, mode)
        def rest(fast):
            if fast:
                for j in range(2): e(f'v_add_f32 v{L_+j}, v{L_+j}, v{LC+j}')
                pv('fast'); return
            P.wait(lg='all')
            for i in range(LA): rd(i)
            slots(0, CHK, 'redo', events=False)
            xlane(M_, 'v_max_f32')
            for j in range(2):
                e(f'v_sub_f32 v{T1+j}, v{R_+j}, v{M_+j}'); e(f'v_min_f32 v{T1+j}, s89, v{T1+j}'); e(f'v_exp_f32 v{T1+j}, v{T1+j}')
                e(f'v_mov_b32 v{R_+j}, v{M_+j}')
            e('s_mov_b32 s7, -1.0')
            for j in range(2): e(f'v_mul_f32 v{L_+j}, v{L_+j}, v{T1+j}')
            for g in groups:
                for k in range(8): e(f'v_sub_f32 v{gb[g]+k}, v{gb[g]+k}, v{M_+g[1]}')
            for k in range(64): e(f'v_mul_f32 v{O+k}, v{O+k}, v{T1 + k // 32}')
            for m in range(64):
                for o in vpost[m]:
                    if o[0] == 0 and o[2] != 'max': vop(o, m, slow=True)
            for i in range(CHK, CHK + LA): rd(i)
            pv('slow')
        P.ool([], 's_cbranch_vccnz', lambda: rest(False), lambda w, it: (w >> 3) % 2 == 1, lambda: rest(True))
        e('s_add_u32 s90, s90, 4'); e('s_add_u32 s94, s94, 3')
    i0 = len(P.cur)
    P.vm = []
    P.loop(8, 's27', body, lambda t: (t[0] - 1,) + tuple(t[1:]) if isinstance(t, tuple) else t)
    P.wait(lg='all')
    slots(0, CHK, 'tail', events=False)
    e('s_add_u32 s88, s88, 4096'); e('s_add_u32 s99, s99, 4096')
    finish(S, True)
    if OPT['abl2']: P.cur[i0:] = ablate(P.cur[i0:], OPT['abl2'].split())
    stamp(P, 4, not OPT['ts2'])
    gen_oproj(P)

def gen_helper(P, F):
    e = P.e
    kvp, xp, wp = OPT['kv_pol'], OPT['x_pol'], OPT['w_pol']
    O8, Q8, S8, FB, QA8 = 0, 32, 64, 72, 136
    VKV, VW, VX, AK8, AV8, AW8, AX8, L16, FRH = 152, 156, 158, 161, 165, 173, 175, 176, 177
    R_, L_, T, M_, FA, TK = 178, 179, 180, 156, 157, 240
    i00 = len(P.cur)
    if OPT['hprio']: e(f's_setprio {OPT["hprio"]}')
    e(f'v_and_b32 v3, 15, v{LANE}'); e(f'v_lshrrev_b32 v4, 4, v{LANE}'); e('v_lshrrev_b32 v5, 2, v3'); e('v_and_b32 v6, 3, v3')
    e(f'v_lshrrev_b32 v7, 2, v{LANE}'); e('v_lshrrev_b32 v8, 2, v7'); e('v_sub_u32 v8, 4, v8'); e('v_and_b32 v8, 3, v8')
    e('v_xor_b32 v8, v8, v6'); e('v_lshlrev_b32 v8, 4, v8')
    e('v_mul_u32_u24 v9, 1152, v7'); e('v_add_u32 v9, v9, v8'); e(f'v_add_u32 v{VX+2}, {128*1152}, v9')
    e('s_mul_i32 s3, s4, 18432'); e(f'v_add_u32 v{VX}, s3, v9'); e(f'v_add_u32 v{VX+1}, 73728, v{VX}')
    e('s_lshl_b32 s5, s4, 10'); e('s_lshl_b32 s6, s4, 11'); e('s_lshl_b32 s59, s4, 12')
    e('s_waitcnt lgkmcnt(0)')
    e('s_cmp_eq_u32 s50, 0')
    for k in range(4): e(f's_cselect_b64 s[{8+2*k}:{9+2*k}], s[{8+2*k}:{9+2*k}], s[{16+2*k}:{17+2*k}]')
    e('s_mul_i32 s3, s52, 165888'); e('s_add_u32 s8, s8, s3'); e('s_addc_u32 s9, s9, 0')
    srd(P, SX, 8, 9, 165888)
    qrot(P); e('s_lshl_b32 s53, s53, 6')
    def qstage(s):
        st, tag = QB0 + sidx(s)*STG, ('q', s)
        for u in range(2):
            e(f's_add_u32 m0, s5, {st + u*4096}')
            P.vmem(f'buffer_load_dwordx4 v{VX+u}, s[{SX}:{SX+3}], s53 offen {xp} lds', tag)
        def x8():
            e(f's_mov_b32 m0, {st + 8192}')
            P.vmem(f'buffer_load_dwordx4 v{VX+2}, s[{SX}:{SX+3}], s53 offen {xp} lds', tag, optional=True)
        P.only(s % 4, x8)
        e('s_add_u32 s53, s53, 64'); e('s_cmp_eq_u32 s53, 1152'); e('s_cselect_b32 s53, 0, s53')
    qstage(0); qstage(1)
    def tag():
        e('s_memrealtime s[84:85]'); e('s_waitcnt lgkmcnt(0)'); e('s_or_b32 s84, s84, 1')
        e('v_mov_b32 v7, 0'); e('v_mov_b32 v8, s84')
        e('s_mov_b64 exec, 1')
        P.vmem('global_store_dword v7, v8, s[82:83] sc1', 'tag', optional=True)
        e('s_mov_b64 exec, -1')
    e('s_lshl_b32 s3, s2, 3'); e('s_add_u32 s3, s3, s87')
    P.ool(['s_cmp_eq_u32 s3, 4'], 's_cbranch_scc1', tag, lambda w, it: w == 4)
    if OPT['krot'] == 1: e('s_lshr_b32 s58, s2, 3')
    elif OPT['krot'] == 2: e('s_mov_b32 s58, s2')
    elif OPT['krot'] == 3:
        e('s_lshr_b32 s58, s2, 3'); e('s_add_u32 s58, s58, s2'); e('s_lshr_b32 s3, s2, 6'); e('s_add_u32 s58, s58, s3')
    else: e('s_mov_b32 s58, 0')
    e('s_and_b32 s58, s58, 7'); e('s_lshl_b32 s58, s58, 14')
    e('s_lshl_b32 s3, s52, 5'); e('s_add_u32 s3, s3, s51'); e('s_lshl_b32 s3, s3, 17')
    e('s_add_u32 s10, s10, s3'); e('s_addc_u32 s11, s11, 0'); srd(P, SK, 10, 11, 262144)
    e('s_add_u32 s12, s12, s3'); e('s_addc_u32 s13, s13, 0'); srd(P, SV, 12, 13, 262144)
    o_srd(P)
    for t in range(4):
        e(f'v_add_u32 v7, {4*t}, v4'); femit(P, 8, 7, 9, 10)
        e('v_xor_b32 v8, v8, v3'); e('v_lshlrev_b32 v8, 4, v8'); e('v_lshl_add_u32 v8, v4, 8, v8'); e(f'v_add_u32 v{VKV+t}, s59, v8')
    femit(P, 8, 3, 9, 10)
    e('v_xor_b32 v8, v8, v4'); e('v_lshlrev_b32 v8, 4, v8'); e('v_lshl_add_u32 v8, v3, 8, v8'); e(f'v_add_u32 v{AK8}, s59, v8')
    for u in range(1, 4): e(f'v_xor_b32 v{AK8+u}, {u << 6}, v{AK8}')
    def traddr16(dst, shift, base_s, base):
        e(f'v_lshl_add_u32 v7, v4, {shift}, v5'); e('v_and_b32 v11, 15, v7'); femit(P, 8, 11, 9, 10)
        e('v_lshrrev_b32 v9, 1, v6'); e('v_xor_b32 v8, v8, v9'); e('s_lshl_b32 s3, s4, 2'); e('v_xor_b32 v8, s3, v8')
        e('v_lshlrev_b32 v8, 4, v8'); e('v_and_b32 v9, 1, v6'); e('v_lshl_or_b32 v8, v9, 3, v8'); e('v_lshl_add_u32 v8, v7, 8, v8')
        if base_s: e(f'v_add_u32 v8, {base_s}, v8')
        e(f'v_add_u32 v{dst}, {base}, v8')
    traddr16(AV8, 2, 's59', 32768)
    for d in range(1, 8): e(f'v_xor_b32 v{AV8+d}, {d << 5}, v{AV8}')
    traddr16(AW8, 3, None, QB0 + XB); e(f'v_xor_b32 v{AW8+1}, 32, v{AW8}')
    e('v_sub_u32 v8, 4, v5'); e('v_and_b32 v8, 3, v8'); e('v_xor_b32 v8, v8, v4'); e('v_lshlrev_b32 v8, 4, v8')
    e('v_lshl_add_u32 v8, v3, 6, v8'); e(f'v_add_u32 v{AX8}, {QB0 + 8192}, v8')
    e(f'v_lshlrev_b32 v{L16}, 4, v{LANE}')
    AW8b = 183
    for k in range(3): e(f'v_add_u32 v{AW8b+k}, {2*STG}, v{AW8+k}')
    e(f'v_add_u32 v{FRH}, {FLG + 512 - (FLG + 1536)}, v{FRL}')
    def item(n):
        S = SK if n % 4 < 2 else SV
        e(f's_add_u32 m0, s59, {(n % 8)*16384}')
        e(f's_xor_b32 s26, s58, {(n // 4)*32768 + (n % 2)*16384}')
        for t in range(4):
            if 'kv8' in OPT['abl2'] and n >= 8: continue
            P.vmem(f'buffer_load_dwordx4 v{VKV+t}, s[{S}:{S+3}], s26 offen offset:{t*1024} {kvp} lds', ('kv', n))
    SEQ = [0, 1, 2] + [x for c in range(1, 8) for x in (4*c, 4*c - 1, 4*c + 1, 4*c + 2)] + [31]
    def cneed(n):
        c, k = (n - 8) // 4, n % 4
        return 19 + 3*c + (1, 1, 2, 3)[k]
    P.wait(vm=('q', 0)); e('s_barrier')
    stamp(P, 1, not OPT['ts2'])
    qstage(2)
    for s in range(18):
        a, off = (AW8, sidx(s)*STG) if sidx(s) < 2 else (AW8b, (sidx(s) - 2)*STG)
        P.ds(f'ds_read_b128 {vr(FB,4)}, v{a+2} offset:{off}', 'b')
        for hd in range(2):
            for dd in range(2):
                b = FB + 4 + 8*hd + 4*dd if hd == 0 else S8 + 4*dd
                P.ds(f'ds_read_b64_tr_b16 {vr(b,2)}, v{a+dd} offset:{off + hd*8192}', ('a', hd, dd))
                P.ds(f'ds_read_b64_tr_b16 {vr(b+2,2)}, v{a+(dd^1)} offset:{off + hd*8192 + 1024}', ('a', hd, dd))
        if s + 3 < 18: qstage(s + 3)
        if s == 15: item(0)
        if s == 16: item(1); item(2)
        for hd in range(2):
            for dd in range(2):
                P.wait(lg=('a', hd, dd)); mfma(P, QA8 + 8*hd + 4*dd, FB + 4 + 8*hd + 4*dd if hd == 0 else S8 + 4*dd, FB, s == 0)
        if s < 17: P.wait(vm=('q', s + 1))
        e('s_barrier')
    stamp(P, 2, not OPT['ts2'])
    item(SEQ[3])
    P.wait(vm=('kv', 0)); F.post(19, 1024); item(SEQ[4])
    for k in range(16): e(f'v_mul_f32 v{QA8+k}, s7, v{QA8+k}')
    e(f's_add_u32 s3, s5, {XCH}'); e(f'v_add_u32 v{T}, s3, v{L16}')
    for hd in range(2):
        d, X, Y = FB + 4*hd, QA8 + 8*hd, QA8 + 8*hd + 4
        e(f'v_cvt_pk_bf16_f32 v{d}, v{X}, v{X+1}'); e(f'v_cvt_pk_bf16_f32 v{d+1}, v{X+2}, v{X+3}')
        e(f'v_cvt_pk_bf16_f32 v{d+2}, v{Y}, v{Y+1}'); e(f'v_cvt_pk_bf16_f32 v{d+3}, v{Y+2}, v{Y+3}')
        for sw in ('32', '16'):
            e(f'v_permlane{sw}_swap_b32 v{d}, v{d+2}'); e(f'v_permlane{sw}_swap_b32 v{d+1}, v{d+3}')
        P.ds(f'ds_write_b128 v{T}, {vr(d,4)} offset:{hd*4096}', 'xw')
    e(f's_mov_b32 s89, {fbits(64.0):#x}')
    hep = [1000]
    def hsync():
        P.wait(lg='all'); hep[0] += 1
        F.post(hep[0]); F.need(FRH, hep[0])
    hsync()
    e(f'v_add_u32 v{T}, {XCH}, v{L16}')
    for k in range(8): P.ds(f'ds_read_b128 {vr(Q8+4*k,4)}, v{T} offset:{k*1024}', 'q8')
    P.wait(lg='all')
    stamp(P, 3, not OPT['ts2'])
    e('s_mov_b32 s98, 19')
    def postL(v):
        e(f's_max_u32 s98, s98, {v}'); F.post('s98', 1024)
    def touch():
        e('s_getpc_b64 s[56:57]'); lb = P.newlab('pc'); P.lab(lb)
        e(f's_sub_u32 s56, s56, {lb}-{KNAME}'); e('s_subb_u32 s57, s57, 0')
        e(f'v_lshlrev_b32 v242, 7, v{LANE}'); e('s_lshl_b32 s3, s4, 14'); e('v_add_u32 v242, s3, v242')
        e(f's_mov_b32 s3, .Lcode_end-{KNAME}-4')
        for k in range(2):
            e(f'v_min_u32 v243, s3, v242'); P.vmem(f'global_load_dword v{244+k}, v243, s[56:57]', 'ct', optional=True)
            e('v_add_u32 v242, 8192, v242')
    def need_free(val, lv, nxt):
        F.read(FRC); P.wait(lg='fr')
        def slow():
            done = P.newlab('nf')
            vm0 = list(P.vm)
            for i, tg in enumerate(nxt):
                if not any(t[0] == tg for t in P.vm): break
                P.wait(vm=tg); e(f's_add_u32 s3, {lv}, {i + 1}'); postL('s3')
                e(f'ds_read_b32 v{FT}, v{FRC}'); e('s_waitcnt lgkmcnt(0)')
                e(f'v_cmp_gt_u32 vcc, {val}, v{FT}'); e(f's_cbranch_vccz {done}')
            sp = P.newlab('sp'); P.lab(sp)
            e('s_sleep 1'); e(f'ds_read_b32 v{FT}, v{FRC}'); e('s_waitcnt lgkmcnt(0)')
            e(f'v_cmp_gt_u32 vcc, {val}, v{FT}'); e(f's_cbranch_vccnz {sp}')
            P.lab(done)
            P.vm = vm0
        P.ool([f'v_cmp_gt_u32 vcc, {val}, v{FT}'], 's_cbranch_vccnz', slow, lambda w, it: False)
    def scores():
        for tt in range(2):
            for u in range(4): P.ds(f'ds_read_b128 {vr(FB + 16*tt + 4*u, 4)}, v{AK8+u} offset:{tt*16384}', ('k', tt, u))
        for tt in range(2):
            for u in range(4):
                P.wait(lg=('k', tt, u)); mfma(P, S8 + 4*tt, FB + 16*tt + 4*u, Q8 + 4*u, u == 0)
        for u in range(4): e(f'v_xor_b32 v{AK8+u}, 0x10000, v{AK8+u}')
        for k in range(4): e(f'v_max3_f32 v{M_}, v{M_}, v{S8+2*k}, v{S8+2*k+1}')
        e(f'v_cmp_lt_f32 vcc, s7, abs(v{M_})')
        def shift():
            for sw in ('32', '16'):
                e(f'v_mov_b32 v{T}, v{M_}'); e(f'v_permlane{sw}_swap_b32 v{M_}, v{T}'); e(f'v_max_f32 v{M_}, v{M_}, v{T}')
            e(f'v_sub_f32 v{T}, v{R_}, v{M_}'); e(f'v_min_f32 v{T}, s89, v{T}'); e(f'v_exp_f32 v{T}, v{T}')
            e(f'v_mov_b32 v{R_}, v{M_}'); e('s_mov_b32 s7, -1.0')
            for k in range(8): e(f'v_sub_f32 v{S8+k}, v{S8+k}, v{M_}')
            e(f'v_mul_f32 v{L_}, v{L_}, v{T}')
            for k in range(32): e(f'v_mul_f32 v{O8+k}, v{O8+k}, v{T}')
        P.ool([], 's_cbranch_vccnz', shift, lambda w, it: (w >> 3) % 2 == 1)
        for k in range(8): e(f'v_exp_f32 v{S8+k}, v{S8+k}')
        for k in range(8): e(f'v_add_f32 v{L_}, v{L_}, v{S8+k}')
        for k in range(4): e(f'v_cvt_pk_bf16_f32 v{S8+k}, v{S8+2*k}, v{S8+2*k+1}')
    def pv8():
        def rv(d):
            P.ds(f'ds_read_b64_tr_b16 {vr(FB + 4*d, 2)}, v{AV8+d}', ('v', d))
            P.ds(f'ds_read_b64_tr_b16 {vr(FB + 4*d + 2, 2)}, v{AV8+d} offset:16384', ('v', d))
        for d in range(6): rv(d)
        for d in range(8):
            P.wait(lg=('v', d)); mfma(P, O8 + 4*d, FB + 4*d, S8)
            if d < 2: rv(6 + d)
        for d in range(8): e(f'v_xor_b32 v{AV8+d}, 0x10000, v{AV8+d}')
    def hreset():
        for k in range(32): e(f'v_mov_b32 v{O8+k}, 0')
        e(f'v_mov_b32 v{M_}, {fbits(-1e30):#x}'); e(f'v_mov_b32 v{L_}, 0'); e(f'v_mov_b32 v{R_}, 0'); e(f's_mov_b32 s7, {fbits(64.0):#x}')
    def combine(head):
        for sw in ('32', '16'):
            e(f'v_mov_b32 v{T}, v{L_}'); e(f'v_permlane{sw}_swap_b32 v{L_}, v{T}'); e(f'v_add_f32 v{L_}, v{L_}, v{T}')
        for q in range(1, 4):
            e(f's_xor_b32 s3, s4, {q}'); e('s_mul_i32 s3, s3, 6144'); e(f's_add_u32 s3, s3, {XCH + (q-1)*2048}')
            e(f'v_add_u32 v{T}, s3, v{L16}')
            for k in range(2): P.ds(f'ds_write_b128 v{T}, {vr(O8 + 8*q + 4*k, 4)} offset:{k*1024}', 'cw')
        e(f'v_lshrrev_b32 v{T+1}, 1, v{L16}'); e('s_lshl_b32 s3, s4, 9'); e(f's_add_u32 s3, s3, {XCH + 24576}')
        e(f'v_add_u32 v{T+1}, s3, v{T+1}')
        P.ds(f'ds_write_b64 v{T+1}, {vr(R_,2)}', 'cw')
        hsync()
        e('s_mul_i32 s3, s4, 6144'); e(f's_add_u32 s3, s3, {XCH}'); e(f'v_add_u32 v{T}, s3, v{L16}')
        ST, CB, W = FB, FB + 8, S8
        for q in range(1, 4):
            e(f'v_xor_b32 v{FT}, {q << 9}, v{T+1}')
            P.ds(f'ds_read_b64 {vr(ST + 2*q, 2)}, v{FT}', 'cs')
        for q in range(1, 4):
            for k in range(2): P.ds(f'ds_read_b128 {vr(CB + 8*q + 4*k, 4)}, v{T} offset:{(q-1)*2048 + k*1024}', ('co', q))
        e(f'v_mov_b32 v{ST}, v{R_}'); e(f'v_mov_b32 v{ST+1}, v{L_}')
        P.wait(lg='cs')
        e(f'v_max3_f32 v{W}, v{ST}, v{ST+2}, v{ST+4}'); e(f'v_max_f32 v{W}, v{W}, v{ST+6}')
        for q in range(4): e(f'v_sub_f32 v{W+4+q}, v{ST+2*q}, v{W}')
        for q in range(4): e(f'v_exp_f32 v{W+4+q}, v{W+4+q}')
        e(f'v_mul_f32 v{W+1}, v{W+4}, v{ST+1}')
        for q in range(1, 4): e(f'v_fma_f32 v{W+1}, v{W+4+q}, v{ST+2*q+1}, v{W+1}')
        e(f'v_rcp_f32 v{W+1}, v{W+1}')
        for q in range(4): e(f'v_mul_f32 v{W+4+q}, v{W+4+q}, v{W+1}')
        for k in range(8): e(f'v_mul_f32 v{O8+k}, v{O8+k}, v{W+4}')
        for q in range(1, 4):
            P.wait(lg=('co', q))
            for k in range(8): e(f'v_fma_f32 v{O8+k}, v{CB+8*q+k}, v{W+4+q}, v{O8+k}')
        for k in range(4): e(f'v_cvt_pk_bf16_f32 v{W+k}, v{O8+2*k}, v{O8+2*k+1}')
        e(f's_add_u32 s26, s5, {1048576 + head*4096}')
        P.vmem(f'buffer_store_dwordx4 {vr(W,4)}, v{L16}, s[{SO}:{SO+3}], s26 offen {OPT["o_st"]}', 'st', optional=True)
    P.wait(vm=('kv', 1)); postL(20); item(SEQ[5])
    hreset(); scores()
    P.wait(vm=('kv', 2)); postL(21); item(SEQ[6])
    e('s_load_dwordx2 s[8:9], s[0:1], 32'); e('s_load_dwordx2 s[10:11], s[0:1], 72'); e('s_load_dwordx2 s[12:13], s[0:1], 96')
    e(f'v_mov_b32 v{VX}, 0')
    P.vmem(f'global_load_dword v{VX+1}, v{VX}, s[82:83] sc1', 'tagld', optional=True)
    e('s_lshl_b32 s3, s50, 3'); e('s_add_u32 s3, s3, s52'); e('s_lshl_b32 s3, s3, 4'); e('s_lshr_b32 s26, s51, 1'); e('s_add_u32 s3, s3, s26')
    e('s_lshl_b32 s3, s3, 7'); e(f's_add_u32 s3, s3, {FLAGOFF}'); e(f'v_mov_b32 v{FA}, s3')
    e('s_mov_b32 s20, 22'); e('s_mov_b32 s21, 19'); e('s_mov_b32 s22, 65536'); e('s_mov_b32 s23, s59')
    e('s_mov_b32 s18, 32768'); e('s_add_u32 s19, s59, 65536')
    e('s_waitcnt lgkmcnt(0)'); P.lg = []
    P.vm = [(('kv', -1), False)] * 4 + [(('kv', k), False) for k in range(3) for _ in range(4)] + [('tagld', True)]
    def tr(v):
        if OPT['trace']:
            e('s_memrealtime s[76:77]'); e('s_sub_u32 m0, s24, 19'); e('s_waitcnt lgkmcnt(0)'); e('s_sub_u32 s76, s76, s60'); e(f'v_writelane_b32 v{v}, s76, m0')
    KIND = [(0, 1, 1), (3, 0, 0), (1, 1, 1), (2, 1, 2)]
    def step(k, issue=True):
        P.wait(vm=('kv', k - 1)); e(f's_add_u32 s24, s20, {k}'); postL('s24')
        tr(246)
        if not issue: return
        kind, nx, co = KIND[k]
        e(f's_add_u32 s25, s21, {co}')
        need_free('s25', 's24', [('kv', k + i) for i in range(3)])
        tr(247)
        S = SK if kind < 2 else SV
        e(f's_add_u32 m0, {"s23" if nx else "s19"}, {kind*16384}')
        e(f's_add_u32 s26, {"s22" if nx else "s18"}, {(kind % 2)*16384}')
        for t in range(4):
            P.vmem(f'buffer_load_dwordx4 v{VKV+t}, s[{S}:{S+3}], s26 offen offset:{t*1024} {kvp} lds', ('kv', k + 3))
        tr(248)
    def hbody():
        step(0)
        step(1); pv8()
        def mid():
            combine(0); hreset()
            for k in range(16): e(f'v_mov_b32 v{Q8+k}, v{Q8+16+k}')
            if OPT['rtc']: touch()
        P.ool(['s_cmp_eq_u32 s27, 3'], 's_cbranch_scc1', mid, lambda w, it: it == 3)
        step(2); scores()
        step(3)
        e('s_add_u32 s20, s20, 4'); e('s_add_u32 s21, s21, 3'); e('s_mov_b32 s18, s22'); e('s_add_u32 s22, s22, 32768')
        e('s_xor_b32 s23, s23, 65536'); e('s_xor_b32 s19, s19, 65536')
    P.loop(6, 's27', hbody, lambda t: ('kv', t[1] - 4) if t[0] == 'kv' else t)
    P.vm = [(('kv', t[0][1] - 4), t[1]) if t[0][0] == 'kv' else t for t in P.vm]
    step(0, False)
    if OPT['rtc']: touch()
    def respin():
        sp = P.newlab('tg'); P.lab(sp)
        e('s_sleep 8'); e(f'global_load_dword v{VX+1}, v{VX}, s[82:83] sc1'); e('s_waitcnt vmcnt(0)')
        e(f'v_cmp_eq_u32 vcc, 0, v{VX+1}'); e(f's_cbranch_vccnz {sp}')
    P.ool([f'v_cmp_eq_u32 vcc, 0, v{VX+1}'], 's_cbranch_vccnz', respin, lambda w, it: False)
    step(1)
    hsync()
    def sig_a():
        e('s_and_b32 s3, s2, 7'); e('s_lshl_b32 s3, s3, 4'); e('s_add_u32 s3, s3, 64')
        e(f'v_mov_b32 v{TK+1}, s3'); e(f'v_mov_b32 v{TK}, 1')
        e('s_mov_b64 exec, 1')
        P.vmem(f'global_store_dword v{FA}, v{VX+1}, s[12:13] offset:64 sc1', 'fa', optional=True)
        if OPT['dyn']: P.vmem(f'global_atomic_add v{TK}, v{TK+1}, v{TK}, s[82:83] sc0 sc1', 'tk', optional=True)
        e('s_mov_b64 exec, -1')
    P.only(0, sig_a)
    pv8()
    step(2, False); scores()
    step(3, False)
    P.wait(vm=('kv', 4)); postL(50)
    e(f'v_lshlrev_b32 v{VX+2}, 7, v{LANE}'); e('s_lshl_b32 s3, s4, 13'); e(f'v_add_u32 v{VX+2}, s3, v{VX+2}')
    e('s_and_b32 s3, s2, 127'); e('s_mul_i32 s3, s3, 36864')
    e('s_cmp_lt_u32 s2, 128'); e('s_cselect_b64 s[8:9], s[8:9], s[10:11]')
    e('s_add_u32 s8, s8, s3'); e('s_addc_u32 s9, s9, 0'); srd(P, SX, 8, 9, 36864)
    if OPT['wpf']:
        e('s_mov_b32 s26, 32768')
        P.vmem(f'buffer_load_dword v{VKV}, v{VX+2}, s[{SX}:{SX+3}], 0 offen', 'wt')
        P.vmem(f'buffer_load_dword v{VKV+1}, v{VX+2}, s[{SX}:{SX+3}], s26 offen', 'wt')
    pv8(); combine(1)
    if OPT['trace']:
        e('s_lshl_b32 s3, s2, 2'); e('s_add_u32 s3, s3, s4'); e('s_mul_i32 s3, s3, 1024'); e('s_add_u32 s3, s3, 0x4200000')
        e(f'v_lshlrev_b32 v249, 2, v{LANE}'); e('v_add_u32 v249, s3, v249'); e('v_writelane_b32 v246, s60, 0')
        for k in range(3): e(f'global_store_dword v249, v{246+k}, s[12:13] offset:{256*k}')
    ab = (OPT['abl'] + ' ' + OPT['abl2']).split()
    if ab: P.cur[i00:] = ablate(P.cur[i00:], [x for x in ab if x in ('dma', 'qdma', 'st')] + (['mfma', 'ds', 'valu'] if 'hc' in ab else []))
    stamp(P, 4, not OPT['ts2'])
    P.wait(vm='all')
    def give():
        if not OPT['dyn']:
            e('s_lshr_b32 s3, s2, 3'); e(f'v_mov_b32 v{TK}, s3')
        e(f'v_mov_b32 v{TK+1}, v{VX+1}'); e(f'v_mov_b32 v{T}, {NONCE}')
        e('s_mov_b64 exec, 1'); e(f'ds_write_b64 v{T}, {vr(TK,2)}'); e('s_mov_b64 exec, -1'); e('s_waitcnt lgkmcnt(0)')
    P.only(0, give)
    e('s_barrier')
    def signal():
        e('s_mov_b64 exec, 1')
        e(f'global_store_dword v{FA}, v{VX+1}, s[12:13] sc1')
        e('s_mov_b64 exec, -1')
    P.only(0, signal)

K2_LDS = 73728
def gen_oproj(P):
    e = P.e
    SO2, SWO, SOUT = 28, 32, 36
    e('s_load_dwordx2 s[8:9], s[0:1], 32')
    e('s_load_dwordx2 s[10:11], s[0:1], 72')
    e('s_load_dwordx2 s[12:13], s[0:1], 80')
    e('s_load_dwordx2 s[14:15], s[0:1], 96')
    e('v_mbcnt_lo_u32_b32 v0, -1, 0'); e('v_mbcnt_hi_u32_b32 v0, -1, v0'); e('v_mov_b32 v1, s4')
    e(f'v_mov_b32 v96, {NONCE}')
    for i in range(2, 96): e(f'v_mov_b32 v{i}, 0') if i > 9 else None
    P.wait(vm='all')
    e('s_barrier')
    P.ds('ds_read_b64 v[234:235], v96', 'n'); P.wait(lg='all')
    e('v_readfirstlane_b32 s49, v234')
    e('s_cmp_ge_u32 s49, 27'); e('s_cbranch_scc1 .Lk1_fin')
    e('s_and_b32 s48, s2, 7')
    e('s_lshr_b32 s50, s48, 2')
    e('s_mul_i32 s3, s49, 57'); e('s_lshr_b32 s3, s3, 9')
    e('s_mul_i32 s26, s3, 9'); e('s_sub_u32 s52, s49, s26')
    e('s_and_b32 s51, s48, 3'); e('s_mul_i32 s51, s51, 3'); e('s_add_u32 s51, s51, s3')
    e('v_and_b32 v2, 63, v0'); e('v_and_b32 v3, 15, v0'); e('v_lshrrev_b32 v4, 4, v2')
    e('v_lshrrev_b32 v5, 2, v3'); e('v_and_b32 v6, 3, v3')
    ACC, NST, BF, AF, AA = 0, 4, 96, 192, 224
    NW = OPT['nw']
    VO, VWO, L16, VOUT, VO2 = 228, 229, 230, 231, 232
    RING = 4096 * NW
    e(f'v_lshlrev_b32 v{L16}, 4, v2')
    e(f'v_lshl_add_u32 v{VO}, v1, 15, v{L16}')
    e('v_lshrrev_b32 v7, 3, v2'); e('v_lshl_add_u32 v7, v1, 10, v7'); e('v_mul_u32_u24 v7, 1152, v7')
    e('v_and_b32 v8, 7, v2'); e('v_lshlrev_b32 v9, 1, v4'); e('v_xor_b32 v8, v8, v9')
    e(f'v_lshl_add_u32 v{VWO}, v8, 4, v7')
    e(f's_mul_i32 s5, s4, {RING}')
    e('s_and_b32 s3, s4, 1'); e('s_mul_i32 s3, s3, 393216')
    for r in range(3): e(f's_add_u32 s{40+r}, s3, {r*131072}')
    e('s_sub_u32 s3, 393216, s3')
    for r in range(3): e(f's_add_u32 s{43+r}, s3, {r*131072}')
    e('s_mov_b32 s53, 0')
    e('s_waitcnt lgkmcnt(0)')
    e('s_cmp_eq_u32 s50, 0'); e('s_cselect_b64 s[8:9], s[8:9], s[10:11]')
    e('s_lshl_b32 s3, s52, 7'); e('s_add_u32 s8, s8, s3'); e('s_addc_u32 s9, s9, 0')
    srd(P, SWO, 8, 9, 4095 * 1152 + 128)
    e('s_mul_i32 s3, s50, 72'); e('s_mul_i32 s26, s51, 6'); e('s_add_u32 s3, s3, s26'); e('s_lshl_b32 s3, s3, 17')
    e('s_mov_b64 s[16:17], s[14:15]')
    e('s_add_u32 s14, s14, s3'); e('s_addc_u32 s15, s15, 0'); srd(P, SO2, 14, 15, 6 * 131072)
    e('s_mov_b32 s56, s53')
    def kstep(cnt, dst):
        e(f's_and_b32 {dst}, {cnt}, 31'); e(f's_add_u32 {cnt}, {cnt}, 1'); e(f's_and_b32 s3, {cnt}, 4'); e(f's_bitcmp1_b32 {cnt}, 6')
        e(f's_cselect_b32 s57, 4, 0'); e('s_xor_b32 s3, s3, s57'); e(f's_add_u32 {cnt}, {cnt}, s3')
        e(f's_cmp_eq_u32 {cnt}, 32'); e(f's_cselect_b32 {cnt}, 68, {cnt}')
    def wpieces(s):
        def pw(i):
            def f():
                if i == 0:
                    kstep('s56', 's54'); e('s_mul_i32 s54, s54, 36864')
                e(f's_add_u32 m0, s5, {(s % NW)*4096 + i*1024}')
                e(f's_add_u32 s26, s54, {8*i*1152}')
                P.vmem(f'buffer_load_dwordx4 v{VWO}, s[{SWO}:{SWO+3}], s26 offen {OPT["wo_pol"]} lds', ('W', s))
            return f
        return [pw(i) for i in range(4)]
    def opieces(s):
        def po(r):
            def f():
                if r == 0:
                    kstep('s53', 's55'); e('s_lshl_b32 s55, s55, 10'); e(f'v_add_u32 v{VO2}, s55, v{VO}')
                P.vmem(f'buffer_load_dwordx4 {vr(BF+(s % NST)*24+4*r,4)}, v{VO2}, s[{SO2}:{SO2+3}], s{40+r} offen {OPT["o_ld"]}', ('L', s))
            return f
        return [po(r) for r in range(6)]
    e('v_lshl_add_u32 v7, v4, 2, v5'); e('v_lshrrev_b32 v8, 1, v7'); e('v_and_b32 v8, 3, v8')
    e('v_and_b32 v9, 2, v1'); e('v_xor_b32 v8, v8, v9'); e('v_lshlrev_b32 v8, 5, v8')
    e('v_lshl_or_b32 v8, v6, 3, v8'); e('v_lshl_add_u32 v8, v7, 7, v8')
    e(f'v_mul_u32_u24 v9, {RING}, v1'); e(f'v_add_u32 v{AA}, v8, v9')
    for k in range(1, 4): e(f'v_xor_b32 v{AA+k}, {k<<5}, v{AA}')
    e('v_mul_u32_u24 v7, 2304, v3'); e('v_lshl_add_u32 v7, v4, 4, v7')
    e('s_and_b32 s3, s4, 1'); e('s_mul_i32 s3, s3, 110592'); e('s_lshr_b32 s26, s4, 1'); e('s_lshl_b32 s26, s26, 6'); e('s_add_u32 s3, s3, s26')
    e(f'v_add_u32 v{VOUT}, s3, v7')
    e('s_mul_i32 s3, s51, 221184'); e('s_mul_i32 s26, s50, 1152'); e('s_add_u32 s3, s3, s26')
    e('s_lshl_b32 s26, s52, 7'); e('s_add_u32 s3, s3, s26')
    e('s_add_u32 s12, s12, s3'); e('s_addc_u32 s13, s13, 0'); srd(P, SOUT, 12, 13, 95 * 2304 + 128)
    e('s_mul_i32 s3, s51, 43'); e('s_lshr_b32 s3, s3, 6')
    e('s_mul_i32 s26, s51, 6'); e('s_add_u32 s26, s26, 5'); e('s_mul_i32 s26, s26, 57'); e('s_lshr_b32 s26, s26, 9')
    FLA, FLV, TAG = 233, 236, 235
    e('v_mov_b32 v96, s3'); e('v_mov_b32 v97, s26'); e(f'v_and_b32 v98, 64, v{L16}'); e('v_cmp_eq_u32 vcc, 0, v98'); e('s_nop 1')
    e('v_cndmask_b32 v96, v97, v96, vcc')
    e('s_lshl_b32 s3, s50, 5'); e('s_add_u32 s3, s3, s4'); e('s_lshl_b32 s3, s3, 2')
    e('v_lshlrev_b32 v96, 4, v96'); e(f'v_bfe_u32 v97, v{L16}, 4, 2'); e('v_add3_u32 v96, v96, v97, s3')
    e('v_lshlrev_b32 v96, 7, v96'); e(f'v_add_u32 v{FLA}, {FLAGOFF + 64}, v96')
    for i in range(10): e(f'v_mov_b32 v{i}, 0')
    def poll():
        sp = P.newlab('fl'); P.lab(sp)
        e('s_sleep 4'); e(f'global_load_dword v{FLV}, v{FLA}, s[16:17] sc1'); e('s_waitcnt vmcnt(0)')
        e(f'v_cmp_ne_u32 vcc, v{TAG}, v{FLV}'); e(f's_cbranch_vccnz {sp}')
    P.vmem(f'global_load_dword v{FLV}, v{FLA}, s[16:17] sc1', 'f')
    for s in range(OPT['nw0']):
        for f in wpieces(s): f()
    P.wait(vm='f')
    P.ool([f'v_cmp_ne_u32 vcc, v{TAG}, v{FLV}'], 's_cbranch_vccnz', poll, lambda w, it: False)
    stamp(P, 5, not OPT['ts2'])
    for s in range(NST):
        for f in opieces(s): f()
        if s == 0:
            for s2 in range(OPT['nw0'], NW):
                for f in wpieces(s2): f()
    def rdA2(s, k, hf):
        b = AF + (s % 2) * 16 + 4 * k + 2 * hf
        return lambda: P.ds(f'ds_read_b64_tr_b16 {vr(b,2)}, v{AA+k} offset:{(s % NW)*4096 + 2048*hf}', ('A', s))
    P.wait(vm=('L', 0))
    for k in range(4):
        rdA2(0, k, 0)(); rdA2(0, k, 1)()
    P.wait(vm=('L', 2))
    P.vm = []
    for s in range(-NST, 0):
        P.vm += [(('W', s + NW), False)] * 4 + [(('L', s + NST), False)] * 6
    while P.vm[0][0] != ('W', 1 - NST + NW): P.vm.pop(0)
    NIT = 32 // NW
    def body():
        for s in range(NW):
            st = s % NST
            if s == 0:
                e(f's_cmp_eq_u32 s27, {NIT - 1}'); e(f's_cselect_b32 s59, {BIG}, 0'); e(f'v_add_u32 v{VWO}, s59, v{VWO}')
            if s == NW - NST: e(f'v_add_u32 v{VO}, s59, v{VO}')
            pw, po = wpieces(s + NW), opieces(s + NST)
            fill = {k: [] for k in range(24)}
            for i in range(4): fill[(0, 1, 2, 2)[i]].append(pw[i])
            for r in range(6): fill[4*r + 3].append(po[r])
            rd = [rdA2(s + 1, k, hf) for k in range(4) for hf in range(2)]
            fill[8].insert(0, lambda: P.wait(vm=('L', s + 1)))
            for k in range(8): fill[8 + k + (k > 1) + (k > 4)].append(rd[k])
            CS = (16 - NST) % NW
            if s == (CS - 3) % NW:
                def ld():
                    e(f's_cmp_eq_u32 s27, {(16 - NST - 3) // NW}'); e('s_cselect_b32 s57, 64, 0'); e(f'v_subrev_u32 v{FLA}, s57, v{FLA}')
                    P.vmem(f'global_load_dword v{FLV}, v{FLA}, s[16:17] sc1', ('F', s))
                fill[0].insert(0, ld)
            if s == CS:
                def ck():
                    P.wait(vm=('F', (CS - 3) % NW))
                    P.ool([f'v_cmp_ne_u32 vcc, v{TAG}, v{FLV}'], 's_cbranch_vccnz', poll, lambda w, it: False)
                fill[2].append(ck)
            P.wait(lg=('A', s))
            for n in range(24):
                r, k = n // 4, n % 4
                mfma(P, ACC + (r*4 + k)*4, AF + (s % 2)*16 + 4*k, BF + st*24 + 4*r)
                for f in fill[n]: f()
    i0 = len(P.cur)
    P.loop(NIT, 's27', body, lambda t: (t[0], t[1] - NW) + tuple(t[2:]))
    if OPT['abl3']:
        ab = OPT['abl3'].split()
        lp = P.cur[-1]
        lp.body = [x for x in lp.body if not (('o' in ab and x.kind == 'vload') or ('w' in ab and x.kind == 'dma') or ('mfma' in ab and x.kind == 'mfma') or ('ds' in ab and x.kind == 'dsr'))]
    stamp(P, 6, not OPT['ts2'])
    P.wait(lg='all', vm='all')
    e('s_barrier')
    for q in range(1, 4):
        e(f's_xor_b32 s3, s4, {q}'); e('s_mul_i32 s3, s3, 18432'); e(f's_add_u32 s3, s3, {(q-1)*6144}')
        e(f'v_add_u32 v{AA+q}, s3, v{L16}')
        a, bq = q & 1, q >> 1
        for r in range(3):
            for k in range(2):
                P.ds(f'ds_write_b128 v{AA+q}, {vr(ACC + ((3*a+r)*4 + 2*bq + k)*4, 4)} offset:{(r*2+k)*1024}', 'w')
        if q == 2: P.wait(lg='all')
    e('s_mul_i32 s3, s4, 18432'); e(f'v_add_u32 v{AA}, s3, v{L16}')
    P.wait(lg='all'); e('s_barrier')
    RB = 96
    for q in range(3):
        for t in range(6):
            P.ds(f'ds_read_b128 {vr(RB + (q*6+t)*4, 4)}, v{AA} offset:{q*6144 + t*1024}', ('r', q, t))
            if len(P.lg) >= 12: P.wait(lg=P.lg[5])
    P.wait(lg='all')
    for r in range(3):
        for k in range(2):
            d = ACC + (r*4 + k)*4
            for q in range(3):
                for i in range(4): e(f'v_add_f32 v{d+i}, v{d+i}, v{RB + (q*6 + r*2 + k)*4 + i}')
        X, Y, D = ACC + (r*4)*4, ACC + (r*4+1)*4, AF + 4*r
        e(f'v_cvt_pk_bf16_f32 v{D}, v{X}, v{X+1}'); e(f'v_cvt_pk_bf16_f32 v{D+1}, v{X+2}, v{X+3}')
        e(f'v_cvt_pk_bf16_f32 v{D+2}, v{Y}, v{Y+1}'); e(f'v_cvt_pk_bf16_f32 v{D+3}, v{Y+2}, v{Y+3}')
        e(f'v_permlane32_swap_b32 v{D}, v{D+2}'); e(f'v_permlane32_swap_b32 v{D+1}, v{D+3}')
        e(f'v_permlane16_swap_b32 v{D}, v{D+2}'); e(f'v_permlane16_swap_b32 v{D+1}, v{D+3}')
        e(f's_mov_b32 s26, {r*16*2304}')
        P.vmem(f'buffer_store_dwordx4 {vr(D,4)}, v{VOUT}, s[{SOUT}:{SOUT+3}], s26 offen {OPT["out_st"]}', 'st')
    P.lab('.Lk1_fin')

HDR = open('cdna_kernels/' + NAME + '.s.ref').read().split('; Override launch')[0]

def kd(name, vg, sg):
    return f""".p2align 6
.amdhsa_kernel {name}
  .amdhsa_next_free_vgpr {vg}
  .amdhsa_next_free_sgpr {sg}
  .amdhsa_accum_offset {(vg+3)//4*4}
  .amdhsa_group_segment_fixed_size 0
  .amdhsa_kernarg_size 104
  .amdhsa_user_sgpr_count 2
  .amdhsa_user_sgpr_kernarg_segment_ptr 1
  .amdhsa_system_sgpr_workgroup_id_x 1
.end_amdhsa_kernel
"""

def build():
    P = gen_k1()
    out = HDR
    out += f'; @launch grid=(256,1,1) block=(512,1,1) lds={K1_LDS}\n'
    out += '.amdgcn_target "amdgcn-amd-amdhsa--gfx950"\n.text\n'
    P.pad_hazards()
    if not OPT["abl"] and not OPT["abl2"] and not OPT["abl3"] and not OPT.get("cyc") and not OPT["trace"]: P.check_loads()
    sys.stderr.write(f'{dict(P.count(0))}\n')
    out += f'.globl {KNAME}\n.p2align 8\n.type {KNAME},@function\n{KNAME}:\n' + '\n'.join(P.emit()) + '\n'
    out += '.Lcode_end:\n'
    out += '.section .rodata,"a"\n' + kd(KNAME, 256, 102)
    return out

if __name__ == '__main__':
    dst = 'cdna_kernels/' + NAME + '.s'
    for a in sys.argv[1:]:
        if '=' in a:
            k, v = a.split('=', 1)
            if k == 'out': dst = v
            elif isinstance(OPT[k], bool): OPT[k] = (v == '1')
            elif isinstance(OPT[k], int): OPT[k] = int(v)
            else: OPT[k] = v.replace('+', ' ')
    open(dst, 'w').write(build())
```

```python
import sys, struct, math, re
from dsl import *

NAME = 'concat_heads__mha_block_cached__gqa_block_cached__near_ridge'
def fbits(x): return struct.unpack('<I', struct.pack('<f', x))[0]
CSC = math.log2(math.e) / math.sqrt(128.0)
BIG = 0x20000000

OPT = dict(kv_pol='nt', x_pol='', w_pol='', o_st='sc1', o_ld='sc1', wo_pol='', out_st='', ts=False, ts2=False, clk=False,
           qrot=True, k2a=1, k2b=0, cpf=True, abl='', abl2='', t0=22, lak=4, w2=True, cyc=False, krot=0, slp=3, nw=8, nw0=2, pa=27, dyn=False, nf=True, rtc=0, early=True, wpos=27, trace=False, abl3='', wpf=True, spread=True, dla=4, ela=4, la=4, kvq='5,8,11,14', st='', sti=1, hprio=0, post4=3)

def mfma(P, d, a, b, first=False):
    c = '0' if first else vr(d, 4)
    P.e(f'v_mfma_f32_16x16x32_bf16 {vr(d,4)}, {vr(a,4)}, {vr(b,4)}, {c}')

def mfma32(P, d, a, b, first=False):
    c = '0' if first else vr(d, 16)
    P.e(f'v_mfma_f32_32x32x16_bf16 {vr(d,16)}, {vr(a,4)}, {vr(b,4)}, {c}')

def femit(P, dst, x, t1, t2):
    P.e(f'v_lshrrev_b32 v{t1}, 3, v{x}')
    P.e(f'v_lshrrev_b32 v{t2}, 2, v{x}')
    P.e(f'v_xor_b32 v{t2}, v{t2}, v{t1}')
    P.e(f'v_and_b32 v{t2}, 1, v{t2}')
    P.e(f'v_lshl_or_b32 v{t1}, v{t2}, 1, v{t1}')
    P.e(f'v_and_b32 v{dst}, 3, v{x}')
    P.e(f'v_lshl_or_b32 v{dst}, v{dst}, 2, v{t1}')

def srd(P, d, lo, hi, size):
    P.e(f's_mov_b32 s{d}, s{lo}')
    P.e(f's_and_b32 s{d+1}, s{hi}, 0xffff')
    P.e(f's_mov_b32 s{d+2}, {size}')
    P.e(f's_mov_b32 s{d+3}, 0x20000')

def stamp(P, idx, cond=True):
    if OPT['ts'] and cond:
        P.e(f's_memrealtime s[{60+2*idx}:{61+2*idx}]')
        if OPT['clk'] and idx in (3, 4): P.e(f's_memtime s[{70+2*idx}:{71+2*idx}]')
        if OPT['clk'] and idx in (1, 2): P.e(f's_memtime s[{74+2*idx}:{75+2*idx}]')
        if OPT['clk'] and idx == 2: P.e('s_waitcnt lgkmcnt(0)'); P.e('s_sub_u32 s80, s78, s76')
        P.e('s_waitcnt lgkmcnt(0)')
def stamp_it(P, idx, itv):
    if OPT['ts'] and OPT['ts2']:
        def f():
            P.e(f'{"s_memtime" if OPT["cyc"] else "s_memrealtime"} s[{60+2*idx}:{61+2*idx}]')
            if not OPT['cyc']: P.e('s_waitcnt lgkmcnt(0)')
        P.ool([f's_cmp_eq_u32 s27, {itv}'], 's_cbranch_scc1', f, lambda w, it: it == itv)
def stamps_out(P, off, wreg, wg_shift):
    e = P.e
    P.wait(vm='all')
    stamp(P, 7)
    if OPT['clk']:
        e('s_sub_u32 s72, s78, s76'); e('s_mov_b32 s73, 0'); e('s_mov_b32 s70, s80'); e('s_mov_b32 s71, 0')
    if False:
        e('s_sub_u32 s70, s12, s10'); e('s_mov_b32 s71, 0')
        if P.name == 'k1':
            e('s_sub_u32 s72, s16, s14'); e('s_mov_b32 s73, 0')
    e('s_load_dwordx2 s[24:25], s[0:1], 96'); e('s_waitcnt lgkmcnt(0)')
    e(f's_add_u32 s24, s24, {off}'); e('s_addc_u32 s25, s25, 0')
    e(f's_lshl_b32 s3, s2, {wg_shift}'); e(f's_lshl_b32 s26, {wreg}, 6'); e('s_add_u32 s3, s3, s26')
    e('v_mov_b32 v0, s3')
    for k in range(8):
        e(f'v_mov_b32 v2, s{60+2*k}'); e(f'v_mov_b32 v3, s{61+2*k}')
        e(f'global_store_dwordx2 v0, v[2:3], s[24:25] offset:{8*k}')
        e('s_waitcnt vmcnt(0)')

def code_prefetch(P, start, end, dst):
    e = P.e
    e('s_getpc_b64 s[56:57]')
    P.lab(f'.Lpc_{P.name}')
    e(f's_sub_u32 s56, s56, .Lpc_{P.name}-{start}'); e('s_subb_u32 s57, s57, 0')
    e('v_lshlrev_b32 v12, 7, v0')
    e(f's_mov_b32 s3, {end}-{start}-4')
    e(f'v_min_u32 v13, s3, v12')
    P.vmem(f'global_load_dword v{dst}, v13, s[56:57]', 'pf')

STG, XB = 25600, 9216
QB0, NQ = 0, 5
XCH = 131072
FLG = 161792
K1_LDS = 163840
SX, SW, SK, SV, SO = 28, 32, 36, 40, 44
FW, FRL, FRC, FT, FV, LANE = 186, 187, 188, 189, 190, 191

def sidx(s): return (s + 2) % NQ

class Flags:
    def __init__(s, P): s.P = P
    def post(s, val, off=0):
        s.P.e(f'v_mov_b32 v{FV}, {val}')
        s.P.ds(f'ds_write_b32 v{FW}, v{FV} offset:{off}', 'fw')
    def read(s, ad): s.P.ds(f'ds_read_b32 v{FT}, v{ad}', 'fr')
    def check(s, ad, val):
        P = s.P
        P.wait(lg='fr')
        def spin():
            sp = P.newlab('sp'); P.lab(sp)
            if OPT['slp']: P.e(f's_sleep {OPT["slp"]}')
            P.e(f'ds_read_b32 v{FT}, v{ad}'); P.e('s_waitcnt lgkmcnt(0)')
            P.e(f'v_cmp_gt_u32 vcc, {val}, v{FT}'); P.e('s_nop 0'); P.e(f's_cbranch_vccnz {sp}')
        P.ool([f'v_cmp_gt_u32 vcc, {val}, v{FT}'], 's_cbranch_vccnz', spin, lambda w, it: False)
    def need(s, ad, val): s.read(ad); s.check(ad, val)

KNAME = NAME + '_kernel'
FLAGOFF = 0x2000000
NONCE = FLG + 1024

def gen_k1():
    P = Prog('k1', 's4'); e = P.e
    F = Flags(P)
    e('s_cmp_ge_u32 s2, 256'); e('s_cbranch_scc1 .Lk1_end')
    e('s_load_dwordx8 s[8:15], s[0:1], 0')
    e('s_load_dwordx8 s[16:23], s[0:1], 40')
    e('s_load_dwordx2 s[24:25], s[0:1], 96')
    e('s_load_dwordx2 s[82:83], s[0:1], 88')
    if OPT['ts']:
        e('s_memrealtime s[60:61]')
        for k in range(62, 76): e(f's_mov_b32 s{k}, 0')
    if OPT['cpf']: code_prefetch(P, KNAME, '.Lcode_end', 87)
    e('v_lshrrev_b32 v14, 6, v0')
    e('v_readfirstlane_b32 s87, v14')
    e(f'v_and_b32 v{LANE}, 63, v0')
    e('s_and_b32 s4, s87, 3'); e('s_lshr_b32 s81, s87, 2')
    e('s_and_b32 s48, s2, 7'); e('s_lshr_b32 s49, s2, 3')
    e('s_lshr_b32 s50, s48, 2')
    e('s_and_b32 s51, s48, 3'); e('s_lshl_b32 s51, s51, 3')
    e('s_and_b32 s55, s49, 3'); e('s_lshl_b32 s55, s55, 1'); e('s_add_u32 s51, s51, s55')
    e('s_lshr_b32 s52, s49, 2')
    e(f's_mov_b32 s7, {fbits(CSC):#x}')
    e(f'v_and_b32 v2, 31, v0'); e('v_lshlrev_b32 v2, 2, v2'); e('v_lshl_add_u32 v2, v14, 7, v2'); e(f'v_add_u32 v{FW}, {FLG}, v2')
    e('v_and_b32 v2, 3, v0'); e('v_mul_u32_u24 v2, 132, v2'); e(f'v_add_u32 v{FRL}, {FLG + 1536}, v2')
    e('v_and_b32 v2, 7, v0'); e('v_mul_u32_u24 v2, 132, v2'); e(f'v_add_u32 v{FRC}, {FLG}, v2')
    e(f'v_mov_b32 v{FV}, 0')
    e(f'ds_write_b32 v{FW}, v{FV}'); e(f'ds_write_b32 v{FW}, v{FV} offset:1024')
    def role(m):
        (gen_main if m else gen_helper)(P, F)
        P.lg = []; P.vm = []
    P.variant(None, role, pred=lambda w, it: (w & 4) == 0, cmp='s_cmp_eq_u32 s81, 0')
    if OPT['ts']:
        e('s_waitcnt vmcnt(0) lgkmcnt(0)')
        stamps_out(P, 0x4000000, 's87', 9)
    P.lab('.Lk1_end')
    e('s_endpgm')
    return P

def o_srd(P):
    e = P.e
    e('s_mul_i32 s3, s50, 72'); e('s_mul_i32 s26, s52, 9'); e('s_add_u32 s3, s3, s26'); e('s_lshl_b32 s3, s3, 7')
    e('s_lshl_b32 s26, s51, 2'); e('s_add_u32 s3, s3, s26'); e('s_lshl_b32 s3, s3, 10')
    e('s_add_u32 s24, s24, s3'); e('s_addc_u32 s25, s25, 0'); srd(P, SO, 24, 25, (8 * 128 + 8) * 1024)

def qrot(P):
    e = P.e
    if OPT['qrot']:
        e('s_add_u32 s53, s55, s52'); e('s_and_b32 s53, s53, 7'); e('s_mul_i32 s53, s53, 9'); e('s_lshr_b32 s53, s53, 2')
    else: e('s_mov_b32 s53, 0')

def latest(P, tags):
    need = [t for t in tags if t in P.lg]
    if need: P.wait(lg=max(need, key=lambda t: len(P.lg) - 1 - P.lg[::-1].index(t)))

def ablate(items, ab):
    out = []
    for x in items:
        if isinstance(x, Ins):
            if 'mfma' in ab and x.kind == 'mfma': continue
            if 'valu' in ab and x.op in ('v_exp_f32', 'v_add_f32', 'v_cvt_pk_bf16_f32', 'v_max3_f32'): continue
            if 'exp' in ab and x.op in ('v_exp_f32', 'v_add_f32', 'v_cvt_pk_bf16_f32'): continue
            if 'pv' in ab and x.kind == 'mfma' and re.match(r'v\[(0|16|32|48):', x.ops[0]): continue
            if 'tr' in ab and 'tr_b16' in x.op: continue
            if 'ds' in ab and x.kind == 'dsr' and f'v{FT},' not in x.text: continue
            if 'dma' in ab and x.kind == 'dma' and ' nt ' in x.text: continue
            if 'st' in ab and x.kind == 'vstore' and 's[44:47]' in x.text: continue
            if 'qdma' in ab and x.kind == 'dma' and ' nt ' not in x.text: continue
        elif isinstance(x, Variant): x.A = ablate(x.A, ab); x.B = ablate(x.B, ab)
        elif isinstance(x, Loop): x.body = ablate(x.body, ab)
        out.append(x)
    return out

def gen_main(P, F):
    e = P.e
    O, S, FB, AK, AV, QA, QBr = 0, 64, 128, 160, 168, 192, 224
    VST, M_, L_, LC, R_, T1 = 152, 164, 166, 154, 156, 158
    AW, AX, BFm, AW2, VW, SAV = 160, 168, 170, 192, 202, 204
    t = 20
    e(f'v_and_b32 v{t}, 15, v{LANE}'); e(f'v_lshrrev_b32 v{t+1}, 4, v{LANE}')
    for u in range(2):
        e('s_lshl_b32 s3, s4, 3'); e(f's_add_u32 s3, s3, {4*u}'); e(f'v_add_u32 v{t+4}, s3, v{t+1}'); e(f'v_and_b32 v{t+5}, 15, v{t+4}')
        femit(P, t+6, t+5, t+7, t+8)
        e(f'v_xor_b32 v{t+6}, v{t+6}, v{t}'); e(f'v_lshlrev_b32 v{t+6}, 4, v{t+6}'); e(f'v_lshl_add_u32 v{VW+u}, v{t+4}, 13, v{t+6}')
    e('s_lshl_b32 s6, s4, 11')
    qrot(P); e('s_lshl_b32 s54, s53, 18')
    e('s_waitcnt lgkmcnt(0)')
    e('s_cmp_eq_u32 s50, 0'); e('s_cselect_b64 s[14:15], s[14:15], s[22:23]')
    e('s_lshl_b32 s3, s51, 8'); e('s_add_u32 s14, s14, s3'); e('s_addc_u32 s15, s15, 0')
    srd(P, SW, 14, 15, 575 * 8192 + 512)
    def wpiece(s, k):
        hd, u = k // 2, k % 2
        def pre(): e(f's_add_u32 m0, s6, {QB0 + sidx(s)*STG + XB + hd*8192 + u*1024 - hd*256}')
        def post():
            P.vmem(f'buffer_load_dwordx4 v{VW+u}, s[{SW}:{SW+3}], s54 offen offset:{hd*256} {OPT["w_pol"]} lds', ('q', s))
        return pre, post
    def wadv(): e('s_add_u32 s54, s54, 262144'); e(f's_cmp_eq_u32 s54, {18*262144}'); e('s_cselect_b32 s54, 0, s54')
    for s in range(2):
        for k in range(4): a_, b_ = wpiece(s, k); a_(); b_()
        wadv()
    e(f'v_lshrrev_b32 v{t+2}, 2, v{t}'); e(f'v_and_b32 v{t+3}, 3, v{t}')
    def traddr(dst, shift, base):
        e(f'v_lshl_add_u32 v{t+4}, v{t+1}, {shift}, v{t+2}'); e(f'v_and_b32 v{t+5}, 15, v{t+4}'); femit(P, t+6, t+5, t+7, t+8)
        e(f'v_lshrrev_b32 v{t+7}, 1, v{t+3}'); e(f'v_xor_b32 v{t+6}, v{t+6}, v{t+7}')
        e(f'v_lshlrev_b32 v{t+6}, 4, v{t+6}'); e(f'v_and_b32 v{t+7}, 1, v{t+3}'); e(f'v_lshl_or_b32 v{t+6}, v{t+7}, 3, v{t+6}')
        e(f'v_lshl_add_u32 v{t+6}, v{t+4}, 8, v{t+6}'); e(f'v_add_u32 v{dst}, {base}, v{t+6}')
    traddr(AW, 3, QB0 + XB)
    for d in range(1, 8): e(f'v_xor_b32 v{AW+d}, {d << 5}, v{AW}')
    e(f'v_sub_u32 v{t+6}, 4, v{t+2}'); e(f'v_and_b32 v{t+6}, 3, v{t+6}'); e(f'v_xor_b32 v{t+6}, v{t+6}, v{t+1}'); e(f'v_lshlrev_b32 v{t+6}, 4, v{t+6}')
    e(f'v_lshl_add_u32 v{t+6}, v{t}, 6, v{t+6}'); e(f's_add_u32 s3, s6, {QB0}'); e(f'v_add_u32 v{AX}, s3, v{t+6}')
    for k in range(9): e(f'v_add_u32 v{AW2+k}, {2*STG}, v{AW+k}')
    def qa(s): return (AW, sidx(s)*STG) if sidx(s) < 2 else (AW2, (sidx(s) - 2)*STG)
    traddr(SAV, 2, 32768)
    femit(P, t+6, t, t+7, t+8)
    e(f'v_xor_b32 v{t+6}, v{t+6}, v{t+1}'); e(f'v_lshlrev_b32 v{t+6}, 4, v{t+6}'); e(f'v_lshl_add_u32 v{FRC}, v{t}, 8, v{t+6}')
    o_srd(P)
    P.wait(vm=('q', 0))
    seq = [(s, hd, dt) for s in range(18) for hd in range(2) for dt in range(8)]
    NB, LA = 8, 5
    def rdA(i, hf):
        s, hd, dt = seq[i]; a, off = qa(s)
        P.ds(f'ds_read_b64_tr_b16 {vr(FB + 4*(i % NB) + 2*hf, 2)}, v{a + (dt ^ hf)} offset:{off + hd*8192 + 1024*hf}', ('A', i))
    def rdB(s, j):
        a, off = qa(s)
        P.ds(f'ds_read_b128 {vr(BFm + 8*(s % 2) + 4*j, 4)}, v{a + 8} offset:{off + 1024*j}', ('B', s, j))
    e('s_barrier')
    stamp(P, 1, not OPT['ts2'])
    rdB(0, 0); rdB(0, 1)
    for i in range(LA): rdA(i, 0); rdA(i, 1)
    for k in range(4): a_, b_ = wpiece(2, k); a_(); b_()
    wadv()
    i0 = len(P.cur)
    for i, (s, hd, dt) in enumerate(seq):
        k = i % 16
        WP = {1: 0, 3: 1, 5: 2, 7: 3}
        if k in WP and s + 3 < 18: wpiece(s + 3, WP[k])[0]()
        latest(P, [('A', i), ('B', s, 0), ('B', s, 1)])
        mfma(P, hd*64 + dt*8, FB + 4*(i % NB), BFm + 8*(s % 2), s == 0)
        if k in WP and s + 3 < 18: wpiece(s + 3, WP[k])[1]()
        if k == 8 and s + 3 < 18: wadv()
        if s < 17 and k == 16 - LA - 1:
            P.wait(vm=('q', s + 1)); e('s_barrier')
        if i + LA < len(seq): rdA(i + LA, 0)
        mfma(P, hd*64 + dt*8 + 4, FB + 4*(i % NB), BFm + 8*(s % 2) + 4, s == 0)
        if i + LA < len(seq): rdA(i + LA, 1)
        if s < 17:
            if k == 11: rdB(s + 1, 0)
            if k == 12: rdB(s + 1, 1)
        if i == len(seq) - 1: e('s_barrier')
    if OPT['abl']: P.cur[i0:] = ablate(P.cur[i0:], OPT['abl'].split())
    stamp(P, 2, not OPT['ts2'])
    P.wait(vm='all')
    e(f'v_mov_b32 v{AK}, v{FRC}')
    for u in range(1, 4): e(f'v_xor_b32 v{AK+u}, {u << 6}, v{AK}')
    e(f'v_mov_b32 v{AV}, v{SAV}')
    for d in range(1, 8): e(f'v_xor_b32 v{AV+d}, {d << 5}, v{AV}')
    e(f'v_lshlrev_b32 v{VST}, 4, v{LANE}')
    NB = 6
    PX = 176
    order = [('S', 0), ('S', 1), ('P', 2), ('S', 2), ('S', 3), ('P', 3), ('P', 0), ('P', 1)]
    pbase = lambda b, j: PX + 4*j if b == 3 else S + 16*b + 8*j
    mf, reads = [], []
    for kind, b in order:
        for k in range(8):
            if kind == 'S':
                tt, u = k // 4, k % 4
                reads.append((('K', b, k), 1, AK + u, b*8192 + tt*4096))
                mf.append([(S + 16*b + 8*j + 4*tt, QA + 16*j + 4*u, u == 0) for j in range(2)])
            else:
                reads.append((('V', b, k), 2, AV + k, b*8192))
                mf.append([(O + 32*j + 4*k, pbase(b, j), False) for j in range(2)])
    prev = lambda m: order[m // 8] in (('P', 2), ('P', 3))
    CHK, LA = 48, OPT['lak']
    def rd(i, it=0):
        tag, n, ad, off = reads[i]; b = FB + 4*(i % NB)
        if n == 1: P.ds(f'ds_read_b128 {vr(b,4)}, v{ad} offset:{off}', (it,) + tag)
        else:
            P.ds(f'ds_read_b64_tr_b16 {vr(b,2)}, v{ad} offset:{off}', (it,) + tag)
            P.ds(f'ds_read_b64_tr_b16 {vr(b+2,2)}, v{ad} offset:{off + 4096}', (it,) + tag)
    groups = [(b, j) for b in range(4) for j in range(2)]
    gb = {g: S + 16*g[0] + 8*g[1] for g in groups}
    sdone = {0: 7, 1: 15, 2: 31, 3: 39}
    dline = {0: 48, 1: 56, 2: 80, 3: 96}
    def valu_plan():
        T0 = OPT['t0']
        at = {m: [] for m in range(128)}
        for b in range(4):
            for k in range(8): at[min(sdone[b] + 1 + k, CHK - 1)].append(((b, k // 4), 'max', k % 4))
        for i, g in enumerate(groups):
            for k in range(8):
                m = T0 + 8*i + k
                at[m].insert(0, (g, 'exp', k))
                at[m + 1].append((g, 'add', k))
                if k % 2 == 1: at[m + 1].append((g, 'cvt', k // 2))
            assert T0 + 8*i + 8 < dline[g[0]] and T0 + 8*i > min(sdone[g[0]] + 1 + 4*g[1] + 3, CHK - 1)
        post = {m: [(1,) + o for o in at[m + 64]] + [(0,) + o for o in at[m]] for m in range(64)}
        for m in post: post[m].sort(key=lambda o: o[2] != 'exp')
        return post
    vpost = valu_plan()
    lc0 = [next(o for m in range(CHK) for o in vpost[m] if o[0] == 0 and o[2] == 'add' and o[1][1] == j) for j in range(2)]
    def vop(o, m, slow=False):
        lag, g, k_, k = o; r = gb[g]; j = g[1]
        if k_ == 'max': e(f'v_max3_f32 v{M_+j}, v{M_+j}, v{r+2*k}, v{r+2*k+1}')
        elif k_ == 'exp': e(f'v_exp_f32 v{r+k}, v{r+k}')
        elif k_ == 'cvt': e(f'v_cvt_pk_bf16_f32 v{pbase(*g)+k}, v{r+2*k}, v{r+2*k+1}')
        elif lag == 0 and m < CHK and not slow:
            e(f'v_mov_b32 v{LC+j}, v{r+k}' if o == lc0[j] else f'v_add_f32 v{LC+j}, v{LC+j}, v{r+k}')
        else: e(f'v_add_f32 v{L_+j}, v{L_+j}, v{r+k}')
    CK = {16 - LA - 1: 's90', 24 - LA - 1: 's91', 48 - LA - 1: 's92', 64 - LA - 1: 's93'}
    POST = {47: 's94', 49: 's95', 63: 's96'}
    def ostore(D, k): P.vmem(f'buffer_store_dwordx4 {vr(D + 4*k,4)}, v{VST}, s[{SO}:{SO+3}], s{88 if k < 4 else 99} offen offset:{(k % 4)*1024} {OPT["o_st"]}', 'st', optional=True)
    def slots(lo, hi, mode, events=True, zero=False):
        STS = {x: i + 1 for i, x in enumerate(OPT['st'].split(','))} if mode == 'fast' else {}
        skip = lambda m: (mode in ('first', 'redo') and prev(m)) or (mode == 'tail' and not prev(m))
        keep = lambda o: mode == 'fast' or (mode == 'first' and o[0] == 0) or (mode == 'tail' and o[0] == 1)
        for m in range(lo, hi):
            ops = [o for o in vpost[m] if keep(o)]
            if not skip(m):
                w2 = m + 1 if (OPT['w2'] and m % 2 == 0 and (0,) + reads[m + 1][0] in P.lg) else m
                P.wait(lg=(0,) + reads[w2][0])
                mfma(P, mf[m][0][0], FB + 4*(m % NB), mf[m][0][1], mf[m][0][2] or zero)
            if ops: vop(ops.pop(0), m)
            if not skip(m): mfma(P, mf[m][1][0], FB + 4*(m % NB), mf[m][1][1], mf[m][1][2] or zero)
            if f'{m}' in STS: stamp_it(P, STS[f'{m}'], OPT['sti'])
            if events:
                if m + 2 in CK and not (mode == 'first' and CK[m + 2] == 's90'): F.read(FRL)
                if m in CK and not (mode == 'first' and CK[m] == 's90'): F.check(FRL, CK[m])
                if m == 45 and mode == 'fast': P.ool(['s_cmp_eq_u32 s27, 6'], 's_cbranch_scc1', lambda: e('s_waitcnt vmcnt(0)'), lambda w, it: it == 6)
                if m in POST: F.post(POST[m])
            i = m + LA
            if i >= 64:
                if events: rd(i - 64, 1)
            elif not skip(i) and not (mode in ('redo', 'tail') and i >= CHK): rd(i)
            for o in ops: vop(o, m)
            if events and m % 16 == 6 and mode != 'first':
                P.ool(['s_cmp_eq_u32 s27, 5'], 's_cbranch_scc1', lambda: (ostore(QBr, m // 16 * 2), ostore(QBr, m // 16 * 2 + 1)), lambda w, it: it == 5)
            if events and 50 <= m < 54: e(f'v_xor_b32 v{AK + m - 50}, 0x10000, v{AK + m - 50}')
            if events and m == 47 - LA and mode != 'first':
                for k in range(8): e(f'v_xor_b32 v{AV + k}, 0x10000, v{AV + k}')
    F.need(FRL, 19)
    for i in range(LA):
        if i == LA - 1: F.post(18)
        rd(i)
    for hd in range(2):
        for k in range(0, 64, 2): e(f'v_pk_mul_f32 {vr(hd*64+k,2)}, {vr(hd*64+k,2)}, s[6:7] op_sel:[0,1]')
        qs = []
        for j in range(2):
            for u in range(4):
                q, X, Y = (QA, QBr)[hd] + 16*j + 4*u, hd*64 + 16*u + 4*j, hd*64 + 16*u + 8 + 4*j
                e(f'v_cvt_pk_bf16_f32 v{q}, v{X}, v{X+1}'); e(f'v_cvt_pk_bf16_f32 v{q+1}, v{X+2}, v{X+3}')
                e(f'v_cvt_pk_bf16_f32 v{q+2}, v{Y}, v{Y+1}'); e(f'v_cvt_pk_bf16_f32 v{q+3}, v{Y+2}, v{Y+3}')
                qs.append(q)
        for sw in ('32', '16'):
            for q in qs: e(f'v_permlane{sw}_swap_b32 v{q}, v{q+2}'); e(f'v_permlane{sw}_swap_b32 v{q+1}, v{q+3}')
    def reset():
        for j in range(2): e(f'v_mov_b32 v{L_+j}, 0'); e(f'v_mov_b32 v{R_+j}, 0')
        e(f's_mov_b32 s7, {fbits(64.0):#x}')
    def mreset():
        for j in range(2): e(f'v_mov_b32 v{M_+j}, {fbits(-1e30):#x}')
    reset(); mreset()
    e(f's_mov_b32 s89, {fbits(64.0):#x}'); e('s_mov_b32 s90, 19'); e('s_mov_b32 s94, 19'); e('s_mov_b32 s97, 0xee')
    e('s_lshl_b32 s88, s4, 18'); e('s_add_u32 s99, s88, 131072')
    stamp(P, 3, not OPT['ts2'])
    def xlane(R, op):
        for sw in ('32', '16'):
            for j in range(2): e(f'v_mov_b32 v{T1+j}, v{R+j}')
            for j in range(2): e(f'v_permlane{sw}_swap_b32 v{R+j}, v{T1+j}')
            for j in range(2): e(f'{op} v{R+j}, v{R+j}, v{T1+j}')
    def finish(D, store):
        xlane(L_, 'v_add_f32')
        for j in range(2): e(f'v_rcp_f32 v{L_+j}, v{L_+j}')
        for j in range(2):
            for u in range(4):
                a = O + 32*j + 8*u
                for k in range(0, 8, 2): e(f'v_pk_mul_f32 {vr(a+k,2)}, {vr(a+k,2)}, {vr(L_,2)} ' + ('op_sel:[0,1]' if j else 'op_sel_hi:[1,0]'))
                for k in range(4): e(f'v_cvt_pk_bf16_f32 v{D + 16*j + 4*u + k}, v{a+2*k}, v{a+2*k+1}')
                if store: ostore(D, 4*j + u)
    def body():
        for k in range(1, 4): e(f's_add_u32 s{90+k}, s90, {k}')
        for k in range(1, 3): e(f's_add_u32 s{94+k}, s94, {k}')
        if OPT['st'] == 'I':
            for k in range(1, 7): stamp_it(P, k, k + OPT['sti'])
        def switch():
            for k in range(32): e(f'v_mov_b32 v{QA+k}, v{QBr+k}')
            mreset()
        P.ool(['s_cmp_eq_u32 s27, 4'], 's_cbranch_scc1', switch, lambda w, it: it == 4)
        P.ool(['s_cmp_eq_u32 s27, 0'], 's_cbranch_scc1', lambda: slots(0, CHK, 'first'), lambda w, it: it == 0, lambda: slots(0, CHK, 'fast'))
        def fin_a():
            finish(QBr, False); reset()
        P.ool(['s_cmp_eq_u32 s27, 4'], 's_cbranch_scc1', fin_a, lambda w, it: it == 4)
        e(f'v_max_f32 v{T1}, abs(v{M_}), abs(v{M_+1})')
        e(f'v_cmp_lt_f32 vcc, s7, v{T1}')
        def pv(mode):
            P.ool(['s_bitcmp0_b32 s97, s27'], 's_cbranch_scc1', lambda: slots(CHK, CHK + 8, mode, zero=True), lambda w, it: it % 4 == 0,
                  lambda: slots(CHK, CHK + 8, mode))
            slots(CHK + 8, 64, mode)
        def rest(fast):
            if fast:
                for j in range(2): e(f'v_add_f32 v{L_+j}, v{L_+j}, v{LC+j}')
                pv('fast'); return
            P.wait(lg='all')
            for i in range(LA): rd(i)
            slots(0, CHK, 'redo', events=False)
            xlane(M_, 'v_max_f32')
            for j in range(2):
                e(f'v_sub_f32 v{T1+j}, v{R_+j}, v{M_+j}'); e(f'v_min_f32 v{T1+j}, s89, v{T1+j}'); e(f'v_exp_f32 v{T1+j}, v{T1+j}')
                e(f'v_mov_b32 v{R_+j}, v{M_+j}')
            e('s_mov_b32 s7, -1.0')
            for j in range(2): e(f'v_mul_f32 v{L_+j}, v{L_+j}, v{T1+j}')
            for g in groups:
                for k in range(8): e(f'v_sub_f32 v{gb[g]+k}, v{gb[g]+k}, v{M_+g[1]}')
            for k in range(64): e(f'v_mul_f32 v{O+k}, v{O+k}, v{T1 + k // 32}')
            for m in range(64):
                for o in vpost[m]:
                    if o[0] == 0 and o[2] != 'max': vop(o, m, slow=True)
            for i in range(CHK, CHK + LA): rd(i)
            pv('slow')
        P.ool([], 's_cbranch_vccnz', lambda: rest(False), lambda w, it: (w >> 3) % 2 == 1, lambda: rest(True))
        e('s_add_u32 s90, s90, 4'); e('s_add_u32 s94, s94, 3')
    i0 = len(P.cur)
    P.vm = []
    P.loop(8, 's27', body, lambda t: (t[0] - 1,) + tuple(t[1:]) if isinstance(t, tuple) else t)
    P.wait(lg='all')
    slots(0, CHK, 'tail', events=False)
    e('s_add_u32 s88, s88, 4096'); e('s_add_u32 s99, s99, 4096')
    finish(S, True)
    if OPT['abl2']: P.cur[i0:] = ablate(P.cur[i0:], OPT['abl2'].split())
    stamp(P, 4, not OPT['ts2'])
    gen_oproj(P)

def gen_helper(P, F):
    e = P.e
    kvp, xp, wp = OPT['kv_pol'], OPT['x_pol'], OPT['w_pol']
    O8, Q8, S8, FB, QA8 = 0, 32, 64, 72, 136
    VKV, VW, VX, AK8, AV8, AW8, AX8, L16, FRH = 152, 156, 158, 161, 165, 173, 175, 176, 177
    R_, L_, T, M_, FA, TK = 178, 179, 180, 156, 157, 240
    i00 = len(P.cur)
    if OPT['hprio']: e(f's_setprio {OPT["hprio"]}')
    e(f'v_and_b32 v3, 15, v{LANE}'); e(f'v_lshrrev_b32 v4, 4, v{LANE}'); e('v_lshrrev_b32 v5, 2, v3'); e('v_and_b32 v6, 3, v3')
    e(f'v_lshrrev_b32 v7, 2, v{LANE}'); e('v_lshrrev_b32 v8, 2, v7'); e('v_sub_u32 v8, 4, v8'); e('v_and_b32 v8, 3, v8')
    e('v_xor_b32 v8, v8, v6'); e('v_lshlrev_b32 v8, 4, v8')
    e('v_mul_u32_u24 v9, 1152, v7'); e('v_add_u32 v9, v9, v8'); e(f'v_add_u32 v{VX+2}, {128*1152}, v9')
    e('s_mul_i32 s3, s4, 18432'); e(f'v_add_u32 v{VX}, s3, v9'); e(f'v_add_u32 v{VX+1}, 73728, v{VX}')
    e('s_lshl_b32 s5, s4, 10'); e('s_lshl_b32 s6, s4, 11'); e('s_lshl_b32 s59, s4, 12')
    e('s_waitcnt lgkmcnt(0)')
    e('s_cmp_eq_u32 s50, 0')
    for k in range(4): e(f's_cselect_b64 s[{8+2*k}:{9+2*k}], s[{8+2*k}:{9+2*k}], s[{16+2*k}:{17+2*k}]')
    e('s_mul_i32 s3, s52, 165888'); e('s_add_u32 s8, s8, s3'); e('s_addc_u32 s9, s9, 0')
    srd(P, SX, 8, 9, 165888)
    qrot(P); e('s_lshl_b32 s53, s53, 6')
    def qstage(s):
        st, tag = QB0 + sidx(s)*STG, ('q', s)
        for u in range(2):
            e(f's_add_u32 m0, s5, {st + u*4096}')
            P.vmem(f'buffer_load_dwordx4 v{VX+u}, s[{SX}:{SX+3}], s53 offen {xp} lds', tag)
        def x8():
            e(f's_mov_b32 m0, {st + 8192}')
            P.vmem(f'buffer_load_dwordx4 v{VX+2}, s[{SX}:{SX+3}], s53 offen {xp} lds', tag, optional=True)
        P.only(s % 4, x8)
        e('s_add_u32 s53, s53, 64'); e('s_cmp_eq_u32 s53, 1152'); e('s_cselect_b32 s53, 0, s53')
    qstage(0); qstage(1)
    def tag():
        e('s_memrealtime s[84:85]'); e('s_waitcnt lgkmcnt(0)'); e('s_or_b32 s84, s84, 1')
        e('v_mov_b32 v7, 0'); e('v_mov_b32 v8, s84')
        e('s_mov_b64 exec, 1')
        P.vmem('global_store_dword v7, v8, s[82:83] sc1', 'tag', optional=True)
        e('s_mov_b64 exec, -1')
    e('s_lshl_b32 s3, s2, 3'); e('s_add_u32 s3, s3, s87')
    P.ool(['s_cmp_eq_u32 s3, 4'], 's_cbranch_scc1', tag, lambda w, it: w == 4)
    if OPT['krot'] == 1: e('s_lshr_b32 s58, s2, 3')
    elif OPT['krot'] == 2: e('s_mov_b32 s58, s2')
    elif OPT['krot'] == 3:
        e('s_lshr_b32 s58, s2, 3'); e('s_add_u32 s58, s58, s2'); e('s_lshr_b32 s3, s2, 6'); e('s_add_u32 s58, s58, s3')
    else: e('s_mov_b32 s58, 0')
    e('s_and_b32 s58, s58, 7'); e('s_lshl_b32 s58, s58, 14')
    e('s_lshl_b32 s3, s52, 5'); e('s_add_u32 s3, s3, s51'); e('s_lshl_b32 s3, s3, 17')
    e('s_add_u32 s10, s10, s3'); e('s_addc_u32 s11, s11, 0'); srd(P, SK, 10, 11, 262144)
    e('s_add_u32 s12, s12, s3'); e('s_addc_u32 s13, s13, 0'); srd(P, SV, 12, 13, 262144)
    o_srd(P)
    for t in range(4):
        e(f'v_add_u32 v7, {4*t}, v4'); femit(P, 8, 7, 9, 10)
        e('v_xor_b32 v8, v8, v3'); e('v_lshlrev_b32 v8, 4, v8'); e('v_lshl_add_u32 v8, v4, 8, v8'); e(f'v_add_u32 v{VKV+t}, s59, v8')
    femit(P, 8, 3, 9, 10)
    e('v_xor_b32 v8, v8, v4'); e('v_lshlrev_b32 v8, 4, v8'); e('v_lshl_add_u32 v8, v3, 8, v8'); e(f'v_add_u32 v{AK8}, s59, v8')
    for u in range(1, 4): e(f'v_xor_b32 v{AK8+u}, {u << 6}, v{AK8}')
    def traddr16(dst, shift, base_s, base):
        e(f'v_lshl_add_u32 v7, v4, {shift}, v5'); e('v_and_b32 v11, 15, v7'); femit(P, 8, 11, 9, 10)
        e('v_lshrrev_b32 v9, 1, v6'); e('v_xor_b32 v8, v8, v9'); e('s_lshl_b32 s3, s4, 2'); e('v_xor_b32 v8, s3, v8')
        e('v_lshlrev_b32 v8, 4, v8'); e('v_and_b32 v9, 1, v6'); e('v_lshl_or_b32 v8, v9, 3, v8'); e('v_lshl_add_u32 v8, v7, 8, v8')
        if base_s: e(f'v_add_u32 v8, {base_s}, v8')
        e(f'v_add_u32 v{dst}, {base}, v8')
    traddr16(AV8, 2, 's59', 32768)
    for d in range(1, 8): e(f'v_xor_b32 v{AV8+d}, {d << 5}, v{AV8}')
    traddr16(AW8, 3, None, QB0 + XB); e(f'v_xor_b32 v{AW8+1}, 32, v{AW8}')
    e('v_sub_u32 v8, 4, v5'); e('v_and_b32 v8, 3, v8'); e('v_xor_b32 v8, v8, v4'); e('v_lshlrev_b32 v8, 4, v8')
    e('v_lshl_add_u32 v8, v3, 6, v8'); e(f'v_add_u32 v{AX8}, {QB0 + 8192}, v8')
    e(f'v_lshlrev_b32 v{L16}, 4, v{LANE}')
    AW8b = 183
    for k in range(3): e(f'v_add_u32 v{AW8b+k}, {2*STG}, v{AW8+k}')
    e(f'v_add_u32 v{FRH}, {FLG + 512 - (FLG + 1536)}, v{FRL}')
    def item(n):
        S = SK if n % 4 < 2 else SV
        e(f's_add_u32 m0, s59, {(n % 8)*16384}')
        e(f's_xor_b32 s26, s58, {(n // 4)*32768 + (n % 2)*16384}')
        for t in range(4):
            if 'kv8' in OPT['abl2'] and n >= 8: continue
            P.vmem(f'buffer_load_dwordx4 v{VKV+t}, s[{S}:{S+3}], s26 offen offset:{t*1024} {kvp} lds', ('kv', n))
    SEQ = [0, 1, 2] + [x for c in range(1, 8) for x in (4*c, 4*c - 1, 4*c + 1, 4*c + 2)] + [31]
    def cneed(n):
        c, k = (n - 8) // 4, n % 4
        return 19 + 3*c + (1, 1, 2, 3)[k]
    P.wait(vm=('q', 0)); e('s_barrier')
    stamp(P, 1, not OPT['ts2'])
    qstage(2)
    for s in range(18):
        a, off = (AW8, sidx(s)*STG) if sidx(s) < 2 else (AW8b, (sidx(s) - 2)*STG)
        P.ds(f'ds_read_b128 {vr(FB,4)}, v{a+2} offset:{off}', 'b')
        for hd in range(2):
            for dd in range(2):
                b = FB + 4 + 8*hd + 4*dd if hd == 0 else S8 + 4*dd
                P.ds(f'ds_read_b64_tr_b16 {vr(b,2)}, v{a+dd} offset:{off + hd*8192}', ('a', hd, dd))
                P.ds(f'ds_read_b64_tr_b16 {vr(b+2,2)}, v{a+(dd^1)} offset:{off + hd*8192 + 1024}', ('a', hd, dd))
        if s + 3 < 18: qstage(s + 3)
        if OPT['early']:
            if s == 15: item(0)
            if s == 16: item(1); item(2)
        for hd in range(2):
            for dd in range(2):
                P.wait(lg=('a', hd, dd)); mfma(P, QA8 + 8*hd + 4*dd, FB + 4 + 8*hd + 4*dd if hd == 0 else S8 + 4*dd, FB, s == 0)
        if s < 17: P.wait(vm=('q', s + 1))
        e('s_barrier')
    stamp(P, 2, not OPT['ts2'])
    if not OPT['early']: item(0); item(1); item(2)
    item(SEQ[3])
    P.wait(vm=('kv', 0)); F.post(19, 1024); item(SEQ[4])
    for k in range(16): e(f'v_mul_f32 v{QA8+k}, s7, v{QA8+k}')
    e(f's_add_u32 s3, s5, {XCH}'); e(f'v_add_u32 v{T}, s3, v{L16}')
    for hd in range(2):
        d, X, Y = FB + 4*hd, QA8 + 8*hd, QA8 + 8*hd + 4
        e(f'v_cvt_pk_bf16_f32 v{d}, v{X}, v{X+1}'); e(f'v_cvt_pk_bf16_f32 v{d+1}, v{X+2}, v{X+3}')
        e(f'v_cvt_pk_bf16_f32 v{d+2}, v{Y}, v{Y+1}'); e(f'v_cvt_pk_bf16_f32 v{d+3}, v{Y+2}, v{Y+3}')
        for sw in ('32', '16'):
            e(f'v_permlane{sw}_swap_b32 v{d}, v{d+2}'); e(f'v_permlane{sw}_swap_b32 v{d+1}, v{d+3}')
        P.ds(f'ds_write_b128 v{T}, {vr(d,4)} offset:{hd*4096}', 'xw')
    e(f's_mov_b32 s89, {fbits(64.0):#x}')
    hep = [1000]
    def hsync():
        P.wait(lg='all'); hep[0] += 1
        F.post(hep[0]); F.need(FRH, hep[0])
    hsync()
    e(f'v_add_u32 v{T}, {XCH}, v{L16}')
    for k in range(8): P.ds(f'ds_read_b128 {vr(Q8+4*k,4)}, v{T} offset:{k*1024}', 'q8')
    P.wait(lg='all')
    stamp(P, 3, not OPT['ts2'])
    e('s_mov_b32 s98, 19')
    def postL(v):
        e(f's_max_u32 s98, s98, {v}'); F.post('s98', 1024)
    def touch():
        e('s_getpc_b64 s[56:57]'); lb = P.newlab('pc'); P.lab(lb)
        e(f's_sub_u32 s56, s56, {lb}-{KNAME}'); e('s_subb_u32 s57, s57, 0')
        e(f'v_lshlrev_b32 v242, 7, v{LANE}'); e('s_lshl_b32 s3, s4, 14'); e('v_add_u32 v242, s3, v242')
        e(f's_mov_b32 s3, .Lcode_end-{KNAME}-4')
        for k in range(2):
            e(f'v_min_u32 v243, s3, v242'); P.vmem(f'global_load_dword v{244+k}, v243, s[56:57]', 'ct', optional=True)
            e('v_add_u32 v242, 8192, v242')
    def need_free(val, lv, nxt):
        F.read(FRC); P.wait(lg='fr')
        def slow():
            done = P.newlab('nf')
            vm0 = list(P.vm)
            for i, tg in enumerate(nxt):
                if not any(t[0] == tg for t in P.vm): break
                P.wait(vm=tg); e(f's_add_u32 s3, {lv}, {i + 1}'); postL('s3')
                e(f'ds_read_b32 v{FT}, v{FRC}'); e('s_waitcnt lgkmcnt(0)')
                e(f'v_cmp_gt_u32 vcc, {val}, v{FT}'); e(f's_cbranch_vccz {done}')
            sp = P.newlab('sp'); P.lab(sp)
            e(f's_sleep {OPT["slp"]}'); e(f'ds_read_b32 v{FT}, v{FRC}'); e('s_waitcnt lgkmcnt(0)')
            e(f'v_cmp_gt_u32 vcc, {val}, v{FT}'); e(f's_cbranch_vccnz {sp}')
            P.lab(done)
            P.vm = vm0
        P.ool([f'v_cmp_gt_u32 vcc, {val}, v{FT}'], 's_cbranch_vccnz', slow, lambda w, it: False)
    def scores():
        for tt in range(2):
            for u in range(4): P.ds(f'ds_read_b128 {vr(FB + 16*tt + 4*u, 4)}, v{AK8+u} offset:{tt*16384}', ('k', tt, u))
        for tt in range(2):
            for u in range(4):
                P.wait(lg=('k', tt, u)); mfma(P, S8 + 4*tt, FB + 16*tt + 4*u, Q8 + 4*u, u == 0)
        for u in range(4): e(f'v_xor_b32 v{AK8+u}, 0x10000, v{AK8+u}')
        for k in range(4): e(f'v_max3_f32 v{M_}, v{M_}, v{S8+2*k}, v{S8+2*k+1}')
        e(f'v_cmp_lt_f32 vcc, s7, abs(v{M_})')
        def shift():
            for sw in ('32', '16'):
                e(f'v_mov_b32 v{T}, v{M_}'); e(f'v_permlane{sw}_swap_b32 v{M_}, v{T}'); e(f'v_max_f32 v{M_}, v{M_}, v{T}')
            e(f'v_sub_f32 v{T}, v{R_}, v{M_}'); e(f'v_min_f32 v{T}, s89, v{T}'); e(f'v_exp_f32 v{T}, v{T}')
            e(f'v_mov_b32 v{R_}, v{M_}'); e('s_mov_b32 s7, -1.0')
            for k in range(8): e(f'v_sub_f32 v{S8+k}, v{S8+k}, v{M_}')
            e(f'v_mul_f32 v{L_}, v{L_}, v{T}')
            for k in range(32): e(f'v_mul_f32 v{O8+k}, v{O8+k}, v{T}')
        P.ool([], 's_cbranch_vccnz', shift, lambda w, it: (w >> 3) % 2 == 1)
        for k in range(8): e(f'v_exp_f32 v{S8+k}, v{S8+k}')
        for k in range(8): e(f'v_add_f32 v{L_}, v{L_}, v{S8+k}')
        for k in range(4): e(f'v_cvt_pk_bf16_f32 v{S8+k}, v{S8+2*k}, v{S8+2*k+1}')
    def pv8():
        def rv(d):
            P.ds(f'ds_read_b64_tr_b16 {vr(FB + 4*d, 2)}, v{AV8+d}', ('v', d))
            P.ds(f'ds_read_b64_tr_b16 {vr(FB + 4*d + 2, 2)}, v{AV8+d} offset:16384', ('v', d))
        for d in range(6): rv(d)
        for d in range(8):
            P.wait(lg=('v', d)); mfma(P, O8 + 4*d, FB + 4*d, S8)
            if d < 2: rv(6 + d)
        for d in range(8): e(f'v_xor_b32 v{AV8+d}, 0x10000, v{AV8+d}')
    def hreset():
        for k in range(32): e(f'v_mov_b32 v{O8+k}, 0')
        e(f'v_mov_b32 v{M_}, {fbits(-1e30):#x}'); e(f'v_mov_b32 v{L_}, 0'); e(f'v_mov_b32 v{R_}, 0'); e(f's_mov_b32 s7, {fbits(64.0):#x}')
    def combine(head):
        for sw in ('32', '16'):
            e(f'v_mov_b32 v{T}, v{L_}'); e(f'v_permlane{sw}_swap_b32 v{L_}, v{T}'); e(f'v_add_f32 v{L_}, v{L_}, v{T}')
        for q in range(1, 4):
            e(f's_xor_b32 s3, s4, {q}'); e('s_mul_i32 s3, s3, 6144'); e(f's_add_u32 s3, s3, {XCH + (q-1)*2048}')
            e(f'v_add_u32 v{T}, s3, v{L16}')
            for k in range(2): P.ds(f'ds_write_b128 v{T}, {vr(O8 + 8*q + 4*k, 4)} offset:{k*1024}', 'cw')
        e(f'v_lshrrev_b32 v{T+1}, 1, v{L16}'); e('s_lshl_b32 s3, s4, 9'); e(f's_add_u32 s3, s3, {XCH + 24576}')
        e(f'v_add_u32 v{T+1}, s3, v{T+1}')
        P.ds(f'ds_write_b64 v{T+1}, {vr(R_,2)}', 'cw')
        hsync()
        e('s_mul_i32 s3, s4, 6144'); e(f's_add_u32 s3, s3, {XCH}'); e(f'v_add_u32 v{T}, s3, v{L16}')
        ST, CB, W = FB, FB + 8, S8
        for q in range(1, 4):
            e(f'v_xor_b32 v{FT}, {q << 9}, v{T+1}')
            P.ds(f'ds_read_b64 {vr(ST + 2*q, 2)}, v{FT}', 'cs')
        for q in range(1, 4):
            for k in range(2): P.ds(f'ds_read_b128 {vr(CB + 8*q + 4*k, 4)}, v{T} offset:{(q-1)*2048 + k*1024}', ('co', q))
        e(f'v_mov_b32 v{ST}, v{R_}'); e(f'v_mov_b32 v{ST+1}, v{L_}')
        P.wait(lg='cs')
        e(f'v_max3_f32 v{W}, v{ST}, v{ST+2}, v{ST+4}'); e(f'v_max_f32 v{W}, v{W}, v{ST+6}')
        for q in range(4): e(f'v_sub_f32 v{W+4+q}, v{ST+2*q}, v{W}')
        for q in range(4): e(f'v_exp_f32 v{W+4+q}, v{W+4+q}')
        e(f'v_mul_f32 v{W+1}, v{W+4}, v{ST+1}')
        for q in range(1, 4): e(f'v_fma_f32 v{W+1}, v{W+4+q}, v{ST+2*q+1}, v{W+1}')
        e(f'v_rcp_f32 v{W+1}, v{W+1}')
        for q in range(4): e(f'v_mul_f32 v{W+4+q}, v{W+4+q}, v{W+1}')
        for k in range(8): e(f'v_mul_f32 v{O8+k}, v{O8+k}, v{W+4}')
        for q in range(1, 4):
            P.wait(lg=('co', q))
            for k in range(8): e(f'v_fma_f32 v{O8+k}, v{CB+8*q+k}, v{W+4+q}, v{O8+k}')
        for k in range(4): e(f'v_cvt_pk_bf16_f32 v{W+k}, v{O8+2*k}, v{O8+2*k+1}')
        e(f's_add_u32 s26, s5, {1048576 + head*4096}')
        P.vmem(f'buffer_store_dwordx4 {vr(W,4)}, v{L16}, s[{SO}:{SO+3}], s26 offen {OPT["o_st"]}', 'st', optional=True)
    P.wait(vm=('kv', 1)); postL(20); item(SEQ[5])
    hreset(); scores()
    P.wait(vm=('kv', 2)); postL(21); item(SEQ[6])
    e('s_load_dwordx2 s[8:9], s[0:1], 32'); e('s_load_dwordx2 s[10:11], s[0:1], 72'); e('s_load_dwordx2 s[12:13], s[0:1], 96')
    e(f'v_mov_b32 v{VX}, 0')
    P.vmem(f'global_load_dword v{VX+1}, v{VX}, s[82:83] sc1', 'tagld', optional=True)
    e('s_lshl_b32 s3, s50, 3'); e('s_add_u32 s3, s3, s52'); e('s_lshl_b32 s3, s3, 4'); e('s_lshr_b32 s26, s51, 1'); e('s_add_u32 s3, s3, s26')
    e('s_lshl_b32 s3, s3, 7'); e(f's_add_u32 s3, s3, {FLAGOFF}'); e(f'v_mov_b32 v{FA}, s3')
    e('s_mov_b32 s20, 22'); e('s_mov_b32 s21, 19'); e('s_mov_b32 s22, 65536'); e('s_mov_b32 s23, s59')
    e('s_mov_b32 s18, 32768'); e('s_add_u32 s19, s59, 65536')
    e('s_waitcnt lgkmcnt(0)'); P.lg = []
    P.vm = [(('kv', -1), False)] * 4 + [(('kv', k), False) for k in range(3) for _ in range(4)] + [('tagld', True)]
    def tr(v):
        if OPT['trace']:
            e('s_memrealtime s[76:77]'); e('s_sub_u32 m0, s24, 19'); e('s_waitcnt lgkmcnt(0)'); e('s_sub_u32 s76, s76, s60'); e(f'v_writelane_b32 v{v}, s76, m0')
    KIND = [(0, 1, 1), (3, 0, 0), (1, 1, 1), (2, 1, 2)]
    def step(k, issue=True):
        P.wait(vm=('kv', k - 1)); e(f's_add_u32 s24, s20, {k}'); postL('s24')
        tr(246)
        if not issue: return
        kind, nx, co = KIND[k]
        e(f's_add_u32 s25, s21, {co}')
        need_free('s25', 's24', [('kv', k + i) for i in range(3)])
        tr(247)
        S = SK if kind < 2 else SV
        e(f's_add_u32 m0, {"s23" if nx else "s19"}, {kind*16384}')
        e(f's_add_u32 s26, {"s22" if nx else "s18"}, {(kind % 2)*16384}')
        for t in range(4):
            P.vmem(f'buffer_load_dwordx4 v{VKV+t}, s[{S}:{S+3}], s26 offen offset:{t*1024} {kvp} lds', ('kv', k + 3))
        tr(248)
    def wtouch():
        e(f'v_lshlrev_b32 v{VX+2}, 7, v{LANE}'); e('s_lshl_b32 s3, s4, 13'); e(f'v_add_u32 v{VX+2}, s3, v{VX+2}')
        e('s_and_b32 s3, s2, 127'); e('s_mul_i32 s3, s3, 36864')
        e('s_cmp_lt_u32 s2, 128'); e('s_cselect_b64 s[8:9], s[8:9], s[10:11]')
        e('s_add_u32 s8, s8, s3'); e('s_addc_u32 s9, s9, 0'); srd(P, SX, 8, 9, 36864)
        if OPT['wpf']:
            e('s_mov_b32 s26, 32768')
            P.vmem(f'buffer_load_dword v250, v{VX+2}, s[{SX}:{SX+3}], 0 offen', 'wt', optional=True)
            P.vmem(f'buffer_load_dword v251, v{VX+2}, s[{SX}:{SX+3}], s26 offen', 'wt', optional=True)
    def hbody():
        step(0)
        step(1); pv8()
        def mid():
            combine(0); hreset()
            for k in range(16): e(f'v_mov_b32 v{Q8+k}, v{Q8+16+k}')
            if OPT['rtc']: touch()
            if OPT['wpos'] == 16: wtouch()
        P.ool(['s_cmp_eq_u32 s27, 3'], 's_cbranch_scc1', mid, lambda w, it: it == 3)
        step(2); scores()
        step(3)
        e('s_add_u32 s20, s20, 4'); e('s_add_u32 s21, s21, 3'); e('s_mov_b32 s18, s22'); e('s_add_u32 s22, s22, 32768')
        e('s_xor_b32 s23, s23, 65536'); e('s_xor_b32 s19, s19, 65536')
    P.loop(6, 's27', hbody, lambda t: ('kv', t[1] - 4) if t[0] == 'kv' else t)
    P.vm = [(('kv', t[0][1] - 4), t[1]) if t[0][0] == 'kv' else t for t in P.vm]
    step(0, False)
    if OPT['wpos'] == 27: wtouch()
    if OPT['rtc']: touch()
    def respin():
        sp = P.newlab('tg'); P.lab(sp)
        e('s_sleep 8'); e(f'global_load_dword v{VX+1}, v{VX}, s[82:83] sc1'); e('s_waitcnt vmcnt(0)')
        e(f'v_cmp_eq_u32 vcc, 0, v{VX+1}'); e(f's_cbranch_vccnz {sp}')
    P.ool([f'v_cmp_eq_u32 vcc, 0, v{VX+1}'], 's_cbranch_vccnz', respin, lambda w, it: False)
    step(1)
    hsync()
    def sig_a():
        e('s_and_b32 s3, s2, 7'); e('s_lshl_b32 s3, s3, 4'); e('s_add_u32 s3, s3, 64')
        e(f'v_mov_b32 v{TK+1}, s3'); e(f'v_mov_b32 v{TK}, 1')
        e('s_mov_b64 exec, 1')
        P.vmem(f'global_store_dword v{FA}, v{VX+1}, s[12:13] offset:64 sc1', 'fa', optional=True)
        if OPT['dyn']: P.vmem(f'global_atomic_add v{TK}, v{TK+1}, v{TK}, s[82:83] sc0 sc1', 'tk', optional=True)
        e('s_mov_b64 exec, -1')
    P.only(0, sig_a)
    pv8()
    step(2, False); scores()
    step(3, False)
    P.wait(vm=('kv', 4)); postL(50)
    if OPT['wpos'] == 31: wtouch()
    pv8(); combine(1)
    if OPT['trace']:
        e('s_lshl_b32 s3, s2, 2'); e('s_add_u32 s3, s3, s4'); e('s_mul_i32 s3, s3, 1024'); e('s_add_u32 s3, s3, 0x4200000')
        e(f'v_lshlrev_b32 v249, 2, v{LANE}'); e('v_add_u32 v249, s3, v249'); e('v_writelane_b32 v246, s60, 0')
        for k in range(3): e(f'global_store_dword v249, v{246+k}, s[12:13] offset:{256*k}')
    ab = (OPT['abl'] + ' ' + OPT['abl2']).split()
    if ab: P.cur[i00:] = ablate(P.cur[i00:], [x for x in ab if x in ('dma', 'qdma', 'st')] + (['mfma', 'ds', 'valu'] if 'hc' in ab else []))
    stamp(P, 4, not OPT['ts2'])
    P.wait(vm='all')
    def give():
        if not OPT['dyn']:
            e('s_lshr_b32 s3, s2, 3'); e(f'v_mov_b32 v{TK}, s3')
        e(f'v_mov_b32 v{TK+1}, v{VX+1}'); e(f'v_mov_b32 v{T}, {NONCE}')
        e('s_mov_b64 exec, 1'); e(f'ds_write_b64 v{T}, {vr(TK,2)}'); e('s_mov_b64 exec, -1'); e('s_waitcnt lgkmcnt(0)')
    P.only(0, give)
    e('s_barrier')
    def signal():
        e('s_mov_b64 exec, 1')
        e(f'global_store_dword v{FA}, v{VX+1}, s[12:13] sc1')
        e('s_mov_b64 exec, -1')
    P.only(0, signal)

K2_LDS = 73728
def gen_oproj(P):
    e = P.e
    SO2, SWO, SOUT = 28, 32, 36
    e('s_load_dwordx2 s[8:9], s[0:1], 32')
    e('s_load_dwordx2 s[10:11], s[0:1], 72')
    e('s_load_dwordx2 s[12:13], s[0:1], 80')
    e('s_load_dwordx2 s[14:15], s[0:1], 96')
    e('v_mbcnt_lo_u32_b32 v0, -1, 0'); e('v_mbcnt_hi_u32_b32 v0, -1, v0'); e('v_mov_b32 v1, s4')
    e(f'v_mov_b32 v96, {NONCE}')
    for i in range(2, 96): e(f'v_mov_b32 v{i}, 0') if i > 9 else None
    P.wait(vm='all')
    e('s_barrier')
    P.ds('ds_read_b64 v[234:235], v96', 'n'); P.wait(lg='all')
    e('v_readfirstlane_b32 s49, v234')
    e('s_cmp_ge_u32 s49, 27'); e('s_cbranch_scc1 .Lk1_fin')
    e('s_and_b32 s48, s2, 7')
    e('s_lshr_b32 s50, s48, 2')
    e('s_mul_i32 s3, s49, 57'); e('s_lshr_b32 s3, s3, 9')
    e('s_mul_i32 s26, s3, 9'); e('s_sub_u32 s52, s49, s26')
    e('s_and_b32 s51, s48, 3'); e('s_mul_i32 s51, s51, 3'); e('s_add_u32 s51, s51, s3')
    e('v_and_b32 v2, 63, v0'); e('v_and_b32 v3, 15, v0'); e('v_lshrrev_b32 v4, 4, v2')
    e('v_lshrrev_b32 v5, 2, v3'); e('v_and_b32 v6, 3, v3')
    ACC, NST, BF, AF, AA = 0, 4, 96, 192, 224
    NW = OPT['nw']
    VO, VWO, L16, VOUT, VO2 = 228, 229, 230, 231, 232
    RING = 4096 * NW
    e(f'v_lshlrev_b32 v{L16}, 4, v2')
    e(f'v_lshl_add_u32 v{VO}, v1, 15, v{L16}')
    e('v_lshrrev_b32 v7, 3, v2'); e('v_lshl_add_u32 v7, v1, 10, v7'); e('v_mul_u32_u24 v7, 1152, v7')
    e('v_and_b32 v8, 7, v2'); e('v_lshlrev_b32 v9, 1, v4'); e('v_xor_b32 v8, v8, v9')
    e(f'v_lshl_add_u32 v{VWO}, v8, 4, v7')
    e(f's_mul_i32 s5, s4, {RING}')
    e('s_and_b32 s3, s4, 1'); e('s_mul_i32 s3, s3, 393216')
    for r in range(3): e(f's_add_u32 s{40+r}, s3, {r*131072}')
    e('s_sub_u32 s3, 393216, s3')
    for r in range(3): e(f's_add_u32 s{43+r}, s3, {r*131072}')
    e('s_mov_b32 s53, 0')
    e('s_waitcnt lgkmcnt(0)')
    e('s_cmp_eq_u32 s50, 0'); e('s_cselect_b64 s[8:9], s[8:9], s[10:11]')
    e('s_lshl_b32 s3, s52, 7'); e('s_add_u32 s8, s8, s3'); e('s_addc_u32 s9, s9, 0')
    srd(P, SWO, 8, 9, 4095 * 1152 + 128)
    e('s_mul_i32 s3, s50, 72'); e('s_mul_i32 s26, s51, 6'); e('s_add_u32 s3, s3, s26'); e('s_lshl_b32 s3, s3, 17')
    e('s_mov_b64 s[16:17], s[14:15]')
    e('s_add_u32 s14, s14, s3'); e('s_addc_u32 s15, s15, 0'); srd(P, SO2, 14, 15, 6 * 131072)
    e('s_mov_b32 s56, s53')
    def kstep(cnt, dst):
        e(f's_and_b32 {dst}, {cnt}, 31'); e(f's_add_u32 {cnt}, {cnt}, 1'); e(f's_and_b32 s3, {cnt}, 4'); e(f's_bitcmp1_b32 {cnt}, 6')
        e(f's_cselect_b32 s57, 4, 0'); e('s_xor_b32 s3, s3, s57'); e(f's_add_u32 {cnt}, {cnt}, s3')
        e(f's_cmp_eq_u32 {cnt}, 32'); e(f's_cselect_b32 {cnt}, 68, {cnt}')
    def wpieces(s):
        def pw(i):
            def f():
                if i == 0:
                    kstep('s56', 's54'); e('s_mul_i32 s54, s54, 36864')
                e(f's_add_u32 m0, s5, {(s % NW)*4096 + i*1024}')
                e(f's_add_u32 s26, s54, {8*i*1152}')
                P.vmem(f'buffer_load_dwordx4 v{VWO}, s[{SWO}:{SWO+3}], s26 offen {OPT["wo_pol"]} lds', ('W', s))
            return f
        return [pw(i) for i in range(4)]
    def opieces(s):
        def po(r):
            def f():
                if r == 0:
                    kstep('s53', 's55'); e('s_lshl_b32 s55, s55, 10'); e(f'v_add_u32 v{VO2}, s55, v{VO}')
                P.vmem(f'buffer_load_dwordx4 {vr(BF+(s % NST)*24+4*r,4)}, v{VO2}, s[{SO2}:{SO2+3}], s{40+r} offen {OPT["o_ld"]}', ('L', s))
            return f
        return [po(r) for r in range(6)]
    e('v_lshl_add_u32 v7, v4, 2, v5'); e('v_lshrrev_b32 v8, 1, v7'); e('v_and_b32 v8, 3, v8')
    e('v_and_b32 v9, 2, v1'); e('v_xor_b32 v8, v8, v9'); e('v_lshlrev_b32 v8, 5, v8')
    e('v_lshl_or_b32 v8, v6, 3, v8'); e('v_lshl_add_u32 v8, v7, 7, v8')
    e(f'v_mul_u32_u24 v9, {RING}, v1'); e(f'v_add_u32 v{AA}, v8, v9')
    for k in range(1, 4): e(f'v_xor_b32 v{AA+k}, {k<<5}, v{AA}')
    e('v_mul_u32_u24 v7, 2304, v3'); e('v_lshl_add_u32 v7, v4, 4, v7')
    e('s_and_b32 s3, s4, 1'); e('s_mul_i32 s3, s3, 110592'); e('s_lshr_b32 s26, s4, 1'); e('s_lshl_b32 s26, s26, 6'); e('s_add_u32 s3, s3, s26')
    e(f'v_add_u32 v{VOUT}, s3, v7')
    e('s_mul_i32 s3, s51, 221184'); e('s_mul_i32 s26, s50, 1152'); e('s_add_u32 s3, s3, s26')
    e('s_lshl_b32 s26, s52, 7'); e('s_add_u32 s3, s3, s26')
    e('s_add_u32 s12, s12, s3'); e('s_addc_u32 s13, s13, 0'); srd(P, SOUT, 12, 13, 95 * 2304 + 128)
    e('s_mul_i32 s3, s51, 43'); e('s_lshr_b32 s3, s3, 6')
    e('s_mul_i32 s26, s51, 6'); e('s_add_u32 s26, s26, 5'); e('s_mul_i32 s26, s26, 57'); e('s_lshr_b32 s26, s26, 9')
    FLA, FLV, TAG = 233, 236, 235
    e('v_mov_b32 v96, s3'); e('v_mov_b32 v97, s26'); e(f'v_and_b32 v98, 64, v{L16}'); e('v_cmp_eq_u32 vcc, 0, v98'); e('s_nop 1')
    e('v_cndmask_b32 v96, v97, v96, vcc')
    e('s_lshl_b32 s3, s50, 5'); e('s_add_u32 s3, s3, s4'); e('s_lshl_b32 s3, s3, 2')
    e('v_lshlrev_b32 v96, 4, v96'); e(f'v_bfe_u32 v97, v{L16}, 4, 2'); e('v_add3_u32 v96, v96, v97, s3')
    e('v_lshlrev_b32 v96, 7, v96'); e(f'v_add_u32 v{FLA}, {FLAGOFF + 64}, v96')
    for i in range(10): e(f'v_mov_b32 v{i}, 0')
    def poll():
        sp = P.newlab('fl'); P.lab(sp)
        e('s_sleep 4'); e(f'global_load_dword v{FLV}, v{FLA}, s[16:17] sc1'); e('s_waitcnt vmcnt(0)')
        e(f'v_cmp_ne_u32 vcc, v{TAG}, v{FLV}'); e(f's_cbranch_vccnz {sp}')
    P.vmem(f'global_load_dword v{FLV}, v{FLA}, s[16:17] sc1', 'f')
    for s in range(OPT['nw0']):
        for f in wpieces(s): f()
    P.wait(vm='f')
    P.ool([f'v_cmp_ne_u32 vcc, v{TAG}, v{FLV}'], 's_cbranch_vccnz', poll, lambda w, it: False)
    stamp(P, 5, not OPT['ts2'])
    for s in range(NST):
        for f in opieces(s): f()
        if s == 0:
            for s2 in range(OPT['nw0'], NW):
                for f in wpieces(s2): f()
    def rdA2(s, k, hf):
        b = AF + (s % 2) * 16 + 4 * k + 2 * hf
        return lambda: P.ds(f'ds_read_b64_tr_b16 {vr(b,2)}, v{AA+k} offset:{(s % NW)*4096 + 2048*hf}', ('A', s))
    P.wait(vm=('L', 0))
    for k in range(4):
        rdA2(0, k, 0)(); rdA2(0, k, 1)()
    P.wait(vm=('L', 2))
    P.vm = []
    for s in range(-NST, 0):
        P.vm += [(('W', s + NW), False)] * 4 + [(('L', s + NST), False)] * 6
    while P.vm[0][0] != ('W', 1 - NST + NW): P.vm.pop(0)
    NIT = 32 // NW
    def body():
        for s in range(NW):
            st = s % NST
            if s == 0:
                e(f's_cmp_eq_u32 s27, {NIT - 1}'); e(f's_cselect_b32 s59, {BIG}, 0'); e(f'v_add_u32 v{VWO}, s59, v{VWO}')
            if s == NW - NST: e(f'v_add_u32 v{VO}, s59, v{VO}')
            pw, po = wpieces(s + NW), opieces(s + NST)
            fill = {k: [] for k in range(24)}
            for i in range(4): fill[(0, 1, 2, 2)[i]].append(pw[i])
            for r in range(6): fill[4*r + 3].append(po[r])
            rd = [rdA2(s + 1, k, hf) for k in range(4) for hf in range(2)]
            fill[8].insert(0, lambda: P.wait(vm=('L', s + 1)))
            for k in range(8): fill[8 + k + (k > 1) + (k > 4)].append(rd[k])
            CS = (16 - NST) % NW
            if s == (CS - 3) % NW:
                def ld():
                    e(f's_cmp_eq_u32 s27, {(16 - NST - 3) // NW}'); e('s_cselect_b32 s57, 64, 0'); e(f'v_subrev_u32 v{FLA}, s57, v{FLA}')
                    P.vmem(f'global_load_dword v{FLV}, v{FLA}, s[16:17] sc1', ('F', s))
                fill[0].insert(0, ld)
            if s == CS:
                def ck():
                    P.wait(vm=('F', (CS - 3) % NW))
                    P.ool([f'v_cmp_ne_u32 vcc, v{TAG}, v{FLV}'], 's_cbranch_vccnz', poll, lambda w, it: False)
                fill[2].append(ck)
            P.wait(lg=('A', s))
            for n in range(24):
                r, k = n // 4, n % 4
                mfma(P, ACC + (r*4 + k)*4, AF + (s % 2)*16 + 4*k, BF + st*24 + 4*r)
                for f in fill[n]: f()
    i0 = len(P.cur)
    P.loop(NIT, 's27', body, lambda t: (t[0], t[1] - NW) + tuple(t[2:]))
    if OPT['abl3']:
        ab = OPT['abl3'].split()
        lp = P.cur[-1]
        lp.body = [x for x in lp.body if not (('o' in ab and x.kind == 'vload') or ('w' in ab and x.kind == 'dma') or ('mfma' in ab and x.kind == 'mfma') or ('ds' in ab and x.kind == 'dsr'))]
    stamp(P, 6, not OPT['ts2'])
    P.wait(lg='all', vm='all')
    e('s_barrier')
    for q in range(1, 4):
        e(f's_xor_b32 s3, s4, {q}'); e('s_mul_i32 s3, s3, 18432'); e(f's_add_u32 s3, s3, {(q-1)*6144}')
        e(f'v_add_u32 v{AA+q}, s3, v{L16}')
        a, bq = q & 1, q >> 1
        for r in range(3):
            for k in range(2):
                P.ds(f'ds_write_b128 v{AA+q}, {vr(ACC + ((3*a+r)*4 + 2*bq + k)*4, 4)} offset:{(r*2+k)*1024}', 'w')
        if q == 2: P.wait(lg='all')
    e('s_mul_i32 s3, s4, 18432'); e(f'v_add_u32 v{AA}, s3, v{L16}')
    P.wait(lg='all'); e('s_barrier')
    RB = 96
    for q in range(3):
        for t in range(6):
            P.ds(f'ds_read_b128 {vr(RB + (q*6+t)*4, 4)}, v{AA} offset:{q*6144 + t*1024}', ('r', q, t))
            if len(P.lg) >= 12: P.wait(lg=P.lg[5])
    P.wait(lg='all')
    for r in range(3):
        for k in range(2):
            d = ACC + (r*4 + k)*4
            for q in range(3):
                for i in range(4): e(f'v_add_f32 v{d+i}, v{d+i}, v{RB + (q*6 + r*2 + k)*4 + i}')
        X, Y, D = ACC + (r*4)*4, ACC + (r*4+1)*4, AF + 4*r
        e(f'v_cvt_pk_bf16_f32 v{D}, v{X}, v{X+1}'); e(f'v_cvt_pk_bf16_f32 v{D+1}, v{X+2}, v{X+3}')
        e(f'v_cvt_pk_bf16_f32 v{D+2}, v{Y}, v{Y+1}'); e(f'v_cvt_pk_bf16_f32 v{D+3}, v{Y+2}, v{Y+3}')
        e(f'v_permlane32_swap_b32 v{D}, v{D+2}'); e(f'v_permlane32_swap_b32 v{D+1}, v{D+3}')
        e(f'v_permlane16_swap_b32 v{D}, v{D+2}'); e(f'v_permlane16_swap_b32 v{D+1}, v{D+3}')
        e(f's_mov_b32 s26, {r*16*2304}')
        P.vmem(f'buffer_store_dwordx4 {vr(D,4)}, v{VOUT}, s[{SOUT}:{SOUT+3}], s26 offen {OPT["out_st"]}', 'st')
    P.lab('.Lk1_fin')

HDR = open('cdna_kernels/' + NAME + '.s.ref').read().split('; Override launch')[0]

def kd(name, vg, sg):
    return f""".p2align 6
.amdhsa_kernel {name}
  .amdhsa_next_free_vgpr {vg}
  .amdhsa_next_free_sgpr {sg}
  .amdhsa_accum_offset {(vg+3)//4*4}
  .amdhsa_group_segment_fixed_size 0
  .amdhsa_kernarg_size 104
  .amdhsa_user_sgpr_count 2
  .amdhsa_user_sgpr_kernarg_segment_ptr 1
  .amdhsa_system_sgpr_workgroup_id_x 1
.end_amdhsa_kernel
"""

def build():
    P = gen_k1()
    out = HDR
    out += f'; @launch grid=(256,1,1) block=(512,1,1) lds={K1_LDS}\n'
    out += '.amdgcn_target "amdgcn-amd-amdhsa--gfx950"\n.text\n'
    P.pad_hazards()
    if not OPT["abl"] and not OPT["abl2"] and not OPT["abl3"] and not OPT.get("cyc") and not OPT["trace"]: P.check_loads()
    sys.stderr.write(f'{dict(P.count(0))}\n')
    out += f'.globl {KNAME}\n.p2align 8\n.type {KNAME},@function\n{KNAME}:\n' + '\n'.join(P.emit()) + '\n'
    out += '.Lcode_end:\n'
    out += '.section .rodata,"a"\n' + kd(KNAME, 256, 102)
    return out

if __name__ == '__main__':
    dst = 'cdna_kernels/' + NAME + '.s'
    for a in sys.argv[1:]:
        if '=' in a:
            k, v = a.split('=', 1)
            if k == 'out': dst = v
            elif isinstance(OPT[k], bool): OPT[k] = (v == '1')
            elif isinstance(OPT[k], int): OPT[k] = int(v)
            else: OPT[k] = v.replace('+', ' ')
    open(dst, 'w').write(build())
```

```python
import sys, struct, math, re
from dsl import *

NAME = 'concat_heads__mha_block_cached__gqa_block_cached__near_ridge'
def fbits(x): return struct.unpack('<I', struct.pack('<f', x))[0]
CSC = math.log2(math.e) / math.sqrt(128.0)
BIG = 0x20000000

OPT = dict(kv_pol='nt', x_pol='', w_pol='', o_st='sc1', o_ld='sc1', wo_pol='', out_st='', ts=False, ts2=False, clk=False,
           qrot=True, k2a=1, k2b=0, cpf=True, abl='', abl2='', t0=22, lak=4, w2=True, cyc=False, krot=0, slp=3, nw=8, nw0=2, pa=27, dyn=False, nf=True, rtc=0, ea='15,16,16', wpos=31, trace=False, dbg=False, abl3='', wpf=True, spread=True, dla=4, ela=4, la=4, kvq='5,8,11,14', st='', sti=1, hprio=1, post4=3)

def mfma(P, d, a, b, first=False):
    c = '0' if first else vr(d, 4)
    P.e(f'v_mfma_f32_16x16x32_bf16 {vr(d,4)}, {vr(a,4)}, {vr(b,4)}, {c}')

def mfma32(P, d, a, b, first=False):
    c = '0' if first else vr(d, 16)
    P.e(f'v_mfma_f32_32x32x16_bf16 {vr(d,16)}, {vr(a,4)}, {vr(b,4)}, {c}')

def femit(P, dst, x, t1, t2):
    P.e(f'v_lshrrev_b32 v{t1}, 3, v{x}')
    P.e(f'v_lshrrev_b32 v{t2}, 2, v{x}')
    P.e(f'v_xor_b32 v{t2}, v{t2}, v{t1}')
    P.e(f'v_and_b32 v{t2}, 1, v{t2}')
    P.e(f'v_lshl_or_b32 v{t1}, v{t2}, 1, v{t1}')
    P.e(f'v_and_b32 v{dst}, 3, v{x}')
    P.e(f'v_lshl_or_b32 v{dst}, v{dst}, 2, v{t1}')

def srd(P, d, lo, hi, size):
    P.e(f's_mov_b32 s{d}, s{lo}')
    P.e(f's_and_b32 s{d+1}, s{hi}, 0xffff')
    P.e(f's_mov_b32 s{d+2}, {size}')
    P.e(f's_mov_b32 s{d+3}, 0x20000')

def stamp(P, idx, cond=True):
    if OPT['ts'] and cond:
        P.e(f's_memrealtime s[{60+2*idx}:{61+2*idx}]')
        if OPT['clk'] and idx in (3, 4): P.e(f's_memtime s[{70+2*idx}:{71+2*idx}]')
        if OPT['clk'] and idx in (1, 2): P.e(f's_memtime s[{74+2*idx}:{75+2*idx}]')
        if OPT['clk'] and idx == 2: P.e('s_waitcnt lgkmcnt(0)'); P.e('s_sub_u32 s80, s78, s76')
        P.e('s_waitcnt lgkmcnt(0)')
def stamp_it(P, idx, itv):
    if OPT['ts'] and OPT['ts2']:
        def f():
            P.e(f'{"s_memtime" if OPT["cyc"] else "s_memrealtime"} s[{60+2*idx}:{61+2*idx}]')
            if not OPT['cyc']: P.e('s_waitcnt lgkmcnt(0)')
        P.ool([f's_cmp_eq_u32 s27, {itv}'], 's_cbranch_scc1', f, lambda w, it: it == itv)
def stamps_out(P, off, wreg, wg_shift):
    e = P.e
    P.wait(vm='all')
    stamp(P, 7)
    if OPT['dbg']:
        def f():
            e('s_not_b32 s3, s60'); e('v_mov_b32 v2, s3'); e('v_mov_b32 v0, 0'); e('s_mov_b64 exec, 1')
            e('global_atomic_umax v0, v2, s[82:83] offset:4 sc1')
            for k in range(8):
                e(f'v_mov_b32 v{3+k}, s{60+2*k}'); e(f'global_atomic_umax v0, v{3+k}, s[82:83] offset:{8+4*k} sc1')
            for i, k in enumerate((1, 2, 4, 7)):
                e(f's_sub_u32 s3, 0, s{60+2*k}'); e(f'v_mov_b32 v{12+i}, s3'); e(f'global_atomic_umax v0, v{12+i}, s[82:83] offset:{40+4*i} sc1')
            e('s_mov_b64 exec, -1'); e('s_waitcnt vmcnt(0)')
        P.only(None, f, pred=lambda w, it: True, cmp=f's_cmp_eq_u32 {wreg}, 0')
        return
    if OPT['clk']:
        e('s_sub_u32 s72, s78, s76'); e('s_mov_b32 s73, 0'); e('s_mov_b32 s70, s80'); e('s_mov_b32 s71, 0')
    if False:
        e('s_sub_u32 s70, s12, s10'); e('s_mov_b32 s71, 0')
        if P.name == 'k1':
            e('s_sub_u32 s72, s16, s14'); e('s_mov_b32 s73, 0')
    e('s_load_dwordx2 s[24:25], s[0:1], 96'); e('s_waitcnt lgkmcnt(0)')
    e(f's_add_u32 s24, s24, {off}'); e('s_addc_u32 s25, s25, 0')
    e(f's_lshl_b32 s3, s2, {wg_shift}'); e(f's_lshl_b32 s26, {wreg}, 6'); e('s_add_u32 s3, s3, s26')
    e('v_mov_b32 v0, s3')
    for k in range(8):
        e(f'v_mov_b32 v2, s{60+2*k}'); e(f'v_mov_b32 v3, s{61+2*k}')
        e(f'global_store_dwordx2 v0, v[2:3], s[24:25] offset:{8*k}')
        e('s_waitcnt vmcnt(0)')

def code_prefetch(P, start, end, dst):
    e = P.e
    e('s_getpc_b64 s[56:57]')
    P.lab(f'.Lpc_{P.name}')
    e(f's_sub_u32 s56, s56, .Lpc_{P.name}-{start}'); e('s_subb_u32 s57, s57, 0')
    e('v_lshlrev_b32 v12, 7, v0')
    e(f's_mov_b32 s3, {end}-{start}-4')
    e(f'v_min_u32 v13, s3, v12')
    P.vmem(f'global_load_dword v{dst}, v13, s[56:57]', 'pf')

STG, XB = 25600, 9216
QB0, NQ = 0, 5
XCH = 131072
FLG = 161792
K1_LDS = 163840
SX, SW, SK, SV, SO = 28, 32, 36, 40, 44
FW, FRL, FRC, FT, FV, LANE = 186, 187, 188, 189, 190, 191

def sidx(s): return (s + 2) % NQ

class Flags:
    def __init__(s, P): s.P = P
    def post(s, val, off=0):
        s.P.e(f'v_mov_b32 v{FV}, {val}')
        s.P.ds(f'ds_write_b32 v{FW}, v{FV} offset:{off}', 'fw')
    def read(s, ad): s.P.ds(f'ds_read_b32 v{FT}, v{ad}', 'fr')
    def check(s, ad, val):
        P = s.P
        P.wait(lg='fr')
        def spin():
            sp = P.newlab('sp'); P.lab(sp)
            if OPT['slp']: P.e(f's_sleep {OPT["slp"]}')
            P.e(f'ds_read_b32 v{FT}, v{ad}'); P.e('s_waitcnt lgkmcnt(0)')
            P.e(f'v_cmp_gt_u32 vcc, {val}, v{FT}'); P.e('s_nop 0'); P.e(f's_cbranch_vccnz {sp}')
        P.ool([f'v_cmp_gt_u32 vcc, {val}, v{FT}'], 's_cbranch_vccnz', spin, lambda w, it: False)
    def need(s, ad, val): s.read(ad); s.check(ad, val)

KNAME = NAME + '_kernel'
FLAGOFF = 0x2000000
NONCE = FLG + 1024

def gen_k1():
    P = Prog('k1', 's4'); e = P.e
    F = Flags(P)
    e('s_cmp_ge_u32 s2, 256'); e('s_cbranch_scc1 .Lk1_end')
    e('s_load_dwordx8 s[8:15], s[0:1], 0')
    e('s_load_dwordx8 s[16:23], s[0:1], 40')
    e('s_load_dwordx2 s[24:25], s[0:1], 96')
    e('s_load_dwordx2 s[82:83], s[0:1], 88')
    if OPT['ts']:
        e('s_memrealtime s[60:61]')
        for k in range(62, 76): e(f's_mov_b32 s{k}, 0')
    if OPT['cpf']: code_prefetch(P, KNAME, '.Lcode_end', 87)
    e('v_lshrrev_b32 v14, 6, v0')
    e('v_readfirstlane_b32 s87, v14')
    e(f'v_and_b32 v{LANE}, 63, v0')
    e('s_and_b32 s4, s87, 3'); e('s_lshr_b32 s81, s87, 2')
    e('s_and_b32 s48, s2, 7'); e('s_lshr_b32 s49, s2, 3')
    e('s_lshr_b32 s50, s48, 2')
    e('s_and_b32 s51, s48, 3'); e('s_lshl_b32 s51, s51, 3')
    e('s_and_b32 s55, s49, 3'); e('s_lshl_b32 s55, s55, 1'); e('s_add_u32 s51, s51, s55')
    e('s_lshr_b32 s52, s49, 2')
    e(f's_mov_b32 s7, {fbits(CSC):#x}')
    e(f'v_and_b32 v2, 31, v0'); e('v_lshlrev_b32 v2, 2, v2'); e('v_lshl_add_u32 v2, v14, 7, v2'); e(f'v_add_u32 v{FW}, {FLG}, v2')
    e('v_and_b32 v2, 3, v0'); e('v_mul_u32_u24 v2, 132, v2'); e(f'v_add_u32 v{FRL}, {FLG + 1536}, v2')
    e('v_and_b32 v2, 7, v0'); e('v_mul_u32_u24 v2, 132, v2'); e(f'v_add_u32 v{FRC}, {FLG}, v2')
    e(f'v_mov_b32 v{FV}, 0')
    e(f'ds_write_b32 v{FW}, v{FV}'); e(f'ds_write_b32 v{FW}, v{FV} offset:1024')
    def role(m):
        (gen_main if m else gen_helper)(P, F)
        P.lg = []; P.vm = []
    P.variant(None, role, pred=lambda w, it: (w & 4) == 0, cmp='s_cmp_eq_u32 s81, 0')
    P.lab('.Lk1_fin')
    if OPT['ts']:
        e('s_waitcnt vmcnt(0) lgkmcnt(0)')
        stamps_out(P, 0x4000000, 's87', 9)
    P.lab('.Lk1_end')
    e('s_endpgm')
    return P

def o_srd(P):
    e = P.e
    e('s_mul_i32 s3, s50, 72'); e('s_mul_i32 s26, s52, 9'); e('s_add_u32 s3, s3, s26'); e('s_lshl_b32 s3, s3, 7')
    e('s_lshl_b32 s26, s51, 2'); e('s_add_u32 s3, s3, s26'); e('s_lshl_b32 s3, s3, 10')
    e('s_add_u32 s24, s24, s3'); e('s_addc_u32 s25, s25, 0'); srd(P, SO, 24, 25, (8 * 128 + 8) * 1024)

def qrot(P):
    e = P.e
    if OPT['qrot']:
        e('s_add_u32 s53, s55, s52'); e('s_and_b32 s53, s53, 7'); e('s_mul_i32 s53, s53, 9'); e('s_lshr_b32 s53, s53, 2')
    else: e('s_mov_b32 s53, 0')

def latest(P, tags):
    need = [t for t in tags if t in P.lg]
    if need: P.wait(lg=max(need, key=lambda t: len(P.lg) - 1 - P.lg[::-1].index(t)))

def ablate(items, ab):
    out = []
    for x in items:
        if isinstance(x, Ins):
            if 'mfma' in ab and x.kind == 'mfma': continue
            if 'valu' in ab and x.op in ('v_exp_f32', 'v_add_f32', 'v_cvt_pk_bf16_f32', 'v_max3_f32'): continue
            if 'exp' in ab and x.op in ('v_exp_f32', 'v_add_f32', 'v_cvt_pk_bf16_f32'): continue
            if 'pv' in ab and x.kind == 'mfma' and re.match(r'v\[(0|16|32|48):', x.ops[0]): continue
            if 'tr' in ab and 'tr_b16' in x.op: continue
            if 'ds' in ab and x.kind == 'dsr' and f'v{FT},' not in x.text: continue
            if 'dma' in ab and x.kind == 'dma' and ' nt ' in x.text: continue
            if 'st' in ab and x.kind == 'vstore' and 's[44:47]' in x.text: continue
            if 'qdma' in ab and x.kind == 'dma' and ' nt ' not in x.text: continue
        elif isinstance(x, Variant): x.A = ablate(x.A, ab); x.B = ablate(x.B, ab)
        elif isinstance(x, Loop): x.body = ablate(x.body, ab)
        out.append(x)
    return out

def gen_main(P, F):
    e = P.e
    O, S, FB, AK, AV, QA, QBr = 0, 64, 128, 160, 168, 192, 224
    VST, M_, L_, LC, R_, T1 = 152, 164, 166, 154, 156, 158
    AW, AX, BFm, AW2, VW, SAV = 160, 168, 170, 192, 202, 204
    t = 20
    e(f'v_and_b32 v{t}, 15, v{LANE}'); e(f'v_lshrrev_b32 v{t+1}, 4, v{LANE}')
    for u in range(2):
        e('s_lshl_b32 s3, s4, 3'); e(f's_add_u32 s3, s3, {4*u}'); e(f'v_add_u32 v{t+4}, s3, v{t+1}'); e(f'v_and_b32 v{t+5}, 15, v{t+4}')
        femit(P, t+6, t+5, t+7, t+8)
        e(f'v_xor_b32 v{t+6}, v{t+6}, v{t}'); e(f'v_lshlrev_b32 v{t+6}, 4, v{t+6}'); e(f'v_lshl_add_u32 v{VW+u}, v{t+4}, 13, v{t+6}')
    e('s_lshl_b32 s6, s4, 11')
    qrot(P); e('s_lshl_b32 s54, s53, 18')
    e('s_waitcnt lgkmcnt(0)')
    e('s_cmp_eq_u32 s50, 0'); e('s_cselect_b64 s[14:15], s[14:15], s[22:23]')
    e('s_lshl_b32 s3, s51, 8'); e('s_add_u32 s14, s14, s3'); e('s_addc_u32 s15, s15, 0')
    srd(P, SW, 14, 15, 575 * 8192 + 512)
    def wpiece(s, k):
        hd, u = k // 2, k % 2
        def pre(): e(f's_add_u32 m0, s6, {QB0 + sidx(s)*STG + XB + hd*8192 + u*1024 - hd*256}')
        def post():
            P.vmem(f'buffer_load_dwordx4 v{VW+u}, s[{SW}:{SW+3}], s54 offen offset:{hd*256} {OPT["w_pol"]} lds', ('q', s))
        return pre, post
    def wadv(): e('s_add_u32 s54, s54, 262144'); e(f's_cmp_eq_u32 s54, {18*262144}'); e('s_cselect_b32 s54, 0, s54')
    for s in range(2):
        for k in range(4): a_, b_ = wpiece(s, k); a_(); b_()
        wadv()
    e(f'v_lshrrev_b32 v{t+2}, 2, v{t}'); e(f'v_and_b32 v{t+3}, 3, v{t}')
    def traddr(dst, shift, base):
        e(f'v_lshl_add_u32 v{t+4}, v{t+1}, {shift}, v{t+2}'); e(f'v_and_b32 v{t+5}, 15, v{t+4}'); femit(P, t+6, t+5, t+7, t+8)
        e(f'v_lshrrev_b32 v{t+7}, 1, v{t+3}'); e(f'v_xor_b32 v{t+6}, v{t+6}, v{t+7}')
        e(f'v_lshlrev_b32 v{t+6}, 4, v{t+6}'); e(f'v_and_b32 v{t+7}, 1, v{t+3}'); e(f'v_lshl_or_b32 v{t+6}, v{t+7}, 3, v{t+6}')
        e(f'v_lshl_add_u32 v{t+6}, v{t+4}, 8, v{t+6}'); e(f'v_add_u32 v{dst}, {base}, v{t+6}')
    traddr(AW, 3, QB0 + XB)
    for d in range(1, 8): e(f'v_xor_b32 v{AW+d}, {d << 5}, v{AW}')
    e(f'v_sub_u32 v{t+6}, 4, v{t+2}'); e(f'v_and_b32 v{t+6}, 3, v{t+6}'); e(f'v_xor_b32 v{t+6}, v{t+6}, v{t+1}'); e(f'v_lshlrev_b32 v{t+6}, 4, v{t+6}')
    e(f'v_lshl_add_u32 v{t+6}, v{t}, 6, v{t+6}'); e(f's_add_u32 s3, s6, {QB0}'); e(f'v_add_u32 v{AX}, s3, v{t+6}')
    for k in range(9): e(f'v_add_u32 v{AW2+k}, {2*STG}, v{AW+k}')
    def qa(s): return (AW, sidx(s)*STG) if sidx(s) < 2 else (AW2, (sidx(s) - 2)*STG)
    traddr(SAV, 2, 32768)
    femit(P, t+6, t, t+7, t+8)
    e(f'v_xor_b32 v{t+6}, v{t+6}, v{t+1}'); e(f'v_lshlrev_b32 v{t+6}, 4, v{t+6}'); e(f'v_lshl_add_u32 v{FRC}, v{t}, 8, v{t+6}')
    o_srd(P)
    P.wait(vm=('q', 0))
    seq = [(s, hd, dt) for s in range(18) for hd in range(2) for dt in range(8)]
    NB, LA = 8, 5
    def rdA(i, hf):
        s, hd, dt = seq[i]; a, off = qa(s)
        P.ds(f'ds_read_b64_tr_b16 {vr(FB + 4*(i % NB) + 2*hf, 2)}, v{a + (dt ^ hf)} offset:{off + hd*8192 + 1024*hf}', ('A', i))
    def rdB(s, j):
        a, off = qa(s)
        P.ds(f'ds_read_b128 {vr(BFm + 8*(s % 2) + 4*j, 4)}, v{a + 8} offset:{off + 1024*j}', ('B', s, j))
    e('s_barrier')
    stamp(P, 1, not OPT['ts2'])
    rdB(0, 0); rdB(0, 1)
    for i in range(LA): rdA(i, 0); rdA(i, 1)
    for k in range(4): a_, b_ = wpiece(2, k); a_(); b_()
    wadv()
    i0 = len(P.cur)
    for i, (s, hd, dt) in enumerate(seq):
        k = i % 16
        WP = {1: 0, 3: 1, 5: 2, 7: 3}
        if k in WP and s + 3 < 18: wpiece(s + 3, WP[k])[0]()
        latest(P, [('A', i), ('B', s, 0), ('B', s, 1)])
        mfma(P, hd*64 + dt*8, FB + 4*(i % NB), BFm + 8*(s % 2), s == 0)
        if k in WP and s + 3 < 18: wpiece(s + 3, WP[k])[1]()
        if k == 8 and s + 3 < 18: wadv()
        if s < 17 and k == 16 - LA - 1:
            P.wait(vm=('q', s + 1)); e('s_barrier')
        if i + LA < len(seq): rdA(i + LA, 0)
        mfma(P, hd*64 + dt*8 + 4, FB + 4*(i % NB), BFm + 8*(s % 2) + 4, s == 0)
        if i + LA < len(seq): rdA(i + LA, 1)
        if s < 17:
            if k == 11: rdB(s + 1, 0)
            if k == 12: rdB(s + 1, 1)
        if i == len(seq) - 1: e('s_barrier')
    if OPT['abl']: P.cur[i0:] = ablate(P.cur[i0:], OPT['abl'].split())
    stamp(P, 2, not OPT['ts2'])
    P.wait(vm='all')
    e(f'v_mov_b32 v{AK}, v{FRC}')
    for u in range(1, 4): e(f'v_xor_b32 v{AK+u}, {u << 6}, v{AK}')
    e(f'v_mov_b32 v{AV}, v{SAV}')
    for d in range(1, 8): e(f'v_xor_b32 v{AV+d}, {d << 5}, v{AV}')
    e(f'v_lshlrev_b32 v{VST}, 4, v{LANE}')
    NB = 6
    PX = 176
    order = [('S', 0), ('S', 1), ('P', 2), ('S', 2), ('S', 3), ('P', 3), ('P', 0), ('P', 1)]
    pbase = lambda b, j: PX + 4*j if b == 3 else S + 16*b + 8*j
    mf, reads = [], []
    for kind, b in order:
        for k in range(8):
            if kind == 'S':
                tt, u = k // 4, k % 4
                reads.append((('K', b, k), 1, AK + u, b*8192 + tt*4096))
                mf.append([(S + 16*b + 8*j + 4*tt, QA + 16*j + 4*u, u == 0) for j in range(2)])
            else:
                reads.append((('V', b, k), 2, AV + k, b*8192))
                mf.append([(O + 32*j + 4*k, pbase(b, j), False) for j in range(2)])
    prev = lambda m: order[m // 8] in (('P', 2), ('P', 3))
    CHK, LA = 48, OPT['lak']
    def rd(i, it=0):
        tag, n, ad, off = reads[i]; b = FB + 4*(i % NB)
        if n == 1: P.ds(f'ds_read_b128 {vr(b,4)}, v{ad} offset:{off}', (it,) + tag)
        else:
            P.ds(f'ds_read_b64_tr_b16 {vr(b,2)}, v{ad} offset:{off}', (it,) + tag)
            P.ds(f'ds_read_b64_tr_b16 {vr(b+2,2)}, v{ad} offset:{off + 4096}', (it,) + tag)
    groups = [(b, j) for b in range(4) for j in range(2)]
    gb = {g: S + 16*g[0] + 8*g[1] for g in groups}
    sdone = {0: 7, 1: 15, 2: 31, 3: 39}
    dline = {0: 48, 1: 56, 2: 80, 3: 96}
    def valu_plan():
        T0 = OPT['t0']
        at = {m: [] for m in range(128)}
        for b in range(4):
            for k in range(8): at[min(sdone[b] + 1 + k, CHK - 1)].append(((b, k // 4), 'max', k % 4))
        for i, g in enumerate(groups):
            for k in range(8):
                m = T0 + 8*i + k
                at[m].insert(0, (g, 'exp', k))
                at[m + 1].append((g, 'add', k))
                if k % 2 == 1: at[m + 1].append((g, 'cvt', k // 2))
            assert T0 + 8*i + 8 < dline[g[0]] and T0 + 8*i > min(sdone[g[0]] + 1 + 4*g[1] + 3, CHK - 1)
        post = {m: [(1,) + o for o in at[m + 64]] + [(0,) + o for o in at[m]] for m in range(64)}
        for m in post: post[m].sort(key=lambda o: o[2] != 'exp')
        return post
    vpost = valu_plan()
    lc0 = [next(o for m in range(CHK) for o in vpost[m] if o[0] == 0 and o[2] == 'add' and o[1][1] == j) for j in range(2)]
    def vop(o, m, slow=False):
        lag, g, k_, k = o; r = gb[g]; j = g[1]
        if k_ == 'max': e(f'v_max3_f32 v{M_+j}, v{M_+j}, v{r+2*k}, v{r+2*k+1}')
        elif k_ == 'exp': e(f'v_exp_f32 v{r+k}, v{r+k}')
        elif k_ == 'cvt': e(f'v_cvt_pk_bf16_f32 v{pbase(*g)+k}, v{r+2*k}, v{r+2*k+1}')
        elif lag == 0 and m < CHK and not slow:
            e(f'v_mov_b32 v{LC+j}, v{r+k}' if o == lc0[j] else f'v_add_f32 v{LC+j}, v{LC+j}, v{r+k}')
        else: e(f'v_add_f32 v{L_+j}, v{L_+j}, v{r+k}')
    CK = {16 - LA - 1: 's90', 24 - LA - 1: 's91', 48 - LA - 1: 's92', 64 - LA - 1: 's93'}
    POST = {47: 's94', 49: 's95', 63: 's96'}
    def ostore(D, k): P.vmem(f'buffer_store_dwordx4 {vr(D + 4*k,4)}, v{VST}, s[{SO}:{SO+3}], s{88 if k < 4 else 99} offen offset:{(k % 4)*1024} {OPT["o_st"]}', 'st', optional=True)
    def slots(lo, hi, mode, events=True, zero=False):
        STS = {x: i + 1 for i, x in enumerate(OPT['st'].split(','))} if mode == 'fast' else {}
        skip = lambda m: (mode in ('first', 'redo') and prev(m)) or (mode == 'tail' and not prev(m))
        keep = lambda o: mode == 'fast' or (mode == 'first' and o[0] == 0) or (mode == 'tail' and o[0] == 1)
        for m in range(lo, hi):
            ops = [o for o in vpost[m] if keep(o)]
            if not skip(m):
                w2 = m + 1 if (OPT['w2'] and m % 2 == 0 and (0,) + reads[m + 1][0] in P.lg) else m
                P.wait(lg=(0,) + reads[w2][0])
                mfma(P, mf[m][0][0], FB + 4*(m % NB), mf[m][0][1], mf[m][0][2] or zero)
            if ops: vop(ops.pop(0), m)
            if not skip(m): mfma(P, mf[m][1][0], FB + 4*(m % NB), mf[m][1][1], mf[m][1][2] or zero)
            if f'{m}' in STS: stamp_it(P, STS[f'{m}'], OPT['sti'])
            if events:
                if m + 2 in CK and not (mode == 'first' and CK[m + 2] == 's90'): F.read(FRL)
                if m in CK and not (mode == 'first' and CK[m] == 's90'): F.check(FRL, CK[m])
                if m == 45 and mode == 'fast': P.ool(['s_cmp_eq_u32 s27, 6'], 's_cbranch_scc1', lambda: e('s_waitcnt vmcnt(0)'), lambda w, it: it == 6)
                if m in POST: F.post(POST[m])
            i = m + LA
            if i >= 64:
                if events: rd(i - 64, 1)
            elif not skip(i) and not (mode in ('redo', 'tail') and i >= CHK): rd(i)
            for o in ops: vop(o, m)
            if events and m % 16 == 6 and mode != 'first':
                P.ool(['s_cmp_eq_u32 s27, 5'], 's_cbranch_scc1', lambda: (ostore(QBr, m // 16 * 2), ostore(QBr, m // 16 * 2 + 1)), lambda w, it: it == 5)
            if events and 50 <= m < 54: e(f'v_xor_b32 v{AK + m - 50}, 0x10000, v{AK + m - 50}')
            if events and m == 47 - LA and mode != 'first':
                for k in range(8): e(f'v_xor_b32 v{AV + k}, 0x10000, v{AV + k}')
    F.need(FRL, 19)
    for i in range(LA):
        if i == LA - 1: F.post(18)
        rd(i)
    for hd in range(2):
        for k in range(0, 64, 2): e(f'v_pk_mul_f32 {vr(hd*64+k,2)}, {vr(hd*64+k,2)}, s[6:7] op_sel:[0,1]')
        qs = []
        for j in range(2):
            for u in range(4):
                q, X, Y = (QA, QBr)[hd] + 16*j + 4*u, hd*64 + 16*u + 4*j, hd*64 + 16*u + 8 + 4*j
                e(f'v_cvt_pk_bf16_f32 v{q}, v{X}, v{X+1}'); e(f'v_cvt_pk_bf16_f32 v{q+1}, v{X+2}, v{X+3}')
                e(f'v_cvt_pk_bf16_f32 v{q+2}, v{Y}, v{Y+1}'); e(f'v_cvt_pk_bf16_f32 v{q+3}, v{Y+2}, v{Y+3}')
                qs.append(q)
        for sw in ('32', '16'):
            for q in qs: e(f'v_permlane{sw}_swap_b32 v{q}, v{q+2}'); e(f'v_permlane{sw}_swap_b32 v{q+1}, v{q+3}')
    def reset():
        for j in range(2): e(f'v_mov_b32 v{L_+j}, 0'); e(f'v_mov_b32 v{R_+j}, 0')
        e(f's_mov_b32 s7, {fbits(64.0):#x}')
    def mreset():
        for j in range(2): e(f'v_mov_b32 v{M_+j}, {fbits(-1e30):#x}')
    reset(); mreset()
    e(f's_mov_b32 s89, {fbits(64.0):#x}'); e('s_mov_b32 s90, 19'); e('s_mov_b32 s94, 19'); e('s_mov_b32 s97, 0xee')
    e('s_lshl_b32 s88, s4, 18'); e('s_add_u32 s99, s88, 131072')
    stamp(P, 3, not OPT['ts2'])
    def xlane(R, op):
        for sw in ('32', '16'):
            for j in range(2): e(f'v_mov_b32 v{T1+j}, v{R+j}')
            for j in range(2): e(f'v_permlane{sw}_swap_b32 v{R+j}, v{T1+j}')
            for j in range(2): e(f'{op} v{R+j}, v{R+j}, v{T1+j}')
    def finish(D, store):
        xlane(L_, 'v_add_f32')
        for j in range(2): e(f'v_rcp_f32 v{L_+j}, v{L_+j}')
        for j in range(2):
            for u in range(4):
                a = O + 32*j + 8*u
                for k in range(0, 8, 2): e(f'v_pk_mul_f32 {vr(a+k,2)}, {vr(a+k,2)}, {vr(L_,2)} ' + ('op_sel:[0,1]' if j else 'op_sel_hi:[1,0]'))
                for k in range(4): e(f'v_cvt_pk_bf16_f32 v{D + 16*j + 4*u + k}, v{a+2*k}, v{a+2*k+1}')
                if store: ostore(D, 4*j + u)
    def body():
        for k in range(1, 4): e(f's_add_u32 s{90+k}, s90, {k}')
        for k in range(1, 3): e(f's_add_u32 s{94+k}, s94, {k}')
        if OPT['st'] == 'I':
            for k in range(1, 7): stamp_it(P, k, k + OPT['sti'])
        def switch():
            for k in range(32): e(f'v_mov_b32 v{QA+k}, v{QBr+k}')
            mreset()
        P.ool(['s_cmp_eq_u32 s27, 4'], 's_cbranch_scc1', switch, lambda w, it: it == 4)
        P.ool(['s_cmp_eq_u32 s27, 0'], 's_cbranch_scc1', lambda: slots(0, CHK, 'first'), lambda w, it: it == 0, lambda: slots(0, CHK, 'fast'))
        def fin_a():
            finish(QBr, False); reset()
        P.ool(['s_cmp_eq_u32 s27, 4'], 's_cbranch_scc1', fin_a, lambda w, it: it == 4)
        e(f'v_max_f32 v{T1}, abs(v{M_}), abs(v{M_+1})')
        e(f'v_cmp_lt_f32 vcc, s7, v{T1}')
        def pv(mode):
            P.ool(['s_bitcmp0_b32 s97, s27'], 's_cbranch_scc1', lambda: slots(CHK, CHK + 8, mode, zero=True), lambda w, it: it % 4 == 0,
                  lambda: slots(CHK, CHK + 8, mode))
            slots(CHK + 8, 64, mode)
        def rest(fast):
            if fast:
                for j in range(2): e(f'v_add_f32 v{L_+j}, v{L_+j}, v{LC+j}')
                pv('fast'); return
            P.wait(lg='all')
            for i in range(LA): rd(i)
            slots(0, CHK, 'redo', events=False)
            xlane(M_, 'v_max_f32')
            for j in range(2):
                e(f'v_sub_f32 v{T1+j}, v{R_+j}, v{M_+j}'); e(f'v_min_f32 v{T1+j}, s89, v{T1+j}'); e(f'v_exp_f32 v{T1+j}, v{T1+j}')
                e(f'v_mov_b32 v{R_+j}, v{M_+j}')
            e('s_mov_b32 s7, -1.0')
            for j in range(2): e(f'v_mul_f32 v{L_+j}, v{L_+j}, v{T1+j}')
            for g in groups:
                for k in range(8): e(f'v_sub_f32 v{gb[g]+k}, v{gb[g]+k}, v{M_+g[1]}')
            for k in range(64): e(f'v_mul_f32 v{O+k}, v{O+k}, v{T1 + k // 32}')
            for m in range(64):
                for o in vpost[m]:
                    if o[0] == 0 and o[2] != 'max': vop(o, m, slow=True)
            for i in range(CHK, CHK + LA): rd(i)
            pv('slow')
        P.ool([], 's_cbranch_vccnz', lambda: rest(False), lambda w, it: (w >> 3) % 2 == 1, lambda: rest(True))
        e('s_add_u32 s90, s90, 4'); e('s_add_u32 s94, s94, 3')
    i0 = len(P.cur)
    P.vm = []
    P.loop(8, 's27', body, lambda t: (t[0] - 1,) + tuple(t[1:]) if isinstance(t, tuple) else t)
    P.wait(lg='all')
    slots(0, CHK, 'tail', events=False)
    e('s_add_u32 s88, s88, 4096'); e('s_add_u32 s99, s99, 4096')
    finish(S, True)
    if OPT['abl2']: P.cur[i0:] = ablate(P.cur[i0:], OPT['abl2'].split())
    stamp(P, 4, not OPT['ts2'])
    gen_oproj(P)

def gen_helper(P, F):
    e = P.e
    kvp, xp, wp = OPT['kv_pol'], OPT['x_pol'], OPT['w_pol']
    O8, Q8, S8, FB, QA8 = 0, 32, 64, 72, 136
    VKV, VW, VX, AK8, AV8, AW8, AX8, L16, FRH = 152, 156, 158, 161, 165, 173, 175, 176, 177
    R_, L_, T, M_, FA, TK = 178, 179, 180, 156, 157, 240
    i00 = len(P.cur)
    if OPT['hprio']: e(f's_setprio {OPT["hprio"]}')
    e(f'v_and_b32 v3, 15, v{LANE}'); e(f'v_lshrrev_b32 v4, 4, v{LANE}'); e('v_lshrrev_b32 v5, 2, v3'); e('v_and_b32 v6, 3, v3')
    e(f'v_lshrrev_b32 v7, 2, v{LANE}'); e('v_lshrrev_b32 v8, 2, v7'); e('v_sub_u32 v8, 4, v8'); e('v_and_b32 v8, 3, v8')
    e('v_xor_b32 v8, v8, v6'); e('v_lshlrev_b32 v8, 4, v8')
    e('v_mul_u32_u24 v9, 1152, v7'); e('v_add_u32 v9, v9, v8'); e(f'v_add_u32 v{VX+2}, {128*1152}, v9')
    e('s_mul_i32 s3, s4, 18432'); e(f'v_add_u32 v{VX}, s3, v9'); e(f'v_add_u32 v{VX+1}, 73728, v{VX}')
    e('s_lshl_b32 s5, s4, 10'); e('s_lshl_b32 s6, s4, 11'); e('s_lshl_b32 s59, s4, 12')
    e('s_waitcnt lgkmcnt(0)')
    e('s_cmp_eq_u32 s50, 0')
    for k in range(4): e(f's_cselect_b64 s[{8+2*k}:{9+2*k}], s[{8+2*k}:{9+2*k}], s[{16+2*k}:{17+2*k}]')
    e('s_mul_i32 s3, s52, 165888'); e('s_add_u32 s8, s8, s3'); e('s_addc_u32 s9, s9, 0')
    srd(P, SX, 8, 9, 165888)
    qrot(P); e('s_lshl_b32 s53, s53, 6')
    def qstage(s):
        st, tag = QB0 + sidx(s)*STG, ('q', s)
        for u in range(2):
            e(f's_add_u32 m0, s5, {st + u*4096}')
            P.vmem(f'buffer_load_dwordx4 v{VX+u}, s[{SX}:{SX+3}], s53 offen {xp} lds', tag)
        def x8():
            e(f's_mov_b32 m0, {st + 8192}')
            P.vmem(f'buffer_load_dwordx4 v{VX+2}, s[{SX}:{SX+3}], s53 offen {xp} lds', tag, optional=True)
        P.only(s % 4, x8)
        e('s_add_u32 s53, s53, 64'); e('s_cmp_eq_u32 s53, 1152'); e('s_cselect_b32 s53, 0, s53')
    qstage(0); qstage(1)
    def tag():
        e('s_memrealtime s[84:85]'); e('s_waitcnt lgkmcnt(0)'); e('s_or_b32 s84, s84, 1')
        e('v_mov_b32 v7, 0'); e('v_mov_b32 v8, s84')
        e('s_mov_b64 exec, 1')
        P.vmem('global_store_dword v7, v8, s[82:83] sc1', 'tag', optional=True)
        e('s_mov_b64 exec, -1')
    e('s_lshl_b32 s3, s2, 3'); e('s_add_u32 s3, s3, s87')
    P.ool(['s_cmp_eq_u32 s3, 4'], 's_cbranch_scc1', tag, lambda w, it: w == 4)
    if OPT['krot'] == 1: e('s_lshr_b32 s58, s2, 3')
    elif OPT['krot'] == 2: e('s_mov_b32 s58, s2')
    elif OPT['krot'] == 3:
        e('s_lshr_b32 s58, s2, 3'); e('s_add_u32 s58, s58, s2'); e('s_lshr_b32 s3, s2, 6'); e('s_add_u32 s58, s58, s3')
    else: e('s_mov_b32 s58, 0')
    e('s_and_b32 s58, s58, 7'); e('s_lshl_b32 s58, s58, 14')
    e('s_lshl_b32 s3, s52, 5'); e('s_add_u32 s3, s3, s51'); e('s_lshl_b32 s3, s3, 17')
    e('s_add_u32 s10, s10, s3'); e('s_addc_u32 s11, s11, 0'); srd(P, SK, 10, 11, 262144)
    e('s_add_u32 s12, s12, s3'); e('s_addc_u32 s13, s13, 0'); srd(P, SV, 12, 13, 262144)
    o_srd(P)
    for t in range(4):
        e(f'v_add_u32 v7, {4*t}, v4'); femit(P, 8, 7, 9, 10)
        e('v_xor_b32 v8, v8, v3'); e('v_lshlrev_b32 v8, 4, v8'); e('v_lshl_add_u32 v8, v4, 8, v8'); e(f'v_add_u32 v{VKV+t}, s59, v8')
    femit(P, 8, 3, 9, 10)
    e('v_xor_b32 v8, v8, v4'); e('v_lshlrev_b32 v8, 4, v8'); e('v_lshl_add_u32 v8, v3, 8, v8'); e(f'v_add_u32 v{AK8}, s59, v8')
    for u in range(1, 4): e(f'v_xor_b32 v{AK8+u}, {u << 6}, v{AK8}')
    def traddr16(dst, shift, base_s, base):
        e(f'v_lshl_add_u32 v7, v4, {shift}, v5'); e('v_and_b32 v11, 15, v7'); femit(P, 8, 11, 9, 10)
        e('v_lshrrev_b32 v9, 1, v6'); e('v_xor_b32 v8, v8, v9'); e('s_lshl_b32 s3, s4, 2'); e('v_xor_b32 v8, s3, v8')
        e('v_lshlrev_b32 v8, 4, v8'); e('v_and_b32 v9, 1, v6'); e('v_lshl_or_b32 v8, v9, 3, v8'); e('v_lshl_add_u32 v8, v7, 8, v8')
        if base_s: e(f'v_add_u32 v8, {base_s}, v8')
        e(f'v_add_u32 v{dst}, {base}, v8')
    traddr16(AV8, 2, 's59', 32768)
    for d in range(1, 8): e(f'v_xor_b32 v{AV8+d}, {d << 5}, v{AV8}')
    traddr16(AW8, 3, None, QB0 + XB); e(f'v_xor_b32 v{AW8+1}, 32, v{AW8}')
    e('v_sub_u32 v8, 4, v5'); e('v_and_b32 v8, 3, v8'); e('v_xor_b32 v8, v8, v4'); e('v_lshlrev_b32 v8, 4, v8')
    e('v_lshl_add_u32 v8, v3, 6, v8'); e(f'v_add_u32 v{AX8}, {QB0 + 8192}, v8')
    e(f'v_lshlrev_b32 v{L16}, 4, v{LANE}')
    AW8b = 183
    for k in range(3): e(f'v_add_u32 v{AW8b+k}, {2*STG}, v{AW8+k}')
    e(f'v_add_u32 v{FRH}, {FLG + 512 - (FLG + 1536)}, v{FRL}')
    def item(n):
        S = SK if n % 4 < 2 else SV
        e(f's_add_u32 m0, s59, {(n % 8)*16384}')
        e(f's_xor_b32 s26, s58, {(n // 4)*32768 + (n % 2)*16384}')
        for t in range(4):
            if 'kv8' in OPT['abl2'] and n >= 8: continue
            P.vmem(f'buffer_load_dwordx4 v{VKV+t}, s[{S}:{S+3}], s26 offen offset:{t*1024} {kvp} lds', ('kv', n))
    SEQ = [0, 1, 2] + [x for c in range(1, 8) for x in (4*c, 4*c - 1, 4*c + 1, 4*c + 2)] + [31]
    def cneed(n):
        c, k = (n - 8) // 4, n % 4
        return 19 + 3*c + (1, 1, 2, 3)[k]
    EA = [int(x) for x in OPT['ea'].split(',')]
    P.wait(vm=('q', 0)); e('s_barrier')
    stamp(P, 1, not OPT['ts2'])
    qstage(2)
    for s in range(18):
        a, off = (AW8, sidx(s)*STG) if sidx(s) < 2 else (AW8b, (sidx(s) - 2)*STG)
        P.ds(f'ds_read_b128 {vr(FB,4)}, v{a+2} offset:{off}', 'b')
        for hd in range(2):
            for dd in range(2):
                b = FB + 4 + 8*hd + 4*dd if hd == 0 else S8 + 4*dd
                P.ds(f'ds_read_b64_tr_b16 {vr(b,2)}, v{a+dd} offset:{off + hd*8192}', ('a', hd, dd))
                P.ds(f'ds_read_b64_tr_b16 {vr(b+2,2)}, v{a+(dd^1)} offset:{off + hd*8192 + 1024}', ('a', hd, dd))
        if s + 3 < 18: qstage(s + 3)
        for i, x in enumerate(EA):
            if x == s: item(i)
        for hd in range(2):
            for dd in range(2):
                P.wait(lg=('a', hd, dd)); mfma(P, QA8 + 8*hd + 4*dd, FB + 4 + 8*hd + 4*dd if hd == 0 else S8 + 4*dd, FB, s == 0)
        if s < 17: P.wait(vm=('q', s + 1))
        e('s_barrier')
    stamp(P, 2, not OPT['ts2'])
    for i, x in enumerate(EA):
        if x == 18: item(i)
    item(SEQ[3])
    P.wait(vm=('kv', 0)); F.post(19, 1024); item(SEQ[4])
    for k in range(16): e(f'v_mul_f32 v{QA8+k}, s7, v{QA8+k}')
    e(f's_add_u32 s3, s5, {XCH}'); e(f'v_add_u32 v{T}, s3, v{L16}')
    for hd in range(2):
        d, X, Y = FB + 4*hd, QA8 + 8*hd, QA8 + 8*hd + 4
        e(f'v_cvt_pk_bf16_f32 v{d}, v{X}, v{X+1}'); e(f'v_cvt_pk_bf16_f32 v{d+1}, v{X+2}, v{X+3}')
        e(f'v_cvt_pk_bf16_f32 v{d+2}, v{Y}, v{Y+1}'); e(f'v_cvt_pk_bf16_f32 v{d+3}, v{Y+2}, v{Y+3}')
        for sw in ('32', '16'):
            e(f'v_permlane{sw}_swap_b32 v{d}, v{d+2}'); e(f'v_permlane{sw}_swap_b32 v{d+1}, v{d+3}')
        P.ds(f'ds_write_b128 v{T}, {vr(d,4)} offset:{hd*4096}', 'xw')
    e(f's_mov_b32 s89, {fbits(64.0):#x}')
    hep = [1000]
    def hsync():
        P.wait(lg='all'); hep[0] += 1
        F.post(hep[0]); F.need(FRH, hep[0])
    hsync()
    e(f'v_add_u32 v{T}, {XCH}, v{L16}')
    for k in range(8): P.ds(f'ds_read_b128 {vr(Q8+4*k,4)}, v{T} offset:{k*1024}', 'q8')
    P.wait(lg='all')
    stamp(P, 3, not OPT['ts2'])
    e('s_mov_b32 s98, 19')
    def postL(v):
        e(f's_max_u32 s98, s98, {v}'); F.post('s98', 1024)
    def touch():
        e('s_getpc_b64 s[56:57]'); lb = P.newlab('pc'); P.lab(lb)
        e(f's_sub_u32 s56, s56, {lb}-{KNAME}'); e('s_subb_u32 s57, s57, 0')
        e(f'v_lshlrev_b32 v242, 7, v{LANE}'); e('s_lshl_b32 s3, s4, 14'); e('v_add_u32 v242, s3, v242')
        e(f's_mov_b32 s3, .Lcode_end-{KNAME}-4')
        for k in range(2):
            e(f'v_min_u32 v243, s3, v242'); P.vmem(f'global_load_dword v{244+k}, v243, s[56:57]', 'ct', optional=True)
            e('v_add_u32 v242, 8192, v242')
    def need_free(val, lv, nxt):
        F.read(FRC); P.wait(lg='fr')
        def slow():
            done = P.newlab('nf')
            vm0 = list(P.vm)
            for i, tg in enumerate(nxt):
                if not any(t[0] == tg for t in P.vm): break
                P.wait(vm=tg); e(f's_add_u32 s3, {lv}, {i + 1}'); postL('s3')
                e(f'ds_read_b32 v{FT}, v{FRC}'); e('s_waitcnt lgkmcnt(0)')
                e(f'v_cmp_gt_u32 vcc, {val}, v{FT}'); e(f's_cbranch_vccz {done}')
            sp = P.newlab('sp'); P.lab(sp)
            e(f's_sleep {OPT["slp"]}'); e(f'ds_read_b32 v{FT}, v{FRC}'); e('s_waitcnt lgkmcnt(0)')
            e(f'v_cmp_gt_u32 vcc, {val}, v{FT}'); e(f's_cbranch_vccnz {sp}')
            P.lab(done)
            P.vm = vm0
        P.ool([f'v_cmp_gt_u32 vcc, {val}, v{FT}'], 's_cbranch_vccnz', slow, lambda w, it: False)
    def scores():
        for tt in range(2):
            for u in range(4): P.ds(f'ds_read_b128 {vr(FB + 16*tt + 4*u, 4)}, v{AK8+u} offset:{tt*16384}', ('k', tt, u))
        for tt in range(2):
            for u in range(4):
                P.wait(lg=('k', tt, u)); mfma(P, S8 + 4*tt, FB + 16*tt + 4*u, Q8 + 4*u, u == 0)
        for u in range(4): e(f'v_xor_b32 v{AK8+u}, 0x10000, v{AK8+u}')
        for k in range(4): e(f'v_max3_f32 v{M_}, v{M_}, v{S8+2*k}, v{S8+2*k+1}')
        e(f'v_cmp_lt_f32 vcc, s7, abs(v{M_})')
        def shift():
            for sw in ('32', '16'):
                e(f'v_mov_b32 v{T}, v{M_}'); e(f'v_permlane{sw}_swap_b32 v{M_}, v{T}'); e(f'v_max_f32 v{M_}, v{M_}, v{T}')
            e(f'v_sub_f32 v{T}, v{R_}, v{M_}'); e(f'v_min_f32 v{T}, s89, v{T}'); e(f'v_exp_f32 v{T}, v{T}')
            e(f'v_mov_b32 v{R_}, v{M_}'); e('s_mov_b32 s7, -1.0')
            for k in range(8): e(f'v_sub_f32 v{S8+k}, v{S8+k}, v{M_}')
            e(f'v_mul_f32 v{L_}, v{L_}, v{T}')
            for k in range(32): e(f'v_mul_f32 v{O8+k}, v{O8+k}, v{T}')
        P.ool([], 's_cbranch_vccnz', shift, lambda w, it: (w >> 3) % 2 == 1)
        for k in range(8): e(f'v_exp_f32 v{S8+k}, v{S8+k}')
        for k in range(8): e(f'v_add_f32 v{L_}, v{L_}, v{S8+k}')
        for k in range(4): e(f'v_cvt_pk_bf16_f32 v{S8+k}, v{S8+2*k}, v{S8+2*k+1}')
    def pv8():
        def rv(d):
            P.ds(f'ds_read_b64_tr_b16 {vr(FB + 4*d, 2)}, v{AV8+d}', ('v', d))
            P.ds(f'ds_read_b64_tr_b16 {vr(FB + 4*d + 2, 2)}, v{AV8+d} offset:16384', ('v', d))
        for d in range(6): rv(d)
        for d in range(8):
            P.wait(lg=('v', d)); mfma(P, O8 + 4*d, FB + 4*d, S8)
            if d < 2: rv(6 + d)
        for d in range(8): e(f'v_xor_b32 v{AV8+d}, 0x10000, v{AV8+d}')
    def hreset():
        for k in range(32): e(f'v_mov_b32 v{O8+k}, 0')
        e(f'v_mov_b32 v{M_}, {fbits(-1e30):#x}'); e(f'v_mov_b32 v{L_}, 0'); e(f'v_mov_b32 v{R_}, 0'); e(f's_mov_b32 s7, {fbits(64.0):#x}')
    def combine(head):
        for sw in ('32', '16'):
            e(f'v_mov_b32 v{T}, v{L_}'); e(f'v_permlane{sw}_swap_b32 v{L_}, v{T}'); e(f'v_add_f32 v{L_}, v{L_}, v{T}')
        for q in range(1, 4):
            e(f's_xor_b32 s3, s4, {q}'); e('s_mul_i32 s3, s3, 6144'); e(f's_add_u32 s3, s3, {XCH + (q-1)*2048}')
            e(f'v_add_u32 v{T}, s3, v{L16}')
            for k in range(2): P.ds(f'ds_write_b128 v{T}, {vr(O8 + 8*q + 4*k, 4)} offset:{k*1024}', 'cw')
        e(f'v_lshrrev_b32 v{T+1}, 1, v{L16}'); e('s_lshl_b32 s3, s4, 9'); e(f's_add_u32 s3, s3, {XCH + 24576}')
        e(f'v_add_u32 v{T+1}, s3, v{T+1}')
        P.ds(f'ds_write_b64 v{T+1}, {vr(R_,2)}', 'cw')
        hsync()
        e('s_mul_i32 s3, s4, 6144'); e(f's_add_u32 s3, s3, {XCH}'); e(f'v_add_u32 v{T}, s3, v{L16}')
        ST, CB, W = FB, FB + 8, S8
        for q in range(1, 4):
            e(f'v_xor_b32 v{FT}, {q << 9}, v{T+1}')
            P.ds(f'ds_read_b64 {vr(ST + 2*q, 2)}, v{FT}', 'cs')
        for q in range(1, 4):
            for k in range(2): P.ds(f'ds_read_b128 {vr(CB + 8*q + 4*k, 4)}, v{T} offset:{(q-1)*2048 + k*1024}', ('co', q))
        e(f'v_mov_b32 v{ST}, v{R_}'); e(f'v_mov_b32 v{ST+1}, v{L_}')
        P.wait(lg='cs')
        e(f'v_max3_f32 v{W}, v{ST}, v{ST+2}, v{ST+4}'); e(f'v_max_f32 v{W}, v{W}, v{ST+6}')
        for q in range(4): e(f'v_sub_f32 v{W+4+q}, v{ST+2*q}, v{W}')
        for q in range(4): e(f'v_exp_f32 v{W+4+q}, v{W+4+q}')
        e(f'v_mul_f32 v{W+1}, v{W+4}, v{ST+1}')
        for q in range(1, 4): e(f'v_fma_f32 v{W+1}, v{W+4+q}, v{ST+2*q+1}, v{W+1}')
        e(f'v_rcp_f32 v{W+1}, v{W+1}')
        for q in range(4): e(f'v_mul_f32 v{W+4+q}, v{W+4+q}, v{W+1}')
        for k in range(8): e(f'v_mul_f32 v{O8+k}, v{O8+k}, v{W+4}')
        for q in range(1, 4):
            P.wait(lg=('co', q))
            for k in range(8): e(f'v_fma_f32 v{O8+k}, v{CB+8*q+k}, v{W+4+q}, v{O8+k}')
        for k in range(4): e(f'v_cvt_pk_bf16_f32 v{W+k}, v{O8+2*k}, v{O8+2*k+1}')
        e(f's_add_u32 s26, s5, {1048576 + head*4096}')
        P.vmem(f'buffer_store_dwordx4 {vr(W,4)}, v{L16}, s[{SO}:{SO+3}], s26 offen {OPT["o_st"]}', 'st', optional=True)
    P.wait(vm=('kv', 1)); postL(20); item(SEQ[5])
    hreset(); scores()
    P.wait(vm=('kv', 2)); postL(21); item(SEQ[6])
    e('s_load_dwordx2 s[8:9], s[0:1], 32'); e('s_load_dwordx2 s[10:11], s[0:1], 72'); e('s_load_dwordx2 s[12:13], s[0:1], 96')
    e(f'v_mov_b32 v{VX}, 0')
    P.vmem(f'global_load_dword v{VX+1}, v{VX}, s[82:83] sc1', 'tagld', optional=True)
    e('s_lshl_b32 s3, s50, 3'); e('s_add_u32 s3, s3, s52'); e('s_lshl_b32 s3, s3, 4'); e('s_lshr_b32 s26, s51, 1'); e('s_add_u32 s3, s3, s26')
    e('s_lshl_b32 s3, s3, 7'); e(f's_add_u32 s3, s3, {FLAGOFF}'); e(f'v_mov_b32 v{FA}, s3')
    e('s_mov_b32 s20, 22'); e('s_mov_b32 s21, 19'); e('s_mov_b32 s22, 65536'); e('s_mov_b32 s23, s59')
    e('s_mov_b32 s18, 32768'); e('s_add_u32 s19, s59, 65536')
    e('s_waitcnt lgkmcnt(0)'); P.lg = []
    P.vm = [(('kv', -1), False)] * 4 + [(('kv', k), False) for k in range(3) for _ in range(4)] + [('tagld', True)]
    def tr(v):
        if OPT['trace']:
            e('s_memrealtime s[76:77]'); e('s_sub_u32 m0, s24, 19'); e('s_waitcnt lgkmcnt(0)'); e('s_sub_u32 s76, s76, s60'); e(f'v_writelane_b32 v{v}, s76, m0')
    KIND = [(0, 1, 1), (3, 0, 0), (1, 1, 1), (2, 1, 2)]
    def step(k, issue=True):
        P.wait(vm=('kv', k - 1)); e(f's_add_u32 s24, s20, {k}'); postL('s24')
        tr(246)
        if not issue: return
        kind, nx, co = KIND[k]
        e(f's_add_u32 s25, s21, {co}')
        need_free('s25', 's24', [('kv', k + i) for i in range(3)])
        tr(247)
        S = SK if kind < 2 else SV
        e(f's_add_u32 m0, {"s23" if nx else "s19"}, {kind*16384}')
        e(f's_add_u32 s26, {"s22" if nx else "s18"}, {(kind % 2)*16384}')
        for t in range(4):
            P.vmem(f'buffer_load_dwordx4 v{VKV+t}, s[{S}:{S+3}], s26 offen offset:{t*1024} {kvp} lds', ('kv', k + 3))
        tr(248)
    def wtouch():
        e(f'v_lshlrev_b32 v{VX+2}, 7, v{LANE}'); e('s_lshl_b32 s3, s4, 13'); e(f'v_add_u32 v{VX+2}, s3, v{VX+2}')
        e('s_and_b32 s3, s2, 127'); e('s_mul_i32 s3, s3, 36864')
        e('s_cmp_lt_u32 s2, 128'); e('s_cselect_b64 s[8:9], s[8:9], s[10:11]')
        e('s_add_u32 s8, s8, s3'); e('s_addc_u32 s9, s9, 0'); srd(P, SX, 8, 9, 36864)
        if OPT['wpf']:
            e('s_mov_b32 s26, 32768')
            P.vmem(f'buffer_load_dword v250, v{VX+2}, s[{SX}:{SX+3}], 0 offen', 'wt', optional=True)
            P.vmem(f'buffer_load_dword v251, v{VX+2}, s[{SX}:{SX+3}], s26 offen', 'wt', optional=True)
    def hbody():
        step(0)
        step(1); pv8()
        def mid():
            combine(0); hreset()
            for k in range(16): e(f'v_mov_b32 v{Q8+k}, v{Q8+16+k}')
            if OPT['rtc']: touch()
            if OPT['wpos'] == 16: wtouch()
        P.ool(['s_cmp_eq_u32 s27, 3'], 's_cbranch_scc1', mid, lambda w, it: it == 3)
        step(2); scores()
        step(3)
        e('s_add_u32 s20, s20, 4'); e('s_add_u32 s21, s21, 3'); e('s_mov_b32 s18, s22'); e('s_add_u32 s22, s22, 32768')
        e('s_xor_b32 s23, s23, 65536'); e('s_xor_b32 s19, s19, 65536')
    P.loop(6, 's27', hbody, lambda t: ('kv', t[1] - 4) if t[0] == 'kv' else t)
    P.vm = [(('kv', t[0][1] - 4), t[1]) if t[0][0] == 'kv' else t for t in P.vm]
    step(0, False)
    if OPT['wpos'] == 27: wtouch()
    if OPT['rtc']: touch()
    def respin():
        sp = P.newlab('tg'); P.lab(sp)
        e('s_sleep 8'); e(f'global_load_dword v{VX+1}, v{VX}, s[82:83] sc1'); e('s_waitcnt vmcnt(0)')
        e(f'v_cmp_eq_u32 vcc, 0, v{VX+1}'); e(f's_cbranch_vccnz {sp}')
    P.ool([f'v_cmp_eq_u32 vcc, 0, v{VX+1}'], 's_cbranch_vccnz', respin, lambda w, it: False)
    step(1)
    hsync()
    def sig_a():
        e(f'v_mov_b32 v{T}, {NONCE}')
        e('s_mov_b64 exec, 1')
        P.vmem(f'global_store_dword v{FA}, v{VX+1}, s[12:13] offset:64 sc1', 'fa', optional=True)
        e(f'ds_write_b32 v{T}, v{VX+1}')
        e('s_mov_b64 exec, -1'); e('s_waitcnt lgkmcnt(0)')
    P.only(0, sig_a)
    pv8()
    step(2, False); scores()
    H = OprojHelper(P, VX + 1)
    H.setup()
    step(3, False)
    P.wait(vm='f'); postL(50)
    wtouch()
    def pre():
        F.need(FRC, 41); H.first()
    P.only(None, pre, pred=lambda w, it: True, cmp='s_cmp_lt_u32 s2, 216')
    pv8(); combine(1)
    ab = (OPT['abl'] + ' ' + OPT['abl2']).split()
    if ab: P.cur[i00:] = ablate(P.cur[i00:], [x for x in ab if x in ('dma', 'qdma', 'st')] + (['mfma', 'ds', 'valu'] if 'hc' in ab else []))
    stamp(P, 4, not OPT['ts2'])
    def signal():
        e('s_mov_b64 exec, 1')
        e(f'global_store_dword v{FA}, v{VX+1}, s[12:13] sc1')
        e('s_mov_b64 exec, -1')
    def idle():
        e('s_waitcnt vmcnt(0)'); e('s_barrier')
        P.only(0, signal)
        e('s_branch .Lk1_fin')
    P.ool(['s_cmp_ge_u32 s2, 216'], 's_cbranch_scc1', idle, lambda w, it: False)
    H.run(signal)

WST, OST, OR0, NS = 12288, 8192, 49152, 4
PBUF, FLAG2 = 0x2800000, 0x2100000

def op_ids(P):
    e = P.e
    e('s_and_b32 s48, s2, 3'); e('s_bfe_u32 s50, s2, 0x10002'); e('s_lshr_b32 s49, s2, 3')
    e('s_mul_i32 s51, s49, 43'); e('s_lshr_b32 s51, s51, 7'); e('s_mul_i32 s3, s51, 3'); e('s_sub_u32 s52, s49, s3')
    e('s_mul_i32 s53, s50, 27'); e('s_add_u32 s53, s53, s49')

def kstep(P, cnt, dst):
    e = P.e
    e(f's_and_b32 {dst}, {cnt}, 31'); e(f's_add_u32 {cnt}, {cnt}, 1'); e(f's_and_b32 s3, {cnt}, 4'); e(f's_bitcmp1_b32 {cnt}, 6')
    e(f's_cselect_b32 s57, 4, 0'); e('s_xor_b32 s3, s3, s57'); e(f's_add_u32 {cnt}, {cnt}, s3')
    e(f's_cmp_eq_u32 {cnt}, 32'); e(f's_cselect_b32 {cnt}, 68, {cnt}')

def poll_fn(P, val, ad, base, tag):
    def poll():
        sp = P.newlab('fl'); P.lab(sp)
        P.e('s_sleep 4'); P.e(f'global_load_dword v{val}, v{ad}, {base} sc1'); P.e('s_waitcnt vmcnt(0)')
        P.e(f'v_cmp_ne_u32 vcc, v{tag}, v{val}'); P.e(f's_cbranch_vccnz {sp}')
    return poll

class OprojHelper:
    SWO, SO2 = 36, 40
    VW3, VO, FLA, FLV, t = 200, 203, 205, 206, 208
    def __init__(s, P, tag): s.P, s.TAG = P, tag
    def setup(s):
        P = s.P; e = P.e; t = s.t
        op_ids(P)
        for b3 in range(3):
            e(f'v_add_u32 v{t}, {64*b3}, v{LANE}'); e(f'v_mul_u32_u24 v{t+1}, 2731, v{t}'); e(f'v_lshrrev_b32 v{t+1}, 16, v{t+1}')
            e(f'v_mul_u32_u24 v{t+2}, 24, v{t+1}'); e(f'v_sub_u32 v{t+2}, v{t}, v{t+2}')
            e(f'v_bfe_u32 v{t+3}, v{t+1}, 1, 2'); e(f'v_lshlrev_b32 v{t+3}, 1, v{t+3}'); e(f'v_xor_b32 v{t+2}, v{t+2}, v{t+3}'); e(f'v_lshlrev_b32 v{t+2}, 4, v{t+2}')
            e('s_lshl_b32 s3, s4, 3'); e(f'v_add_u32 v{t+1}, s3, v{t+1}'); e(f'v_mul_u32_u24 v{t+1}, 1152, v{t+1}'); e(f'v_add_u32 v{s.VW3+b3}, v{t+1}, v{t+2}')
        e('s_xor_b32 s3, s4, s48'); e('s_lshl_b32 s3, s3, 18'); e(f'v_lshlrev_b32 v{t}, 4, v{LANE}'); e(f'v_add_u32 v{s.VO}, s3, v{t}')
        e(f'v_add_u32 v{s.VO+1}, 131072, v{s.VO}')
        e('s_mul_i32 s14, s4, 3072'); e('s_lshl_b32 s15, s4, 11'); e(f's_add_u32 s15, s15, {OR0}')
        e('s_cmp_eq_u32 s50, 0'); e('s_cselect_b64 s[16:17], s[8:9], s[10:11]')
        e(f's_mul_i32 s3, s48, {1024*1152}'); e('s_mul_i32 s26, s52, 384'); e('s_add_u32 s3, s3, s26')
        e('s_add_u32 s16, s16, s3'); e('s_addc_u32 s17, s17, 0'); srd(P, s.SWO, 16, 17, 1023*1152 + 384)
        e('s_mul_i32 s3, s50, 72'); e('s_lshl_b32 s26, s51, 3'); e('s_add_u32 s3, s3, s26'); e('s_lshl_b32 s3, s3, 2'); e('s_add_u32 s3, s3, s48')
        e('s_lshl_b32 s3, s3, 15'); e('s_add_u32 s16, s12, s3'); e('s_addc_u32 s17, s13, 0'); srd(P, s.SO2, 16, 17, 7*131072 + 32768)
        e('s_lshl_b32 s3, s51, 3'); e('s_add_u32 s26, s3, 7'); e('s_mul_i32 s3, s3, 57'); e('s_lshr_b32 s3, s3, 9'); e('s_mul_i32 s26, s26, 57'); e('s_lshr_b32 s26, s26, 9')
        e('s_min_u32 s3, s3, 7'); e('s_min_u32 s26, s26, 7')
        e(f'v_mov_b32 v{t}, s3'); e(f'v_mov_b32 v{t+1}, s26'); e(f'v_and_b32 v{t+2}, 4, v{LANE}'); e(f'v_cmp_eq_u32 vcc, 0, v{t+2}'); e('s_nop 1')
        e(f'v_cndmask_b32 v{t}, v{t+1}, v{t}, vcc')
        e('s_lshl_b32 s3, s50, 5'); e('s_add_u32 s3, s3, s48'); e('s_lshl_b32 s3, s3, 2')
        e(f'v_lshlrev_b32 v{t}, 4, v{t}'); e(f'v_and_b32 v{t+1}, 3, v{LANE}'); e(f'v_add3_u32 v{t}, v{t}, v{t+1}, s3')
        e(f'v_lshlrev_b32 v{t}, 7, v{t}'); e(f'v_add_u32 v{s.FLA}, {FLAGOFF + 64}, v{t}')
        e('s_mov_b32 s54, 0'); e('s_mov_b32 s55, 0')
        P.vmem(f'global_load_dword v{s.FLV}, v{s.FLA}, s[12:13] sc1', 'f')
    def wo(s, k, opt=False):
        P = s.P; kstep(P, 's54', 's56'); P.e('s_mul_i32 s56, s56, 36864')
        for b3 in range(3):
            P.e(f's_add_u32 m0, s14, {(k % NS)*WST + b3*1024}')
            P.vmem(f'buffer_load_dwordx4 v{s.VW3+b3}, s[{s.SWO}:{s.SWO+3}], s56 offen lds', ('L', k), optional=opt)
    def oo(s, k, opt=False):
        P = s.P; kstep(P, 's55', 's56'); P.e('s_lshl_b32 s56, s56, 10')
        for x in range(2):
            P.e(f's_add_u32 m0, s15, {(k % NS)*OST + x*1024}')
            P.vmem(f'buffer_load_dwordx4 v{s.VO+x}, s[{s.SO2}:{s.SO2+3}], s56 offen sc1 lds', ('L', k), optional=opt)
    def check(s):
        s.P.ool([f'v_cmp_ne_u32 vcc, v{s.TAG}, v{s.FLV}'], 's_cbranch_vccnz', poll_fn(s.P, s.FLV, s.FLA, 's[12:13]', s.TAG), lambda w, it: False)
    def first(s):
        s.check()
        for k in range(NS): s.wo(k, True); s.oo(k, True)
    def run(s, signal):
        P = s.P; e = P.e
        e('s_waitcnt vmcnt(16)'); e('s_barrier')
        stamp(P, 5, not OPT['ts2'])
        P.vm = [(('F', -3), False)] + [(('L', k), False) for k in (1, 2, 3) for _ in range(5)]
        def body():
            for k in range(NS):
                P.wait(vm=('L', k + 1)); e('s_barrier')
                if k == 0:
                    e('s_cmp_eq_u32 s27, 7'); e(f's_cselect_b32 s59, {BIG}, 0')
                    for r in range(5): e(f'v_add_u32 v{s.VW3+r}, s59, v{s.VW3+r}')
                if k == 1:
                    e('s_cmp_eq_u32 s27, 2'); e('s_cselect_b32 s57, 64, 0'); e(f'v_subrev_u32 v{s.FLA}, s57, v{s.FLA}')
                    P.vmem(f'global_load_dword v{s.FLV}, v{s.FLA}, s[12:13] sc1', ('F', 1))
                if k == 3:
                    e('s_lshl_b32 s3, s27, 2'); e('s_add_u32 s3, s3, s4')
                    P.ool(['s_cmp_eq_u32 s3, 0'], 's_cbranch_scc1', signal, lambda w, it: False)
                s.wo(k + NS)
                if k == 0: s.check()
                s.oo(k + NS)
        P.loop(8, 's27', body, lambda t: (t[0], t[1] - NS) if isinstance(t, tuple) else t)
        stamp(P, 6, not OPT['ts2'])
        e('s_barrier')
        def sig2():
            e('s_lshl_b32 s3, s53, 2'); e('s_add_u32 s3, s3, s48'); e('s_lshl_b32 s3, s3, 7'); e(f's_add_u32 s3, s3, {FLAG2}'); e('v_mov_b32 v2, s3')
            e('s_mov_b64 exec, 1'); e(f'global_store_dword v2, v{s.TAG}, s[12:13] sc1'); e('s_mov_b64 exec, -1')
        P.only(0, sig2)

def gen_oproj(P):
    e = P.e
    SP, SOUT = 28, 32
    ACC, AF, BF, AA, AB, L16, VOUT, FLA, FLV, TAG = 0, 96, 144, 176, 182, 183, 184, 185, 186, 235
    def idle():
        e('s_waitcnt vmcnt(0)'); e('s_barrier'); e('s_branch .Lk1_fin')
    P.ool(['s_cmp_ge_u32 s2, 216'], 's_cbranch_scc1', idle, lambda w, it: False)
    e('s_load_dwordx2 s[12:13], s[0:1], 80'); e('s_load_dwordx2 s[14:15], s[0:1], 96')
    e('v_mbcnt_lo_u32_b32 v0, -1, 0'); e('v_mbcnt_hi_u32_b32 v0, -1, v0')
    e('v_and_b32 v3, 15, v0'); e('v_lshrrev_b32 v4, 4, v0'); e('v_lshrrev_b32 v5, 2, v3'); e('v_and_b32 v6, 3, v3')
    e(f'v_lshlrev_b32 v{L16}, 4, v0')
    e('s_and_b32 s5, s4, 1'); e('s_lshr_b32 s6, s4, 1')
    e('v_lshl_add_u32 v7, v4, 2, v5'); e('v_bfe_u32 v8, v7, 1, 2'); e('v_mul_u32_u24 v7, 384, v7'); e('v_lshl_add_u32 v7, v6, 3, v7')
    e('s_mul_i32 s3, s5, 6')
    for k in range(6):
        e(f's_add_u32 s26, s3, {k}'); e('v_xor_b32 v9, s26, v8'); e(f'v_lshl_add_u32 v{AA+k}, v9, 5, v7')
    e('s_lshl_b32 s3, s6, 12'); e(f's_add_u32 s3, s3, {OR0}'); e(f'v_add_u32 v{AB}, s3, v{L16}')
    e('v_mul_u32_u24 v7, 2304, v3'); e('v_lshl_add_u32 v7, v4, 4, v7'); e('s_mul_i32 s3, s5, 192'); e(f'v_add_u32 v{VOUT}, s3, v7')
    e('v_and_b32 v7, 3, v0'); e('v_max_u32 v7, 1, v7'); e(f'v_mov_b32 v{FLA}, v7')
    for i in range(96): e(f'v_mov_b32 v{i}, 0')
    e('s_waitcnt lgkmcnt(0)'); P.vm = []; P.lg = []
    e('s_barrier')
    stamp(P, 5, not OPT['ts2'])
    def ids():
        op_ids(P)
        e(f'v_mov_b32 v{TAG}, {NONCE}'); P.ds(f'ds_read_b32 v{TAG}, v{TAG}', 'n')
        e('s_mul_i32 s3, s53, 294912'); e(f's_add_u32 s3, s3, {PBUF}'); e('s_add_u32 s8, s14, s3'); e('s_addc_u32 s9, s15, 0'); srd(P, SP, 8, 9, 294912)
        e('s_lshl_b32 s3, s51, 2'); e('s_add_u32 s3, s3, s48'); e(f's_mul_i32 s3, s3, {32*2304}'); e('s_mul_i32 s26, s50, 1152'); e('s_add_u32 s3, s3, s26')
        e('s_mul_i32 s26, s52, 384'); e('s_add_u32 s3, s3, s26'); e('s_add_u32 s12, s12, s3'); e('s_addc_u32 s13, s13, 0'); srd(P, SOUT, 12, 13, 31*2304 + 384)
        e(f'v_xor_b32 v{FLA}, s48, v{FLA}'); e('s_lshl_b32 s3, s53, 2'); e(f'v_add_u32 v{FLA}, s3, v{FLA}'); e(f'v_lshlrev_b32 v{FLA}, 7, v{FLA}')
        e(f'v_add_u32 v{FLA}, {FLAG2}, v{FLA}')
    def reads(s):
        a, b = AF + 24*(s % 2), BF + 16*(s % 2)
        rb = [(lambda l=l: P.ds(f'ds_read_b128 {vr(b + 4*l, 4)}, v{AB} offset:{(s % NS)*OST + l*1024}', ('R', s))) for l in range(4)]
        ra = [(lambda k=k, hf=hf: P.ds(f'ds_read_b64_tr_b16 {vr(a + 4*k + 2*hf, 2)}, v{AA+k} offset:{(s % NS)*WST + hf*6144}', ('R', s)))
              for k in range(6) for hf in range(2)]
        return rb[:1] + ra[:6] + rb[1:2] + ra[6:] + rb[2:]
    for i, f in enumerate(reads(0)):
        if i == 12: e('s_waitcnt lgkmcnt(8)'); P.lg = P.lg[-8:]
        f()
    ids()
    def body():
        for s in range(NS):
            P.wait(lg='all')
            if s == 3: e('s_waitcnt vmcnt(0)')
            e('s_barrier')
            rs = reads(s + 1)
            for n in range(24):
                l, k = n // 6, n % 6
                mfma(P, ACC + (l*6 + k)*4, AF + 24*(s % 2) + 4*k, BF + 16*(s % 2) + 4*l)
                if n == 13: e('s_waitcnt lgkmcnt(8)'); P.lg = P.lg[-8:]
                if n < 16: rs[n]()
    P.lg = [('R', 0)] * 11
    P.loop(8, 's27', body, lambda t: (t[0], t[1] - NS))
    stamp(P, 6, not OPT['ts2'])
    P.wait(lg='all')
    def send(half, r):
        e(f's_xor_b32 s3, s48, {r}'); e('s_mul_i32 s3, s3, 73728'); e('s_mul_i32 s26, s5, 12288'); e('s_add_u32 s3, s3, s26')
        for t in range(12):
            if t % 4 == 0: e(f's_add_u32 s26, s3, {(r - 1)*24576 + t*1024}')
            P.vmem(f'buffer_store_dwordx4 {vr(ACC + (half*12 + t)*4, 4)}, v{L16}, s[{SP}:{SP+3}], s26 offen offset:{(t % 4)*1024} sc1', 'st', optional=True)
    def snd(first):
        if first: send(1, 1)
        else: send(0, 2); send(1, 3)
    P.variant(None, snd, pred=lambda w, it: (w & 2) == 0, cmp='s_cmp_eq_u32 s6, 0')
    e('s_waitcnt vmcnt(0)'); P.vm = []
    e('s_barrier')
    e('s_cmp_lg_u32 s6, 0'); e('s_cbranch_scc1 .Lk1_fin')
    e(f'global_load_dword v{FLV}, v{FLA}, s[14:15] sc1'); e('s_waitcnt vmcnt(0)')
    P.ool([f'v_cmp_ne_u32 vcc, v{TAG}, v{FLV}'], 's_cbranch_vccnz', poll_fn(P, FLV, FLA, 's[14:15]', TAG), lambda w, it: False)
    e('s_mul_i32 s3, s48, 73728'); e('s_mul_i32 s26, s5, 12288'); e('s_add_u32 s3, s3, s26')
    RB = lambda q, t: 48 + (q*12 + t)*4 if q*12 + t < 32 else 188 + (q*12 + t - 32)*4
    for t in range(12):
        for q in range(3):
            e(f's_add_u32 s26, s3, {q*24576 + (t // 4)*4096}')
            P.vmem(f'buffer_load_dwordx4 {vr(RB(q, t), 4)}, v{L16}, s[{SP}:{SP+3}], s26 offen offset:{(t % 4)*1024} sc1', ('p', t))
    for l in range(2):
        for kp in range(3):
            for k in (2*kp, 2*kp + 1):
                t = l*6 + k
                P.wait(vm=('p', t))
                for q in range(3):
                    for i in range(4): e(f'v_add_f32 v{ACC + 4*t + i}, v{ACC + 4*t + i}, v{RB(q, t) + i}')
            X, Y, D = ACC + (l*6 + 2*kp)*4, ACC + (l*6 + 2*kp + 1)*4, 208 + (l*3 + kp)*4
            e(f'v_cvt_pk_bf16_f32 v{D}, v{X}, v{X+1}'); e(f'v_cvt_pk_bf16_f32 v{D+1}, v{X+2}, v{X+3}')
            e(f'v_cvt_pk_bf16_f32 v{D+2}, v{Y}, v{Y+1}'); e(f'v_cvt_pk_bf16_f32 v{D+3}, v{Y+2}, v{Y+3}')
            for sw in ('32', '16'):
                e(f'v_permlane{sw}_swap_b32 v{D}, v{D+2}'); e(f'v_permlane{sw}_swap_b32 v{D+1}, v{D+3}')
            e(f's_mov_b32 s26, {l*16*2304}')
            P.vmem(f'buffer_store_dwordx4 {vr(D,4)}, v{VOUT}, s[{SOUT}:{SOUT+3}], s26 offen offset:{kp*64} {OPT["out_st"]}', 'st')

HDR = open('cdna_kernels/' + NAME + '.s.ref').read().split('; Override launch')[0]

def kd(name, vg, sg):
    return f""".p2align 6
.amdhsa_kernel {name}
  .amdhsa_next_free_vgpr {vg}
  .amdhsa_next_free_sgpr {sg}
  .amdhsa_accum_offset {(vg+3)//4*4}
  .amdhsa_group_segment_fixed_size 0
  .amdhsa_kernarg_size 104
  .amdhsa_user_sgpr_count 2
  .amdhsa_user_sgpr_kernarg_segment_ptr 1
  .amdhsa_system_sgpr_workgroup_id_x 1
.end_amdhsa_kernel
"""

def build():
    P = gen_k1()
    out = HDR
    out += f'; @launch grid=(256,1,1) block=(512,1,1) lds={K1_LDS}\n'
    out += '.amdgcn_target "amdgcn-amd-amdhsa--gfx950"\n.text\n'
    P.pad_hazards()
    if not OPT["abl"] and not OPT["abl2"] and not OPT["abl3"] and not OPT.get("cyc") and not OPT["trace"]: P.check_loads()
    sys.stderr.write(f'{dict(P.count(0))}\n')
    out += f'.globl {KNAME}\n.p2align 8\n.type {KNAME},@function\n{KNAME}:\n' + '\n'.join(P.emit()) + '\n'
    out += '.Lcode_end:\n'
    out += '.section .rodata,"a"\n' + kd(KNAME, 256, 102)
    return out

if __name__ == '__main__':
    dst = 'cdna_kernels/' + NAME + '.s'
    for a in sys.argv[1:]:
        if '=' in a:
            k, v = a.split('=', 1)
            if k == 'out': dst = v
            elif isinstance(OPT[k], bool): OPT[k] = (v == '1')
            elif isinstance(OPT[k], int): OPT[k] = int(v)
            else: OPT[k] = v.replace('+', ' ')
    open(dst, 'w').write(build())
```

```python
import sys, struct, math, re
from dsl import *

NAME = 'concat_heads__mha_block_cached__gqa_block_cached__near_ridge'
def fbits(x): return struct.unpack('<I', struct.pack('<f', x))[0]
CSC = math.log2(math.e) / math.sqrt(128.0)
BIG = 0x20000000

OPT = dict(kv_pol='nt', x_pol='', w_pol='', o_st='sc1', o_ld='sc1', wo_pol='', out_st='', ts=False, ts2=False, clk=False,
           qrot=True, k2a=1, k2b=0, cpf=True, abl='', abl2='', t0=22, lak=4, w2=True, cyc=False, krot=0, slp=3, nw=8, nw0=2, pa=27, dyn=False, nf=True, rtc=0, ea='15,16,16', wpos=31, trace=False, dbg=False, tlb=0, abl3='', wpf=True, spread=True, dla=4, ela=4, la=4, kvq='5,8,11,14', st='', sti=1, hprio=1, post4=3)

def mfma(P, d, a, b, first=False):
    c = '0' if first else vr(d, 4)
    P.e(f'v_mfma_f32_16x16x32_bf16 {vr(d,4)}, {vr(a,4)}, {vr(b,4)}, {c}')

def mfma32(P, d, a, b, first=False):
    c = '0' if first else vr(d, 16)
    P.e(f'v_mfma_f32_32x32x16_bf16 {vr(d,16)}, {vr(a,4)}, {vr(b,4)}, {c}')

def femit(P, dst, x, t1, t2):
    P.e(f'v_lshrrev_b32 v{t1}, 3, v{x}')
    P.e(f'v_lshrrev_b32 v{t2}, 2, v{x}')
    P.e(f'v_xor_b32 v{t2}, v{t2}, v{t1}')
    P.e(f'v_and_b32 v{t2}, 1, v{t2}')
    P.e(f'v_lshl_or_b32 v{t1}, v{t2}, 1, v{t1}')
    P.e(f'v_and_b32 v{dst}, 3, v{x}')
    P.e(f'v_lshl_or_b32 v{dst}, v{dst}, 2, v{t1}')

def srd(P, d, lo, hi, size):
    P.e(f's_mov_b32 s{d}, s{lo}')
    P.e(f's_and_b32 s{d+1}, s{hi}, 0xffff')
    P.e(f's_mov_b32 s{d+2}, {size}')
    P.e(f's_mov_b32 s{d+3}, 0x20000')

def stamp(P, idx, cond=True):
    if OPT['ts'] and cond:
        P.e(f's_memrealtime s[{60+2*idx}:{61+2*idx}]')
        if OPT['clk'] and idx in (3, 4): P.e(f's_memtime s[{70+2*idx}:{71+2*idx}]')
        if OPT['clk'] and idx in (1, 2): P.e(f's_memtime s[{74+2*idx}:{75+2*idx}]')
        if OPT['clk'] and idx == 2: P.e('s_waitcnt lgkmcnt(0)'); P.e('s_sub_u32 s80, s78, s76')
        P.e('s_waitcnt lgkmcnt(0)')
def stamp_it(P, idx, itv):
    if OPT['ts'] and OPT['ts2']:
        def f():
            P.e(f'{"s_memtime" if OPT["cyc"] else "s_memrealtime"} s[{60+2*idx}:{61+2*idx}]')
            if not OPT['cyc']: P.e('s_waitcnt lgkmcnt(0)')
        P.ool([f's_cmp_eq_u32 s27, {itv}'], 's_cbranch_scc1', f, lambda w, it: it == itv)
def stamps_out(P, off, wreg, wg_shift):
    e = P.e
    P.wait(vm='all')
    stamp(P, 7)
    if OPT['dbg']:
        def f():
            e('s_not_b32 s3, s60'); e('v_mov_b32 v2, s3'); e('v_mov_b32 v0, 0'); e('s_mov_b64 exec, 1')
            e('global_atomic_umax v0, v2, s[82:83] offset:4 sc1')
            for k in range(8):
                e(f'v_mov_b32 v{3+k}, s{60+2*k}'); e(f'global_atomic_umax v0, v{3+k}, s[82:83] offset:{8+4*k} sc1')
            for i, k in enumerate((1, 2, 4, 7)):
                e(f's_sub_u32 s3, 0, s{60+2*k}'); e(f'v_mov_b32 v{12+i}, s3'); e(f'global_atomic_umax v0, v{12+i}, s[82:83] offset:{40+4*i} sc1')
            e('s_mov_b64 exec, -1'); e('s_waitcnt vmcnt(0)')
        P.only(None, f, pred=lambda w, it: True, cmp=f's_cmp_eq_u32 {wreg}, 0')
        return
    if OPT['clk']:
        e('s_sub_u32 s72, s78, s76'); e('s_mov_b32 s73, 0'); e('s_mov_b32 s70, s80'); e('s_mov_b32 s71, 0')
    if False:
        e('s_sub_u32 s70, s12, s10'); e('s_mov_b32 s71, 0')
        if P.name == 'k1':
            e('s_sub_u32 s72, s16, s14'); e('s_mov_b32 s73, 0')
    e('s_load_dwordx2 s[24:25], s[0:1], 96'); e('s_waitcnt lgkmcnt(0)')
    e(f's_add_u32 s24, s24, {off}'); e('s_addc_u32 s25, s25, 0')
    e(f's_lshl_b32 s3, s2, {wg_shift}'); e(f's_lshl_b32 s26, {wreg}, 6'); e('s_add_u32 s3, s3, s26')
    e('v_mov_b32 v0, s3')
    for k in range(8):
        e(f'v_mov_b32 v2, s{60+2*k}'); e(f'v_mov_b32 v3, s{61+2*k}')
        e(f'global_store_dwordx2 v0, v[2:3], s[24:25] offset:{8*k}')
        e('s_waitcnt vmcnt(0)')

def code_prefetch(P, start, end, dst):
    e = P.e
    e('s_getpc_b64 s[56:57]')
    P.lab(f'.Lpc_{P.name}')
    e(f's_sub_u32 s56, s56, .Lpc_{P.name}-{start}'); e('s_subb_u32 s57, s57, 0')
    e('v_lshlrev_b32 v12, 7, v0')
    e(f's_mov_b32 s3, {end}-{start}-4')
    e(f'v_min_u32 v13, s3, v12')
    P.vmem(f'global_load_dword v{dst}, v13, s[56:57]', 'pf')

STG, XB = 25600, 9216
QB0, NQ = 0, 5
XCH = 131072
FLG = 161792
K1_LDS = 163840
SX, SW, SK, SV, SO = 28, 32, 36, 40, 44
FW, FRL, FRC, FT, FV, LANE = 186, 187, 188, 189, 190, 191

def sidx(s): return (s + 2) % NQ

class Flags:
    def __init__(s, P): s.P = P
    def post(s, val, off=0):
        s.P.e(f'v_mov_b32 v{FV}, {val}')
        s.P.ds(f'ds_write_b32 v{FW}, v{FV} offset:{off}', 'fw')
    def read(s, ad): s.P.ds(f'ds_read_b32 v{FT}, v{ad}', 'fr')
    def check(s, ad, val):
        P = s.P
        P.wait(lg='fr')
        def spin():
            sp = P.newlab('sp'); P.lab(sp)
            if OPT['slp']: P.e(f's_sleep {OPT["slp"]}')
            P.e(f'ds_read_b32 v{FT}, v{ad}'); P.e('s_waitcnt lgkmcnt(0)')
            P.e(f'v_cmp_gt_u32 vcc, {val}, v{FT}'); P.e('s_nop 0'); P.e(f's_cbranch_vccnz {sp}')
        P.ool([f'v_cmp_gt_u32 vcc, {val}, v{FT}'], 's_cbranch_vccnz', spin, lambda w, it: False)
    def need(s, ad, val): s.read(ad); s.check(ad, val)

KNAME = NAME + '_kernel'
FLAGOFF = 0x2000000
NONCE = FLG + 1024

def gen_k1():
    P = Prog('k1', 's4'); e = P.e
    F = Flags(P)
    e('s_cmp_ge_u32 s2, 256'); e('s_cbranch_scc1 .Lk1_end')
    e('s_load_dwordx8 s[8:15], s[0:1], 0')
    e('s_load_dwordx8 s[16:23], s[0:1], 40')
    e('s_load_dwordx2 s[24:25], s[0:1], 96')
    e('s_load_dwordx2 s[82:83], s[0:1], 88')
    if OPT['ts']:
        e('s_memrealtime s[60:61]')
        for k in range(62, 76): e(f's_mov_b32 s{k}, 0')
    if OPT['cpf']: code_prefetch(P, KNAME, '.Lcode_end', 87)
    e('v_lshrrev_b32 v14, 6, v0')
    e('v_readfirstlane_b32 s87, v14')
    e(f'v_and_b32 v{LANE}, 63, v0')
    e('s_and_b32 s4, s87, 3'); e('s_lshr_b32 s81, s87, 2')
    e('s_and_b32 s48, s2, 7'); e('s_lshr_b32 s49, s2, 3')
    e('s_lshr_b32 s50, s48, 2')
    e('s_and_b32 s51, s48, 3'); e('s_lshl_b32 s51, s51, 3')
    e('s_and_b32 s55, s49, 3'); e('s_lshl_b32 s55, s55, 1'); e('s_add_u32 s51, s51, s55')
    e('s_lshr_b32 s52, s49, 2')
    e(f's_mov_b32 s7, {fbits(CSC):#x}')
    e(f'v_and_b32 v2, 31, v0'); e('v_lshlrev_b32 v2, 2, v2'); e('v_lshl_add_u32 v2, v14, 7, v2'); e(f'v_add_u32 v{FW}, {FLG}, v2')
    e('v_and_b32 v2, 3, v0'); e('v_mul_u32_u24 v2, 132, v2'); e(f'v_add_u32 v{FRL}, {FLG + 1536}, v2')
    e('v_and_b32 v2, 7, v0'); e('v_mul_u32_u24 v2, 132, v2'); e(f'v_add_u32 v{FRC}, {FLG}, v2')
    e(f'v_mov_b32 v{FV}, 0')
    e(f'ds_write_b32 v{FW}, v{FV}'); e(f'ds_write_b32 v{FW}, v{FV} offset:1024')
    def role(m):
        (gen_main if m else gen_helper)(P, F)
        P.lg = []; P.vm = []
    P.variant(None, role, pred=lambda w, it: (w & 4) == 0, cmp='s_cmp_eq_u32 s81, 0')
    P.lab('.Lk1_fin')
    if OPT['ts']:
        e('s_waitcnt vmcnt(0) lgkmcnt(0)')
        stamps_out(P, 0x4000000, 's87', 9)
    P.lab('.Lk1_end')
    e('s_endpgm')
    return P

def o_srd(P):
    e = P.e
    e('s_mul_i32 s3, s50, 72'); e('s_mul_i32 s26, s52, 9'); e('s_add_u32 s3, s3, s26'); e('s_lshl_b32 s3, s3, 7')
    e('s_lshl_b32 s26, s51, 2'); e('s_add_u32 s3, s3, s26'); e('s_lshl_b32 s3, s3, 10')
    e('s_add_u32 s24, s24, s3'); e('s_addc_u32 s25, s25, 0'); srd(P, SO, 24, 25, (8 * 128 + 8) * 1024)

def qrot(P):
    e = P.e
    if OPT['qrot']:
        e('s_add_u32 s53, s55, s52'); e('s_and_b32 s53, s53, 7'); e('s_mul_i32 s53, s53, 9'); e('s_lshr_b32 s53, s53, 2')
    else: e('s_mov_b32 s53, 0')

def latest(P, tags):
    need = [t for t in tags if t in P.lg]
    if need: P.wait(lg=max(need, key=lambda t: len(P.lg) - 1 - P.lg[::-1].index(t)))

def ablate(items, ab):
    out = []
    for x in items:
        if isinstance(x, Ins):
            if 'mfma' in ab and x.kind == 'mfma': continue
            if 'valu' in ab and x.op in ('v_exp_f32', 'v_add_f32', 'v_cvt_pk_bf16_f32', 'v_max3_f32'): continue
            if 'exp' in ab and x.op in ('v_exp_f32', 'v_add_f32', 'v_cvt_pk_bf16_f32'): continue
            if 'pv' in ab and x.kind == 'mfma' and re.match(r'v\[(0|16|32|48):', x.ops[0]): continue
            if 'tr' in ab and 'tr_b16' in x.op: continue
            if 'ds' in ab and x.kind == 'dsr' and f'v{FT},' not in x.text: continue
            if 'dma' in ab and x.kind == 'dma' and ' nt ' in x.text: continue
            if 'st' in ab and x.kind == 'vstore' and 's[44:47]' in x.text: continue
            if 'qdma' in ab and x.kind == 'dma' and ' nt ' not in x.text: continue
        elif isinstance(x, Variant): x.A = ablate(x.A, ab); x.B = ablate(x.B, ab)
        elif isinstance(x, Loop): x.body = ablate(x.body, ab)
        out.append(x)
    return out

def gen_main(P, F):
    e = P.e
    O, S, FB, AK, AV, QA, QBr = 0, 64, 128, 160, 168, 192, 224
    VST, M_, L_, LC, R_, T1 = 152, 164, 166, 154, 156, 158
    AW, AX, BFm, AW2, VW, SAV = 160, 168, 170, 192, 202, 204
    t = 20
    e(f'v_and_b32 v{t}, 15, v{LANE}'); e(f'v_lshrrev_b32 v{t+1}, 4, v{LANE}')
    for u in range(2):
        e('s_lshl_b32 s3, s4, 3'); e(f's_add_u32 s3, s3, {4*u}'); e(f'v_add_u32 v{t+4}, s3, v{t+1}'); e(f'v_and_b32 v{t+5}, 15, v{t+4}')
        femit(P, t+6, t+5, t+7, t+8)
        e(f'v_xor_b32 v{t+6}, v{t+6}, v{t}'); e(f'v_lshlrev_b32 v{t+6}, 4, v{t+6}'); e(f'v_lshl_add_u32 v{VW+u}, v{t+4}, 13, v{t+6}')
    e('s_lshl_b32 s6, s4, 11')
    qrot(P); e('s_lshl_b32 s54, s53, 18')
    e('s_waitcnt lgkmcnt(0)')
    e('s_cmp_eq_u32 s50, 0'); e('s_cselect_b64 s[14:15], s[14:15], s[22:23]')
    e('s_lshl_b32 s3, s51, 8'); e('s_add_u32 s14, s14, s3'); e('s_addc_u32 s15, s15, 0')
    srd(P, SW, 14, 15, 575 * 8192 + 512)
    def wpiece(s, k):
        hd, u = k // 2, k % 2
        def pre(): e(f's_add_u32 m0, s6, {QB0 + sidx(s)*STG + XB + hd*8192 + u*1024 - hd*256}')
        def post():
            P.vmem(f'buffer_load_dwordx4 v{VW+u}, s[{SW}:{SW+3}], s54 offen offset:{hd*256} {OPT["w_pol"]} lds', ('q', s))
        return pre, post
    def wadv(): e('s_add_u32 s54, s54, 262144'); e(f's_cmp_eq_u32 s54, {18*262144}'); e('s_cselect_b32 s54, 0, s54')
    for s in range(2):
        for k in range(4): a_, b_ = wpiece(s, k); a_(); b_()
        wadv()
    e(f'v_lshrrev_b32 v{t+2}, 2, v{t}'); e(f'v_and_b32 v{t+3}, 3, v{t}')
    def traddr(dst, shift, base):
        e(f'v_lshl_add_u32 v{t+4}, v{t+1}, {shift}, v{t+2}'); e(f'v_and_b32 v{t+5}, 15, v{t+4}'); femit(P, t+6, t+5, t+7, t+8)
        e(f'v_lshrrev_b32 v{t+7}, 1, v{t+3}'); e(f'v_xor_b32 v{t+6}, v{t+6}, v{t+7}')
        e(f'v_lshlrev_b32 v{t+6}, 4, v{t+6}'); e(f'v_and_b32 v{t+7}, 1, v{t+3}'); e(f'v_lshl_or_b32 v{t+6}, v{t+7}, 3, v{t+6}')
        e(f'v_lshl_add_u32 v{t+6}, v{t+4}, 8, v{t+6}'); e(f'v_add_u32 v{dst}, {base}, v{t+6}')
    traddr(AW, 3, QB0 + XB)
    for d in range(1, 8): e(f'v_xor_b32 v{AW+d}, {d << 5}, v{AW}')
    e(f'v_sub_u32 v{t+6}, 4, v{t+2}'); e(f'v_and_b32 v{t+6}, 3, v{t+6}'); e(f'v_xor_b32 v{t+6}, v{t+6}, v{t+1}'); e(f'v_lshlrev_b32 v{t+6}, 4, v{t+6}')
    e(f'v_lshl_add_u32 v{t+6}, v{t}, 6, v{t+6}'); e(f's_add_u32 s3, s6, {QB0}'); e(f'v_add_u32 v{AX}, s3, v{t+6}')
    for k in range(9): e(f'v_add_u32 v{AW2+k}, {2*STG}, v{AW+k}')
    def qa(s): return (AW, sidx(s)*STG) if sidx(s) < 2 else (AW2, (sidx(s) - 2)*STG)
    traddr(SAV, 2, 32768)
    femit(P, t+6, t, t+7, t+8)
    e(f'v_xor_b32 v{t+6}, v{t+6}, v{t+1}'); e(f'v_lshlrev_b32 v{t+6}, 4, v{t+6}'); e(f'v_lshl_add_u32 v{FRC}, v{t}, 8, v{t+6}')
    o_srd(P)
    P.wait(vm=('q', 0))
    seq = [(s, hd, dt) for s in range(18) for hd in range(2) for dt in range(8)]
    NB, LA = 8, 5
    def rdA(i, hf):
        s, hd, dt = seq[i]; a, off = qa(s)
        P.ds(f'ds_read_b64_tr_b16 {vr(FB + 4*(i % NB) + 2*hf, 2)}, v{a + (dt ^ hf)} offset:{off + hd*8192 + 1024*hf}', ('A', i))
    def rdB(s, j):
        a, off = qa(s)
        P.ds(f'ds_read_b128 {vr(BFm + 8*(s % 2) + 4*j, 4)}, v{a + 8} offset:{off + 1024*j}', ('B', s, j))
    e('s_barrier')
    stamp(P, 1, not OPT['ts2'])
    rdB(0, 0); rdB(0, 1)
    for i in range(LA): rdA(i, 0); rdA(i, 1)
    for k in range(4): a_, b_ = wpiece(2, k); a_(); b_()
    wadv()
    i0 = len(P.cur)
    for i, (s, hd, dt) in enumerate(seq):
        k = i % 16
        WP = {1: 0, 3: 1, 5: 2, 7: 3}
        if k in WP and s + 3 < 18: wpiece(s + 3, WP[k])[0]()
        latest(P, [('A', i), ('B', s, 0), ('B', s, 1)])
        mfma(P, hd*64 + dt*8, FB + 4*(i % NB), BFm + 8*(s % 2), s == 0)
        if k in WP and s + 3 < 18: wpiece(s + 3, WP[k])[1]()
        if k == 8 and s + 3 < 18: wadv()
        if s < 17 and k == 16 - LA - 1:
            P.wait(vm=('q', s + 1)); e('s_barrier')
        if i + LA < len(seq): rdA(i + LA, 0)
        mfma(P, hd*64 + dt*8 + 4, FB + 4*(i % NB), BFm + 8*(s % 2) + 4, s == 0)
        if i + LA < len(seq): rdA(i + LA, 1)
        if s < 17:
            if k == 11: rdB(s + 1, 0)
            if k == 12: rdB(s + 1, 1)
        if i == len(seq) - 1: e('s_barrier')
    if OPT['abl']: P.cur[i0:] = ablate(P.cur[i0:], OPT['abl'].split())
    stamp(P, 2, not OPT['ts2'])
    P.wait(vm='all')
    e(f'v_mov_b32 v{AK}, v{FRC}')
    for u in range(1, 4): e(f'v_xor_b32 v{AK+u}, {u << 6}, v{AK}')
    e(f'v_mov_b32 v{AV}, v{SAV}')
    for d in range(1, 8): e(f'v_xor_b32 v{AV+d}, {d << 5}, v{AV}')
    e(f'v_lshlrev_b32 v{VST}, 4, v{LANE}')
    NB = 6
    PX = 176
    order = [('S', 0), ('S', 1), ('P', 2), ('S', 2), ('S', 3), ('P', 3), ('P', 0), ('P', 1)]
    pbase = lambda b, j: PX + 4*j if b == 3 else S + 16*b + 8*j
    mf, reads = [], []
    for kind, b in order:
        for k in range(8):
            if kind == 'S':
                tt, u = k // 4, k % 4
                reads.append((('K', b, k), 1, AK + u, b*8192 + tt*4096))
                mf.append([(S + 16*b + 8*j + 4*tt, QA + 16*j + 4*u, u == 0) for j in range(2)])
            else:
                reads.append((('V', b, k), 2, AV + k, b*8192))
                mf.append([(O + 32*j + 4*k, pbase(b, j), False) for j in range(2)])
    prev = lambda m: order[m // 8] in (('P', 2), ('P', 3))
    CHK, LA = 48, OPT['lak']
    def rd(i, it=0):
        tag, n, ad, off = reads[i]; b = FB + 4*(i % NB)
        if n == 1: P.ds(f'ds_read_b128 {vr(b,4)}, v{ad} offset:{off}', (it,) + tag)
        else:
            P.ds(f'ds_read_b64_tr_b16 {vr(b,2)}, v{ad} offset:{off}', (it,) + tag)
            P.ds(f'ds_read_b64_tr_b16 {vr(b+2,2)}, v{ad} offset:{off + 4096}', (it,) + tag)
    groups = [(b, j) for b in range(4) for j in range(2)]
    gb = {g: S + 16*g[0] + 8*g[1] for g in groups}
    sdone = {0: 7, 1: 15, 2: 31, 3: 39}
    dline = {0: 48, 1: 56, 2: 80, 3: 96}
    def valu_plan():
        T0 = OPT['t0']
        at = {m: [] for m in range(128)}
        for b in range(4):
            for k in range(8): at[min(sdone[b] + 1 + k, CHK - 1)].append(((b, k // 4), 'max', k % 4))
        for i, g in enumerate(groups):
            for k in range(8):
                m = T0 + 8*i + k
                at[m].insert(0, (g, 'exp', k))
                at[m + 1].append((g, 'add', k))
                if k % 2 == 1: at[m + 1].append((g, 'cvt', k // 2))
            assert T0 + 8*i + 8 < dline[g[0]] and T0 + 8*i > min(sdone[g[0]] + 1 + 4*g[1] + 3, CHK - 1)
        post = {m: [(1,) + o for o in at[m + 64]] + [(0,) + o for o in at[m]] for m in range(64)}
        for m in post: post[m].sort(key=lambda o: o[2] != 'exp')
        return post
    vpost = valu_plan()
    lc0 = [next(o for m in range(CHK) for o in vpost[m] if o[0] == 0 and o[2] == 'add' and o[1][1] == j) for j in range(2)]
    def vop(o, m, slow=False):
        lag, g, k_, k = o; r = gb[g]; j = g[1]
        if k_ == 'max': e(f'v_max3_f32 v{M_+j}, v{M_+j}, v{r+2*k}, v{r+2*k+1}')
        elif k_ == 'exp': e(f'v_exp_f32 v{r+k}, v{r+k}')
        elif k_ == 'cvt': e(f'v_cvt_pk_bf16_f32 v{pbase(*g)+k}, v{r+2*k}, v{r+2*k+1}')
        elif lag == 0 and m < CHK and not slow:
            e(f'v_mov_b32 v{LC+j}, v{r+k}' if o == lc0[j] else f'v_add_f32 v{LC+j}, v{LC+j}, v{r+k}')
        else: e(f'v_add_f32 v{L_+j}, v{L_+j}, v{r+k}')
    CK = {16 - LA - 1: 's90', 24 - LA - 1: 's91', 48 - LA - 1: 's92', 64 - LA - 1: 's93'}
    POST = {47: 's94', 49: 's95', 63: 's96'}
    def ostore(D, k): P.vmem(f'buffer_store_dwordx4 {vr(D + 4*k,4)}, v{VST}, s[{SO}:{SO+3}], s{88 if k < 4 else 99} offen offset:{(k % 4)*1024} {OPT["o_st"]}', 'st', optional=True)
    def slots(lo, hi, mode, events=True, zero=False):
        STS = {x: i + 1 for i, x in enumerate(OPT['st'].split(','))} if mode == 'fast' else {}
        skip = lambda m: (mode in ('first', 'redo') and prev(m)) or (mode == 'tail' and not prev(m))
        keep = lambda o: mode == 'fast' or (mode == 'first' and o[0] == 0) or (mode == 'tail' and o[0] == 1)
        for m in range(lo, hi):
            ops = [o for o in vpost[m] if keep(o)]
            if not skip(m):
                w2 = m + 1 if (OPT['w2'] and m % 2 == 0 and (0,) + reads[m + 1][0] in P.lg) else m
                P.wait(lg=(0,) + reads[w2][0])
                mfma(P, mf[m][0][0], FB + 4*(m % NB), mf[m][0][1], mf[m][0][2] or zero)
            if ops: vop(ops.pop(0), m)
            if not skip(m): mfma(P, mf[m][1][0], FB + 4*(m % NB), mf[m][1][1], mf[m][1][2] or zero)
            if f'{m}' in STS: stamp_it(P, STS[f'{m}'], OPT['sti'])
            if events:
                if m + 2 in CK and not (mode == 'first' and CK[m + 2] == 's90'): F.read(FRL)
                if m in CK and not (mode == 'first' and CK[m] == 's90'): F.check(FRL, CK[m])
                if m == 45 and mode == 'fast': P.ool(['s_cmp_eq_u32 s27, 6'], 's_cbranch_scc1', lambda: e('s_waitcnt vmcnt(0)'), lambda w, it: it == 6)
                if m in POST: F.post(POST[m])
            i = m + LA
            if i >= 64:
                if events: rd(i - 64, 1)
            elif not skip(i) and not (mode in ('redo', 'tail') and i >= CHK): rd(i)
            for o in ops: vop(o, m)
            if events and m % 16 == 6 and mode != 'first':
                P.ool(['s_cmp_eq_u32 s27, 5'], 's_cbranch_scc1', lambda: (ostore(QBr, m // 16 * 2), ostore(QBr, m // 16 * 2 + 1)), lambda w, it: it == 5)
            if events and 50 <= m < 54: e(f'v_xor_b32 v{AK + m - 50}, 0x10000, v{AK + m - 50}')
            if events and m == 47 - LA and mode != 'first':
                for k in range(8): e(f'v_xor_b32 v{AV + k}, 0x10000, v{AV + k}')
    F.need(FRL, 19)
    for i in range(LA):
        if i == LA - 1: F.post(18)
        rd(i)
    for hd in range(2):
        for k in range(0, 64, 2): e(f'v_pk_mul_f32 {vr(hd*64+k,2)}, {vr(hd*64+k,2)}, s[6:7] op_sel:[0,1]')
        qs = []
        for j in range(2):
            for u in range(4):
                q, X, Y = (QA, QBr)[hd] + 16*j + 4*u, hd*64 + 16*u + 4*j, hd*64 + 16*u + 8 + 4*j
                e(f'v_cvt_pk_bf16_f32 v{q}, v{X}, v{X+1}'); e(f'v_cvt_pk_bf16_f32 v{q+1}, v{X+2}, v{X+3}')
                e(f'v_cvt_pk_bf16_f32 v{q+2}, v{Y}, v{Y+1}'); e(f'v_cvt_pk_bf16_f32 v{q+3}, v{Y+2}, v{Y+3}')
                qs.append(q)
        for sw in ('32', '16'):
            for q in qs: e(f'v_permlane{sw}_swap_b32 v{q}, v{q+2}'); e(f'v_permlane{sw}_swap_b32 v{q+1}, v{q+3}')
    def reset():
        for j in range(2): e(f'v_mov_b32 v{L_+j}, 0'); e(f'v_mov_b32 v{R_+j}, 0')
        e(f's_mov_b32 s7, {fbits(64.0):#x}')
    def mreset():
        for j in range(2): e(f'v_mov_b32 v{M_+j}, {fbits(-1e30):#x}')
    reset(); mreset()
    e(f's_mov_b32 s89, {fbits(64.0):#x}'); e('s_mov_b32 s90, 19'); e('s_mov_b32 s94, 19'); e('s_mov_b32 s97, 0xee')
    e('s_lshl_b32 s88, s4, 18'); e('s_add_u32 s99, s88, 131072')
    stamp(P, 3, not OPT['ts2'])
    def xlane(R, op):
        for sw in ('32', '16'):
            for j in range(2): e(f'v_mov_b32 v{T1+j}, v{R+j}')
            for j in range(2): e(f'v_permlane{sw}_swap_b32 v{R+j}, v{T1+j}')
            for j in range(2): e(f'{op} v{R+j}, v{R+j}, v{T1+j}')
    def finish(D, store):
        xlane(L_, 'v_add_f32')
        for j in range(2): e(f'v_rcp_f32 v{L_+j}, v{L_+j}')
        for j in range(2):
            for u in range(4):
                a = O + 32*j + 8*u
                for k in range(0, 8, 2): e(f'v_pk_mul_f32 {vr(a+k,2)}, {vr(a+k,2)}, {vr(L_,2)} ' + ('op_sel:[0,1]' if j else 'op_sel_hi:[1,0]'))
                for k in range(4): e(f'v_cvt_pk_bf16_f32 v{D + 16*j + 4*u + k}, v{a+2*k}, v{a+2*k+1}')
                if store: ostore(D, 4*j + u)
    def body():
        for k in range(1, 4): e(f's_add_u32 s{90+k}, s90, {k}')
        for k in range(1, 3): e(f's_add_u32 s{94+k}, s94, {k}')
        if OPT['st'] == 'I':
            for k in range(1, 7): stamp_it(P, k, k + OPT['sti'])
        def switch():
            for k in range(32): e(f'v_mov_b32 v{QA+k}, v{QBr+k}')
            mreset()
        P.ool(['s_cmp_eq_u32 s27, 4'], 's_cbranch_scc1', switch, lambda w, it: it == 4)
        P.ool(['s_cmp_eq_u32 s27, 0'], 's_cbranch_scc1', lambda: slots(0, CHK, 'first'), lambda w, it: it == 0, lambda: slots(0, CHK, 'fast'))
        def fin_a():
            finish(QBr, False); reset()
        P.ool(['s_cmp_eq_u32 s27, 4'], 's_cbranch_scc1', fin_a, lambda w, it: it == 4)
        e(f'v_max_f32 v{T1}, abs(v{M_}), abs(v{M_+1})')
        e(f'v_cmp_lt_f32 vcc, s7, v{T1}')
        def pv(mode):
            P.ool(['s_bitcmp0_b32 s97, s27'], 's_cbranch_scc1', lambda: slots(CHK, CHK + 8, mode, zero=True), lambda w, it: it % 4 == 0,
                  lambda: slots(CHK, CHK + 8, mode))
            slots(CHK + 8, 64, mode)
        def rest(fast):
            if fast:
                for j in range(2): e(f'v_add_f32 v{L_+j}, v{L_+j}, v{LC+j}')
                pv('fast'); return
            P.wait(lg='all')
            for i in range(LA): rd(i)
            slots(0, CHK, 'redo', events=False)
            xlane(M_, 'v_max_f32')
            for j in range(2):
                e(f'v_sub_f32 v{T1+j}, v{R_+j}, v{M_+j}'); e(f'v_min_f32 v{T1+j}, s89, v{T1+j}'); e(f'v_exp_f32 v{T1+j}, v{T1+j}')
                e(f'v_mov_b32 v{R_+j}, v{M_+j}')
            e('s_mov_b32 s7, -1.0')
            for j in range(2): e(f'v_mul_f32 v{L_+j}, v{L_+j}, v{T1+j}')
            for g in groups:
                for k in range(8): e(f'v_sub_f32 v{gb[g]+k}, v{gb[g]+k}, v{M_+g[1]}')
            for k in range(64): e(f'v_mul_f32 v{O+k}, v{O+k}, v{T1 + k // 32}')
            for m in range(64):
                for o in vpost[m]:
                    if o[0] == 0 and o[2] != 'max': vop(o, m, slow=True)
            for i in range(CHK, CHK + LA): rd(i)
            pv('slow')
        P.ool([], 's_cbranch_vccnz', lambda: rest(False), lambda w, it: (w >> 3) % 2 == 1, lambda: rest(True))
        e('s_add_u32 s90, s90, 4'); e('s_add_u32 s94, s94, 3')
    i0 = len(P.cur)
    P.vm = []
    P.loop(8, 's27', body, lambda t: (t[0] - 1,) + tuple(t[1:]) if isinstance(t, tuple) else t)
    P.wait(lg='all')
    slots(0, CHK, 'tail', events=False)
    e('s_add_u32 s88, s88, 4096'); e('s_add_u32 s99, s99, 4096')
    finish(S, True)
    if OPT['abl2']: P.cur[i0:] = ablate(P.cur[i0:], OPT['abl2'].split())
    stamp(P, 4, not OPT['ts2'])
    gen_oproj(P)

def gen_helper(P, F):
    e = P.e
    kvp, xp, wp = OPT['kv_pol'], OPT['x_pol'], OPT['w_pol']
    O8, Q8, S8, FB, QA8 = 0, 32, 64, 72, 136
    VKV, VW, VX, AK8, AV8, AW8, AX8, L16, FRH = 152, 156, 158, 161, 165, 173, 175, 176, 177
    R_, L_, T, M_, FA, TK = 178, 179, 180, 156, 157, 240
    i00 = len(P.cur)
    if OPT['hprio']: e(f's_setprio {OPT["hprio"]}')
    e(f'v_and_b32 v3, 15, v{LANE}'); e(f'v_lshrrev_b32 v4, 4, v{LANE}'); e('v_lshrrev_b32 v5, 2, v3'); e('v_and_b32 v6, 3, v3')
    e(f'v_lshrrev_b32 v7, 2, v{LANE}'); e('v_lshrrev_b32 v8, 2, v7'); e('v_sub_u32 v8, 4, v8'); e('v_and_b32 v8, 3, v8')
    e('v_xor_b32 v8, v8, v6'); e('v_lshlrev_b32 v8, 4, v8')
    e('v_mul_u32_u24 v9, 1152, v7'); e('v_add_u32 v9, v9, v8'); e(f'v_add_u32 v{VX+2}, {128*1152}, v9')
    e('s_mul_i32 s3, s4, 18432'); e(f'v_add_u32 v{VX}, s3, v9'); e(f'v_add_u32 v{VX+1}, 73728, v{VX}')
    e('s_lshl_b32 s5, s4, 10'); e('s_lshl_b32 s6, s4, 11'); e('s_lshl_b32 s59, s4, 12')
    e('s_waitcnt lgkmcnt(0)')
    e('s_cmp_eq_u32 s50, 0')
    for k in range(4): e(f's_cselect_b64 s[{8+2*k}:{9+2*k}], s[{8+2*k}:{9+2*k}], s[{16+2*k}:{17+2*k}]')
    e('s_mul_i32 s3, s52, 165888'); e('s_add_u32 s8, s8, s3'); e('s_addc_u32 s9, s9, 0')
    srd(P, SX, 8, 9, 165888)
    qrot(P); e('s_lshl_b32 s53, s53, 6')
    def qstage(s):
        st, tag = QB0 + sidx(s)*STG, ('q', s)
        for u in range(2):
            e(f's_add_u32 m0, s5, {st + u*4096}')
            P.vmem(f'buffer_load_dwordx4 v{VX+u}, s[{SX}:{SX+3}], s53 offen {xp} lds', tag)
        def x8():
            e(f's_mov_b32 m0, {st + 8192}')
            P.vmem(f'buffer_load_dwordx4 v{VX+2}, s[{SX}:{SX+3}], s53 offen {xp} lds', tag, optional=True)
        P.only(s % 4, x8)
        e('s_add_u32 s53, s53, 64'); e('s_cmp_eq_u32 s53, 1152'); e('s_cselect_b32 s53, 0, s53')
    qstage(0); qstage(1)
    def tag():
        e('s_memrealtime s[84:85]'); e('s_waitcnt lgkmcnt(0)'); e('s_or_b32 s84, s84, 1')
        e('v_mov_b32 v7, 0'); e('v_mov_b32 v8, s84')
        e('s_mov_b64 exec, 1')
        P.vmem('global_store_dword v7, v8, s[82:83] sc1', 'tag', optional=True)
        e('s_mov_b64 exec, -1')
    e('s_lshl_b32 s3, s2, 3'); e('s_add_u32 s3, s3, s87')
    P.ool(['s_cmp_eq_u32 s3, 4'], 's_cbranch_scc1', tag, lambda w, it: w == 4)
    if OPT['krot'] == 1: e('s_lshr_b32 s58, s2, 3')
    elif OPT['krot'] == 2: e('s_mov_b32 s58, s2')
    elif OPT['krot'] == 3:
        e('s_lshr_b32 s58, s2, 3'); e('s_add_u32 s58, s58, s2'); e('s_lshr_b32 s3, s2, 6'); e('s_add_u32 s58, s58, s3')
    else: e('s_mov_b32 s58, 0')
    e('s_and_b32 s58, s58, 7'); e('s_lshl_b32 s58, s58, 14')
    e('s_lshl_b32 s3, s52, 5'); e('s_add_u32 s3, s3, s51'); e('s_lshl_b32 s3, s3, 17')
    e('s_add_u32 s10, s10, s3'); e('s_addc_u32 s11, s11, 0'); srd(P, SK, 10, 11, 262144)
    e('s_add_u32 s12, s12, s3'); e('s_addc_u32 s13, s13, 0'); srd(P, SV, 12, 13, 262144)
    o_srd(P)
    if OPT['tlb']:
        e(f'v_and_b32 v7, 7, v{LANE}'); e('v_lshlrev_b32 v7, 15, v7')
        def tk():
            P.vmem(f'buffer_load_dword v252, v7, s[{SK}:{SK+3}], 0 offen nt', 'tl', optional=True)
            P.vmem(f'buffer_load_dword v253, v7, s[{SV}:{SV+3}], 0 offen nt', 'tl', optional=True)
            e(f'v_min_u32 v8, 8, v{LANE}'); e('v_lshlrev_b32 v8, 17, v8')
            P.vmem(f'buffer_store_dword v8, v8, s[{SO}:{SO+3}], 0 offen sc1', 'tl', optional=True)
        P.only(1, tk)
    for t in range(4):
        e(f'v_add_u32 v7, {4*t}, v4'); femit(P, 8, 7, 9, 10)
        e('v_xor_b32 v8, v8, v3'); e('v_lshlrev_b32 v8, 4, v8'); e('v_lshl_add_u32 v8, v4, 8, v8'); e(f'v_add_u32 v{VKV+t}, s59, v8')
    femit(P, 8, 3, 9, 10)
    e('v_xor_b32 v8, v8, v4'); e('v_lshlrev_b32 v8, 4, v8'); e('v_lshl_add_u32 v8, v3, 8, v8'); e(f'v_add_u32 v{AK8}, s59, v8')
    for u in range(1, 4): e(f'v_xor_b32 v{AK8+u}, {u << 6}, v{AK8}')
    def traddr16(dst, shift, base_s, base):
        e(f'v_lshl_add_u32 v7, v4, {shift}, v5'); e('v_and_b32 v11, 15, v7'); femit(P, 8, 11, 9, 10)
        e('v_lshrrev_b32 v9, 1, v6'); e('v_xor_b32 v8, v8, v9'); e('s_lshl_b32 s3, s4, 2'); e('v_xor_b32 v8, s3, v8')
        e('v_lshlrev_b32 v8, 4, v8'); e('v_and_b32 v9, 1, v6'); e('v_lshl_or_b32 v8, v9, 3, v8'); e('v_lshl_add_u32 v8, v7, 8, v8')
        if base_s: e(f'v_add_u32 v8, {base_s}, v8')
        e(f'v_add_u32 v{dst}, {base}, v8')
    traddr16(AV8, 2, 's59', 32768)
    for d in range(1, 8): e(f'v_xor_b32 v{AV8+d}, {d << 5}, v{AV8}')
    traddr16(AW8, 3, None, QB0 + XB); e(f'v_xor_b32 v{AW8+1}, 32, v{AW8}')
    e('v_sub_u32 v8, 4, v5'); e('v_and_b32 v8, 3, v8'); e('v_xor_b32 v8, v8, v4'); e('v_lshlrev_b32 v8, 4, v8')
    e('v_lshl_add_u32 v8, v3, 6, v8'); e(f'v_add_u32 v{AX8}, {QB0 + 8192}, v8')
    e(f'v_lshlrev_b32 v{L16}, 4, v{LANE}')
    AW8b = 183
    for k in range(3): e(f'v_add_u32 v{AW8b+k}, {2*STG}, v{AW8+k}')
    e(f'v_add_u32 v{FRH}, {FLG + 512 - (FLG + 1536)}, v{FRL}')
    def item(n):
        S = SK if n % 4 < 2 else SV
        e(f's_add_u32 m0, s59, {(n % 8)*16384}')
        e(f's_xor_b32 s26, s58, {(n // 4)*32768 + (n % 2)*16384}')
        for t in range(4):
            if 'kv8' in OPT['abl2'] and n >= 8: continue
            P.vmem(f'buffer_load_dwordx4 v{VKV+t}, s[{S}:{S+3}], s26 offen offset:{t*1024} {kvp} lds', ('kv', n))
    SEQ = [0, 1, 2] + [x for c in range(1, 8) for x in (4*c, 4*c - 1, 4*c + 1, 4*c + 2)] + [31]
    def cneed(n):
        c, k = (n - 8) // 4, n % 4
        return 19 + 3*c + (1, 1, 2, 3)[k]
    EA = [int(x) for x in OPT['ea'].split(',')]
    P.wait(vm=('q', 0)); e('s_barrier')
    stamp(P, 1, not OPT['ts2'])
    qstage(2)
    for s in range(18):
        a, off = (AW8, sidx(s)*STG) if sidx(s) < 2 else (AW8b, (sidx(s) - 2)*STG)
        P.ds(f'ds_read_b128 {vr(FB,4)}, v{a+2} offset:{off}', 'b')
        for hd in range(2):
            for dd in range(2):
                b = FB + 4 + 8*hd + 4*dd if hd == 0 else S8 + 4*dd
                P.ds(f'ds_read_b64_tr_b16 {vr(b,2)}, v{a+dd} offset:{off + hd*8192}', ('a', hd, dd))
                P.ds(f'ds_read_b64_tr_b16 {vr(b+2,2)}, v{a+(dd^1)} offset:{off + hd*8192 + 1024}', ('a', hd, dd))
        if s + 3 < 18: qstage(s + 3)
        for i, x in enumerate(EA):
            if x == s: item(i)
        for hd in range(2):
            for dd in range(2):
                P.wait(lg=('a', hd, dd)); mfma(P, QA8 + 8*hd + 4*dd, FB + 4 + 8*hd + 4*dd if hd == 0 else S8 + 4*dd, FB, s == 0)
        if s < 17: P.wait(vm=('q', s + 1))
        e('s_barrier')
    stamp(P, 2, not OPT['ts2'])
    for i, x in enumerate(EA):
        if x == 18: item(i)
    item(SEQ[3])
    P.wait(vm=('kv', 0)); F.post(19, 1024); item(SEQ[4])
    for k in range(16): e(f'v_mul_f32 v{QA8+k}, s7, v{QA8+k}')
    e(f's_add_u32 s3, s5, {XCH}'); e(f'v_add_u32 v{T}, s3, v{L16}')
    for hd in range(2):
        d, X, Y = FB + 4*hd, QA8 + 8*hd, QA8 + 8*hd + 4
        e(f'v_cvt_pk_bf16_f32 v{d}, v{X}, v{X+1}'); e(f'v_cvt_pk_bf16_f32 v{d+1}, v{X+2}, v{X+3}')
        e(f'v_cvt_pk_bf16_f32 v{d+2}, v{Y}, v{Y+1}'); e(f'v_cvt_pk_bf16_f32 v{d+3}, v{Y+2}, v{Y+3}')
        for sw in ('32', '16'):
            e(f'v_permlane{sw}_swap_b32 v{d}, v{d+2}'); e(f'v_permlane{sw}_swap_b32 v{d+1}, v{d+3}')
        P.ds(f'ds_write_b128 v{T}, {vr(d,4)} offset:{hd*4096}', 'xw')
    e(f's_mov_b32 s89, {fbits(64.0):#x}')
    hep = [1000]
    def hsync():
        P.wait(lg='all'); hep[0] += 1
        F.post(hep[0]); F.need(FRH, hep[0])
    hsync()
    e(f'v_add_u32 v{T}, {XCH}, v{L16}')
    for k in range(8): P.ds(f'ds_read_b128 {vr(Q8+4*k,4)}, v{T} offset:{k*1024}', 'q8')
    P.wait(lg='all')
    stamp(P, 3, not OPT['ts2'])
    e('s_mov_b32 s98, 19')
    def postL(v):
        e(f's_max_u32 s98, s98, {v}'); F.post('s98', 1024)
    def touch():
        e('s_getpc_b64 s[56:57]'); lb = P.newlab('pc'); P.lab(lb)
        e(f's_sub_u32 s56, s56, {lb}-{KNAME}'); e('s_subb_u32 s57, s57, 0')
        e(f'v_lshlrev_b32 v242, 7, v{LANE}'); e('s_lshl_b32 s3, s4, 14'); e('v_add_u32 v242, s3, v242')
        e(f's_mov_b32 s3, .Lcode_end-{KNAME}-4')
        for k in range(2):
            e(f'v_min_u32 v243, s3, v242'); P.vmem(f'global_load_dword v{244+k}, v243, s[56:57]', 'ct', optional=True)
            e('v_add_u32 v242, 8192, v242')
    def need_free(val, lv, nxt):
        F.read(FRC); P.wait(lg='fr')
        def slow():
            done = P.newlab('nf')
            vm0 = list(P.vm)
            for i, tg in enumerate(nxt):
                if not any(t[0] == tg for t in P.vm): break
                P.wait(vm=tg); e(f's_add_u32 s3, {lv}, {i + 1}'); postL('s3')
                e(f'ds_read_b32 v{FT}, v{FRC}'); e('s_waitcnt lgkmcnt(0)')
                e(f'v_cmp_gt_u32 vcc, {val}, v{FT}'); e(f's_cbranch_vccz {done}')
            sp = P.newlab('sp'); P.lab(sp)
            e(f's_sleep {OPT["slp"]}'); e(f'ds_read_b32 v{FT}, v{FRC}'); e('s_waitcnt lgkmcnt(0)')
            e(f'v_cmp_gt_u32 vcc, {val}, v{FT}'); e(f's_cbranch_vccnz {sp}')
            P.lab(done)
            P.vm = vm0
        P.ool([f'v_cmp_gt_u32 vcc, {val}, v{FT}'], 's_cbranch_vccnz', slow, lambda w, it: False)
    def scores():
        for tt in range(2):
            for u in range(4): P.ds(f'ds_read_b128 {vr(FB + 16*tt + 4*u, 4)}, v{AK8+u} offset:{tt*16384}', ('k', tt, u))
        for tt in range(2):
            for u in range(4):
                P.wait(lg=('k', tt, u)); mfma(P, S8 + 4*tt, FB + 16*tt + 4*u, Q8 + 4*u, u == 0)
        for u in range(4): e(f'v_xor_b32 v{AK8+u}, 0x10000, v{AK8+u}')
        for k in range(4): e(f'v_max3_f32 v{M_}, v{M_}, v{S8+2*k}, v{S8+2*k+1}')
        e(f'v_cmp_lt_f32 vcc, s7, abs(v{M_})')
        def shift():
            for sw in ('32', '16'):
                e(f'v_mov_b32 v{T}, v{M_}'); e(f'v_permlane{sw}_swap_b32 v{M_}, v{T}'); e(f'v_max_f32 v{M_}, v{M_}, v{T}')
            e(f'v_sub_f32 v{T}, v{R_}, v{M_}'); e(f'v_min_f32 v{T}, s89, v{T}'); e(f'v_exp_f32 v{T}, v{T}')
            e(f'v_mov_b32 v{R_}, v{M_}'); e('s_mov_b32 s7, -1.0')
            for k in range(8): e(f'v_sub_f32 v{S8+k}, v{S8+k}, v{M_}')
            e(f'v_mul_f32 v{L_}, v{L_}, v{T}')
            for k in range(32): e(f'v_mul_f32 v{O8+k}, v{O8+k}, v{T}')
        P.ool([], 's_cbranch_vccnz', shift, lambda w, it: (w >> 3) % 2 == 1)
        for k in range(8): e(f'v_exp_f32 v{S8+k}, v{S8+k}')
        for k in range(8): e(f'v_add_f32 v{L_}, v{L_}, v{S8+k}')
        for k in range(4): e(f'v_cvt_pk_bf16_f32 v{S8+k}, v{S8+2*k}, v{S8+2*k+1}')
    def pv8():
        def rv(d):
            P.ds(f'ds_read_b64_tr_b16 {vr(FB + 4*d, 2)}, v{AV8+d}', ('v', d))
            P.ds(f'ds_read_b64_tr_b16 {vr(FB + 4*d + 2, 2)}, v{AV8+d} offset:16384', ('v', d))
        for d in range(6): rv(d)
        for d in range(8):
            P.wait(lg=('v', d)); mfma(P, O8 + 4*d, FB + 4*d, S8)
            if d < 2: rv(6 + d)
        for d in range(8): e(f'v_xor_b32 v{AV8+d}, 0x10000, v{AV8+d}')
    def hreset():
        for k in range(32): e(f'v_mov_b32 v{O8+k}, 0')
        e(f'v_mov_b32 v{M_}, {fbits(-1e30):#x}'); e(f'v_mov_b32 v{L_}, 0'); e(f'v_mov_b32 v{R_}, 0'); e(f's_mov_b32 s7, {fbits(64.0):#x}')
    def combine(head):
        for sw in ('32', '16'):
            e(f'v_mov_b32 v{T}, v{L_}'); e(f'v_permlane{sw}_swap_b32 v{L_}, v{T}'); e(f'v_add_f32 v{L_}, v{L_}, v{T}')
        for q in range(1, 4):
            e(f's_xor_b32 s3, s4, {q}'); e('s_mul_i32 s3, s3, 6144'); e(f's_add_u32 s3, s3, {XCH + (q-1)*2048}')
            e(f'v_add_u32 v{T}, s3, v{L16}')
            for k in range(2): P.ds(f'ds_write_b128 v{T}, {vr(O8 + 8*q + 4*k, 4)} offset:{k*1024}', 'cw')
        e(f'v_lshrrev_b32 v{T+1}, 1, v{L16}'); e('s_lshl_b32 s3, s4, 9'); e(f's_add_u32 s3, s3, {XCH + 24576}')
        e(f'v_add_u32 v{T+1}, s3, v{T+1}')
        P.ds(f'ds_write_b64 v{T+1}, {vr(R_,2)}', 'cw')
        hsync()
        e('s_mul_i32 s3, s4, 6144'); e(f's_add_u32 s3, s3, {XCH}'); e(f'v_add_u32 v{T}, s3, v{L16}')
        ST, CB, W = FB, FB + 8, S8
        for q in range(1, 4):
            e(f'v_xor_b32 v{FT}, {q << 9}, v{T+1}')
            P.ds(f'ds_read_b64 {vr(ST + 2*q, 2)}, v{FT}', 'cs')
        for q in range(1, 4):
            for k in range(2): P.ds(f'ds_read_b128 {vr(CB + 8*q + 4*k, 4)}, v{T} offset:{(q-1)*2048 + k*1024}', ('co', q))
        e(f'v_mov_b32 v{ST}, v{R_}'); e(f'v_mov_b32 v{ST+1}, v{L_}')
        P.wait(lg='cs')
        e(f'v_max3_f32 v{W}, v{ST}, v{ST+2}, v{ST+4}'); e(f'v_max_f32 v{W}, v{W}, v{ST+6}')
        for q in range(4): e(f'v_sub_f32 v{W+4+q}, v{ST+2*q}, v{W}')
        for q in range(4): e(f'v_exp_f32 v{W+4+q}, v{W+4+q}')
        e(f'v_mul_f32 v{W+1}, v{W+4}, v{ST+1}')
        for q in range(1, 4): e(f'v_fma_f32 v{W+1}, v{W+4+q}, v{ST+2*q+1}, v{W+1}')
        e(f'v_rcp_f32 v{W+1}, v{W+1}')
        for q in range(4): e(f'v_mul_f32 v{W+4+q}, v{W+4+q}, v{W+1}')
        for k in range(8): e(f'v_mul_f32 v{O8+k}, v{O8+k}, v{W+4}')
        for q in range(1, 4):
            P.wait(lg=('co', q))
            for k in range(8): e(f'v_fma_f32 v{O8+k}, v{CB+8*q+k}, v{W+4+q}, v{O8+k}')
        for k in range(4): e(f'v_cvt_pk_bf16_f32 v{W+k}, v{O8+2*k}, v{O8+2*k+1}')
        e(f's_add_u32 s26, s5, {1048576 + head*4096}')
        P.vmem(f'buffer_store_dwordx4 {vr(W,4)}, v{L16}, s[{SO}:{SO+3}], s26 offen {OPT["o_st"]}', 'st', optional=True)
    P.wait(vm=('kv', 1)); postL(20); item(SEQ[5])
    hreset(); scores()
    P.wait(vm=('kv', 2)); postL(21); item(SEQ[6])
    e('s_load_dwordx2 s[8:9], s[0:1], 32'); e('s_load_dwordx2 s[10:11], s[0:1], 72'); e('s_load_dwordx2 s[12:13], s[0:1], 96')
    e(f'v_mov_b32 v{VX}, 0')
    P.vmem(f'global_load_dword v{VX+1}, v{VX}, s[82:83] sc1', 'tagld', optional=True)
    e('s_lshl_b32 s3, s50, 3'); e('s_add_u32 s3, s3, s52'); e('s_lshl_b32 s3, s3, 4'); e('s_lshr_b32 s26, s51, 1'); e('s_add_u32 s3, s3, s26')
    e('s_lshl_b32 s3, s3, 7'); e(f's_add_u32 s3, s3, {FLAGOFF}'); e(f'v_mov_b32 v{FA}, s3')
    e('s_mov_b32 s20, 22'); e('s_mov_b32 s21, 19'); e('s_mov_b32 s22, 65536'); e('s_mov_b32 s23, s59')
    e('s_mov_b32 s18, 32768'); e('s_add_u32 s19, s59, 65536')
    e('s_waitcnt lgkmcnt(0)'); P.lg = []
    P.vm = [(('kv', -1), False)] * 4 + [(('kv', k), False) for k in range(3) for _ in range(4)] + [('tagld', True)]
    def tr(v):
        if OPT['trace']:
            e('s_memrealtime s[76:77]'); e('s_sub_u32 m0, s24, 19'); e('s_waitcnt lgkmcnt(0)'); e('s_sub_u32 s76, s76, s60'); e(f'v_writelane_b32 v{v}, s76, m0')
    KIND = [(0, 1, 1), (3, 0, 0), (1, 1, 1), (2, 1, 2)]
    def step(k, issue=True):
        P.wait(vm=('kv', k - 1)); e(f's_add_u32 s24, s20, {k}'); postL('s24')
        tr(246)
        if not issue: return
        kind, nx, co = KIND[k]
        e(f's_add_u32 s25, s21, {co}')
        need_free('s25', 's24', [('kv', k + i) for i in range(3)])
        tr(247)
        S = SK if kind < 2 else SV
        e(f's_add_u32 m0, {"s23" if nx else "s19"}, {kind*16384}')
        e(f's_add_u32 s26, {"s22" if nx else "s18"}, {(kind % 2)*16384}')
        for t in range(4):
            P.vmem(f'buffer_load_dwordx4 v{VKV+t}, s[{S}:{S+3}], s26 offen offset:{t*1024} {kvp} lds', ('kv', k + 3))
        tr(248)
    def wtouch():
        e(f'v_lshlrev_b32 v{VX+2}, 7, v{LANE}'); e('s_lshl_b32 s3, s4, 13'); e(f'v_add_u32 v{VX+2}, s3, v{VX+2}')
        e('s_and_b32 s3, s2, 127'); e('s_mul_i32 s3, s3, 36864')
        e('s_cmp_lt_u32 s2, 128'); e('s_cselect_b64 s[8:9], s[8:9], s[10:11]')
        e('s_add_u32 s8, s8, s3'); e('s_addc_u32 s9, s9, 0'); srd(P, SX, 8, 9, 36864)
        if OPT['wpf']:
            e('s_mov_b32 s26, 32768')
            P.vmem(f'buffer_load_dword v250, v{VX+2}, s[{SX}:{SX+3}], 0 offen', 'wt', optional=True)
            P.vmem(f'buffer_load_dword v251, v{VX+2}, s[{SX}:{SX+3}], s26 offen', 'wt', optional=True)
    H = OprojHelper(P, VX + 1)
    def hbody():
        step(0)
        step(1); pv8()
        def mid():
            combine(0); hreset()
            for k in range(16): e(f'v_mov_b32 v{Q8+k}, v{Q8+16+k}')
            if OPT['tlb'] > 1: H.pages()
        P.ool(['s_cmp_eq_u32 s27, 3'], 's_cbranch_scc1', mid, lambda w, it: it == 3)
        step(2); scores()
        step(3)
        e('s_add_u32 s20, s20, 4'); e('s_add_u32 s21, s21, 3'); e('s_mov_b32 s18, s22'); e('s_add_u32 s22, s22, 32768')
        e('s_xor_b32 s23, s23, 65536'); e('s_xor_b32 s19, s19, 65536')
    P.loop(6, 's27', hbody, lambda t: ('kv', t[1] - 4) if t[0] == 'kv' else t)
    P.vm = [(('kv', t[0][1] - 4), t[1]) if t[0][0] == 'kv' else t for t in P.vm]
    step(0, False)
    if OPT['wpos'] == 27: wtouch()
    if OPT['rtc']: touch()
    def respin():
        sp = P.newlab('tg'); P.lab(sp)
        e('s_sleep 8'); e(f'global_load_dword v{VX+1}, v{VX}, s[82:83] sc1'); e('s_waitcnt vmcnt(0)')
        e(f'v_cmp_eq_u32 vcc, 0, v{VX+1}'); e(f's_cbranch_vccnz {sp}')
    P.ool([f'v_cmp_eq_u32 vcc, 0, v{VX+1}'], 's_cbranch_vccnz', respin, lambda w, it: False)
    step(1)
    hsync()
    def sig_a():
        e(f'v_mov_b32 v{T}, {NONCE}')
        e('s_mov_b64 exec, 1')
        P.vmem(f'global_store_dword v{FA}, v{VX+1}, s[12:13] offset:64 sc1', 'fa', optional=True)
        e(f'ds_write_b32 v{T}, v{VX+1}')
        e('s_mov_b64 exec, -1'); e('s_waitcnt lgkmcnt(0)')
    P.only(0, sig_a)
    pv8()
    step(2, False); scores()
    H.setup()
    step(3, False)
    P.wait(vm='f'); postL(50)
    wtouch()
    def pre():
        F.need(FRC, 41); H.first()
    P.only(None, pre, pred=lambda w, it: True, cmp='s_cmp_lt_u32 s2, 216')
    pv8(); combine(1)
    ab = (OPT['abl'] + ' ' + OPT['abl2']).split()
    if ab: P.cur[i00:] = ablate(P.cur[i00:], [x for x in ab if x in ('dma', 'qdma', 'st')] + (['mfma', 'ds', 'valu'] if 'hc' in ab else []))
    stamp(P, 4, not OPT['ts2'])
    def signal():
        e('s_mov_b64 exec, 1')
        e(f'global_store_dword v{FA}, v{VX+1}, s[12:13] sc1')
        e('s_mov_b64 exec, -1')
    def idle():
        e('s_waitcnt vmcnt(0)'); e('s_barrier')
        P.only(0, signal)
        e('s_branch .Lk1_fin')
    P.ool(['s_cmp_ge_u32 s2, 216'], 's_cbranch_scc1', idle, lambda w, it: False)
    H.run(signal)

WST, OST, OR0, NS = 12288, 8192, 49152, 4
PBUF, FLAG2 = 0x2800000, 0x2100000

def op_ids(P):
    e = P.e
    e('s_and_b32 s48, s2, 3'); e('s_bfe_u32 s50, s2, 0x10002'); e('s_lshr_b32 s49, s2, 3')
    e('s_mul_i32 s51, s49, 43'); e('s_lshr_b32 s51, s51, 7'); e('s_mul_i32 s3, s51, 3'); e('s_sub_u32 s52, s49, s3')
    e('s_mul_i32 s53, s50, 27'); e('s_add_u32 s53, s53, s49')

def kstep(P, cnt, dst):
    e = P.e
    e(f's_and_b32 {dst}, {cnt}, 31'); e(f's_add_u32 {cnt}, {cnt}, 1'); e(f's_and_b32 s3, {cnt}, 4'); e(f's_bitcmp1_b32 {cnt}, 6')
    e(f's_cselect_b32 s57, 4, 0'); e('s_xor_b32 s3, s3, s57'); e(f's_add_u32 {cnt}, {cnt}, s3')
    e(f's_cmp_eq_u32 {cnt}, 32'); e(f's_cselect_b32 {cnt}, 68, {cnt}')

def poll_fn(P, val, ad, base, tag):
    def poll():
        sp = P.newlab('fl'); P.lab(sp)
        P.e('s_sleep 4'); P.e(f'global_load_dword v{val}, v{ad}, {base} sc1'); P.e('s_waitcnt vmcnt(0)')
        P.e(f'v_cmp_ne_u32 vcc, v{tag}, v{val}'); P.e(f's_cbranch_vccnz {sp}')
    return poll

class OprojHelper:
    SWO, SO2 = 36, 40
    VW3, VO, FLA, FLV, t = 200, 203, 205, 206, 208
    def __init__(s, P, tag): s.P, s.TAG = P, tag
    def setup(s):
        P = s.P; e = P.e; t = s.t
        op_ids(P)
        for b3 in range(3):
            e(f'v_add_u32 v{t}, {64*b3}, v{LANE}'); e(f'v_mul_u32_u24 v{t+1}, 2731, v{t}'); e(f'v_lshrrev_b32 v{t+1}, 16, v{t+1}')
            e(f'v_mul_u32_u24 v{t+2}, 24, v{t+1}'); e(f'v_sub_u32 v{t+2}, v{t}, v{t+2}')
            e(f'v_bfe_u32 v{t+3}, v{t+1}, 1, 2'); e(f'v_lshlrev_b32 v{t+3}, 1, v{t+3}'); e(f'v_xor_b32 v{t+2}, v{t+2}, v{t+3}'); e(f'v_lshlrev_b32 v{t+2}, 4, v{t+2}')
            e('s_lshl_b32 s3, s4, 3'); e(f'v_add_u32 v{t+1}, s3, v{t+1}'); e(f'v_mul_u32_u24 v{t+1}, 1152, v{t+1}'); e(f'v_add_u32 v{s.VW3+b3}, v{t+1}, v{t+2}')
        e('s_xor_b32 s3, s4, s48'); e('s_lshl_b32 s3, s3, 18'); e(f'v_lshlrev_b32 v{t}, 4, v{LANE}'); e(f'v_add_u32 v{s.VO}, s3, v{t}')
        e(f'v_add_u32 v{s.VO+1}, 131072, v{s.VO}')
        e('s_mul_i32 s14, s4, 3072'); e('s_lshl_b32 s15, s4, 11'); e(f's_add_u32 s15, s15, {OR0}')
        e('s_cmp_eq_u32 s50, 0'); e('s_cselect_b64 s[16:17], s[8:9], s[10:11]')
        e(f's_mul_i32 s3, s48, {1024*1152}'); e('s_mul_i32 s26, s52, 384'); e('s_add_u32 s3, s3, s26')
        e('s_add_u32 s16, s16, s3'); e('s_addc_u32 s17, s17, 0'); srd(P, s.SWO, 16, 17, 1023*1152 + 384)
        e('s_mul_i32 s3, s50, 72'); e('s_lshl_b32 s26, s51, 3'); e('s_add_u32 s3, s3, s26'); e('s_lshl_b32 s3, s3, 2'); e('s_add_u32 s3, s3, s48')
        e('s_lshl_b32 s3, s3, 15'); e('s_add_u32 s16, s12, s3'); e('s_addc_u32 s17, s13, 0'); srd(P, s.SO2, 16, 17, 7*131072 + 32768)
        e('s_lshl_b32 s3, s51, 3'); e('s_add_u32 s26, s3, 7'); e('s_mul_i32 s3, s3, 57'); e('s_lshr_b32 s3, s3, 9'); e('s_mul_i32 s26, s26, 57'); e('s_lshr_b32 s26, s26, 9')
        e('s_min_u32 s3, s3, 7'); e('s_min_u32 s26, s26, 7')
        e(f'v_mov_b32 v{t}, s3'); e(f'v_mov_b32 v{t+1}, s26'); e(f'v_and_b32 v{t+2}, 4, v{LANE}'); e(f'v_cmp_eq_u32 vcc, 0, v{t+2}'); e('s_nop 1')
        e(f'v_cndmask_b32 v{t}, v{t+1}, v{t}, vcc')
        e('s_lshl_b32 s3, s50, 5'); e('s_add_u32 s3, s3, s48'); e('s_lshl_b32 s3, s3, 2')
        e(f'v_lshlrev_b32 v{t}, 4, v{t}'); e(f'v_and_b32 v{t+1}, 3, v{LANE}'); e(f'v_add3_u32 v{t}, v{t}, v{t+1}, s3')
        e(f'v_lshlrev_b32 v{t}, 7, v{t}'); e(f'v_add_u32 v{s.FLA}, {FLAGOFF + 64}, v{t}')
        e('s_mov_b32 s54, 0'); e('s_mov_b32 s55, 0')
        P.vmem(f'global_load_dword v{s.FLV}, v{s.FLA}, s[12:13] sc1', 'f')
    def pages(s):
        P = s.P; e = P.e; t = s.t
        e('s_load_dwordx2 s[16:17], s[0:1], 80')
        e(f'v_lshlrev_b32 v{t}, 16, v{LANE}'); e(f'v_min_u32 v{t+1}, 40, v{LANE}'); e(f'v_lshlrev_b32 v{t+1}, 16, v{t+1}')
        e('s_waitcnt lgkmcnt(0)')
        def f():
            P.vmem(f'global_load_dword v252, v{t}, s[8:9]', 'tl', optional=True)
            P.vmem(f'global_load_dword v253, v{t}, s[10:11]', 'tl', optional=True)
            P.vmem(f'global_load_dword v254, v{t+1}, s[16:17]', 'tl', optional=True)
        P.only(2, f)
    def wo(s, k, opt=False):
        P = s.P; kstep(P, 's54', 's56'); P.e('s_mul_i32 s56, s56, 36864')
        for b3 in range(3):
            P.e(f's_add_u32 m0, s14, {(k % NS)*WST + b3*1024}')
            P.vmem(f'buffer_load_dwordx4 v{s.VW3+b3}, s[{s.SWO}:{s.SWO+3}], s56 offen lds', ('L', k), optional=opt)
    def oo(s, k, opt=False):
        P = s.P; kstep(P, 's55', 's56'); P.e('s_lshl_b32 s56, s56, 10')
        for x in range(2):
            P.e(f's_add_u32 m0, s15, {(k % NS)*OST + x*1024}')
            P.vmem(f'buffer_load_dwordx4 v{s.VO+x}, s[{s.SO2}:{s.SO2+3}], s56 offen sc1 lds', ('L', k), optional=opt)
    def check(s):
        s.P.ool([f'v_cmp_ne_u32 vcc, v{s.TAG}, v{s.FLV}'], 's_cbranch_vccnz', poll_fn(s.P, s.FLV, s.FLA, 's[12:13]', s.TAG), lambda w, it: False)
    def first(s):
        s.check()
        for k in range(NS): s.wo(k, True); s.oo(k, True)
    def run(s, signal):
        P = s.P; e = P.e
        e('s_waitcnt vmcnt(16)'); e('s_barrier')
        stamp(P, 5, not OPT['ts2'])
        P.vm = [(('F', -3), False)] + [(('L', k), False) for k in (1, 2, 3) for _ in range(5)]
        def body():
            for k in range(NS):
                P.wait(vm=('L', k + 1)); e('s_barrier')
                if k == 0:
                    e('s_cmp_eq_u32 s27, 7'); e(f's_cselect_b32 s59, {BIG}, 0')
                    for r in range(5): e(f'v_add_u32 v{s.VW3+r}, s59, v{s.VW3+r}')
                if k == 1:
                    e('s_cmp_eq_u32 s27, 2'); e('s_cselect_b32 s57, 64, 0'); e(f'v_subrev_u32 v{s.FLA}, s57, v{s.FLA}')
                    P.vmem(f'global_load_dword v{s.FLV}, v{s.FLA}, s[12:13] sc1', ('F', 1))
                if k == 3:
                    e('s_lshl_b32 s3, s27, 2'); e('s_add_u32 s3, s3, s4')
                    P.ool(['s_cmp_eq_u32 s3, 0'], 's_cbranch_scc1', signal, lambda w, it: False)
                s.wo(k + NS)
                if k == 0: s.check()
                s.oo(k + NS)
        P.loop(8, 's27', body, lambda t: (t[0], t[1] - NS) if isinstance(t, tuple) else t)
        stamp(P, 6, not OPT['ts2'])
        e('s_barrier')
        def sig2():
            e('s_lshl_b32 s3, s53, 2'); e('s_add_u32 s3, s3, s48'); e('s_lshl_b32 s3, s3, 7'); e(f's_add_u32 s3, s3, {FLAG2}'); e('v_mov_b32 v2, s3')
            e('s_mov_b64 exec, 1'); e(f'global_store_dword v2, v{s.TAG}, s[12:13] sc1'); e('s_mov_b64 exec, -1')
        P.only(0, sig2)

def gen_oproj(P):
    e = P.e
    SP, SOUT = 28, 32
    ACC, AF, BF, AA, AB, L16, VOUT, FLA, FLV, TAG = 0, 96, 144, 176, 182, 183, 184, 185, 186, 235
    def idle():
        e('s_waitcnt vmcnt(0)'); e('s_barrier'); e('s_branch .Lk1_fin')
    P.ool(['s_cmp_ge_u32 s2, 216'], 's_cbranch_scc1', idle, lambda w, it: False)
    e('s_load_dwordx2 s[12:13], s[0:1], 80'); e('s_load_dwordx2 s[14:15], s[0:1], 96')
    e('v_mbcnt_lo_u32_b32 v0, -1, 0'); e('v_mbcnt_hi_u32_b32 v0, -1, v0')
    e('v_and_b32 v3, 15, v0'); e('v_lshrrev_b32 v4, 4, v0'); e('v_lshrrev_b32 v5, 2, v3'); e('v_and_b32 v6, 3, v3')
    e(f'v_lshlrev_b32 v{L16}, 4, v0')
    e('s_and_b32 s5, s4, 1'); e('s_lshr_b32 s6, s4, 1')
    e('v_lshl_add_u32 v7, v4, 2, v5'); e('v_bfe_u32 v8, v7, 1, 2'); e('v_mul_u32_u24 v7, 384, v7'); e('v_lshl_add_u32 v7, v6, 3, v7')
    e('s_mul_i32 s3, s5, 6')
    for k in range(6):
        e(f's_add_u32 s26, s3, {k}'); e('v_xor_b32 v9, s26, v8'); e(f'v_lshl_add_u32 v{AA+k}, v9, 5, v7')
    e('s_lshl_b32 s3, s6, 12'); e(f's_add_u32 s3, s3, {OR0}'); e(f'v_add_u32 v{AB}, s3, v{L16}')
    e('v_mul_u32_u24 v7, 2304, v3'); e('v_lshl_add_u32 v7, v4, 4, v7'); e('s_mul_i32 s3, s5, 192'); e(f'v_add_u32 v{VOUT}, s3, v7')
    e('v_and_b32 v7, 3, v0'); e('v_max_u32 v7, 1, v7'); e(f'v_mov_b32 v{FLA}, v7')
    for i in range(96): e(f'v_mov_b32 v{i}, 0')
    e('s_waitcnt lgkmcnt(0)'); P.vm = []; P.lg = []
    e('s_barrier')
    stamp(P, 5, not OPT['ts2'])
    def ids():
        op_ids(P)
        e(f'v_mov_b32 v{TAG}, {NONCE}'); P.ds(f'ds_read_b32 v{TAG}, v{TAG}', 'n')
        e('s_mul_i32 s3, s53, 294912'); e(f's_add_u32 s3, s3, {PBUF}'); e('s_add_u32 s8, s14, s3'); e('s_addc_u32 s9, s15, 0'); srd(P, SP, 8, 9, 294912)
        e('s_lshl_b32 s3, s51, 2'); e('s_add_u32 s3, s3, s48'); e(f's_mul_i32 s3, s3, {32*2304}'); e('s_mul_i32 s26, s50, 1152'); e('s_add_u32 s3, s3, s26')
        e('s_mul_i32 s26, s52, 384'); e('s_add_u32 s3, s3, s26'); e('s_add_u32 s12, s12, s3'); e('s_addc_u32 s13, s13, 0'); srd(P, SOUT, 12, 13, 31*2304 + 384)
        e(f'v_xor_b32 v{FLA}, s48, v{FLA}'); e('s_lshl_b32 s3, s53, 2'); e(f'v_add_u32 v{FLA}, s3, v{FLA}'); e(f'v_lshlrev_b32 v{FLA}, 7, v{FLA}')
        e(f'v_add_u32 v{FLA}, {FLAG2}, v{FLA}')
    def reads(s):
        a, b = AF + 24*(s % 2), BF + 16*(s % 2)
        rb = [(lambda l=l: P.ds(f'ds_read_b128 {vr(b + 4*l, 4)}, v{AB} offset:{(s % NS)*OST + l*1024}', ('R', s))) for l in range(4)]
        ra = [(lambda k=k, hf=hf: P.ds(f'ds_read_b64_tr_b16 {vr(a + 4*k + 2*hf, 2)}, v{AA+k} offset:{(s % NS)*WST + hf*6144}', ('R', s)))
              for k in range(6) for hf in range(2)]
        return rb[:1] + ra[:6] + rb[1:2] + ra[6:] + rb[2:]
    for i, f in enumerate(reads(0)):
        if i == 12: e('s_waitcnt lgkmcnt(8)'); P.lg = P.lg[-8:]
        f()
    ids()
    def body():
        for s in range(NS):
            P.wait(lg='all')
            if s == 3: e('s_waitcnt vmcnt(0)')
            e('s_barrier')
            rs = reads(s + 1)
            for n in range(24):
                l, k = n // 6, n % 6
                mfma(P, ACC + (l*6 + k)*4, AF + 24*(s % 2) + 4*k, BF + 16*(s % 2) + 4*l)
                if n == 13: e('s_waitcnt lgkmcnt(8)'); P.lg = P.lg[-8:]
                if n < 16: rs[n]()
    P.lg = [('R', 0)] * 11
    P.loop(8, 's27', body, lambda t: (t[0], t[1] - NS))
    stamp(P, 6, not OPT['ts2'])
    P.wait(lg='all')
    def send(half, r):
        e(f's_xor_b32 s3, s48, {r}'); e('s_mul_i32 s3, s3, 73728'); e('s_mul_i32 s26, s5, 12288'); e('s_add_u32 s3, s3, s26')
        for t in range(12):
            if t % 4 == 0: e(f's_add_u32 s26, s3, {(r - 1)*24576 + t*1024}')
            P.vmem(f'buffer_store_dwordx4 {vr(ACC + (half*12 + t)*4, 4)}, v{L16}, s[{SP}:{SP+3}], s26 offen offset:{(t % 4)*1024} sc1', 'st', optional=True)
    def snd(first):
        if first: send(1, 1)
        else: send(0, 2); send(1, 3)
    P.variant(None, snd, pred=lambda w, it: (w & 2) == 0, cmp='s_cmp_eq_u32 s6, 0')
    e('s_waitcnt vmcnt(0)'); P.vm = []
    e('s_barrier')
    e('s_cmp_lg_u32 s6, 0'); e('s_cbranch_scc1 .Lk1_fin')
    e(f'global_load_dword v{FLV}, v{FLA}, s[14:15] sc1'); e('s_waitcnt vmcnt(0)')
    P.ool([f'v_cmp_ne_u32 vcc, v{TAG}, v{FLV}'], 's_cbranch_vccnz', poll_fn(P, FLV, FLA, 's[14:15]', TAG), lambda w, it: False)
    e('s_mul_i32 s3, s48, 73728'); e('s_mul_i32 s26, s5, 12288'); e('s_add_u32 s3, s3, s26')
    RB = lambda q, t: 48 + (q*12 + t)*4 if q*12 + t < 32 else 188 + (q*12 + t - 32)*4
    for t in range(12):
        for q in range(3):
            e(f's_add_u32 s26, s3, {q*24576 + (t // 4)*4096}')
            P.vmem(f'buffer_load_dwordx4 {vr(RB(q, t), 4)}, v{L16}, s[{SP}:{SP+3}], s26 offen offset:{(t % 4)*1024} sc1', ('p', t))
    for l in range(2):
        for kp in range(3):
            for k in (2*kp, 2*kp + 1):
                t = l*6 + k
                P.wait(vm=('p', t))
                for q in range(3):
                    for i in range(4): e(f'v_add_f32 v{ACC + 4*t + i}, v{ACC + 4*t + i}, v{RB(q, t) + i}')
            X, Y, D = ACC + (l*6 + 2*kp)*4, ACC + (l*6 + 2*kp + 1)*4, 208 + (l*3 + kp)*4
            e(f'v_cvt_pk_bf16_f32 v{D}, v{X}, v{X+1}'); e(f'v_cvt_pk_bf16_f32 v{D+1}, v{X+2}, v{X+3}')
            e(f'v_cvt_pk_bf16_f32 v{D+2}, v{Y}, v{Y+1}'); e(f'v_cvt_pk_bf16_f32 v{D+3}, v{Y+2}, v{Y+3}')
            for sw in ('32', '16'):
                e(f'v_permlane{sw}_swap_b32 v{D}, v{D+2}'); e(f'v_permlane{sw}_swap_b32 v{D+1}, v{D+3}')
            e(f's_mov_b32 s26, {l*16*2304}')
            P.vmem(f'buffer_store_dwordx4 {vr(D,4)}, v{VOUT}, s[{SOUT}:{SOUT+3}], s26 offen offset:{kp*64} {OPT["out_st"]}', 'st')

HDR = open('cdna_kernels/' + NAME + '.s.ref').read().split('; Override launch')[0]

def kd(name, vg, sg):
    return f""".p2align 6
.amdhsa_kernel {name}
  .amdhsa_next_free_vgpr {vg}
  .amdhsa_next_free_sgpr {sg}
  .amdhsa_accum_offset {(vg+3)//4*4}
  .amdhsa_group_segment_fixed_size 0
  .amdhsa_kernarg_size 104
  .amdhsa_user_sgpr_count 2
  .amdhsa_user_sgpr_kernarg_segment_ptr 1
  .amdhsa_system_sgpr_workgroup_id_x 1
.end_amdhsa_kernel
"""

def build():
    P = gen_k1()
    out = HDR
    out += f'; @launch grid=(256,1,1) block=(512,1,1) lds={K1_LDS}\n'
    out += '.amdgcn_target "amdgcn-amd-amdhsa--gfx950"\n.text\n'
    P.pad_hazards()
    if not OPT["abl"] and not OPT["abl2"] and not OPT["abl3"] and not OPT.get("cyc") and not OPT["trace"]: P.check_loads()
    sys.stderr.write(f'{dict(P.count(0))}\n')
    out += f'.globl {KNAME}\n.p2align 8\n.type {KNAME},@function\n{KNAME}:\n' + '\n'.join(P.emit()) + '\n'
    out += '.Lcode_end:\n'
    out += '.section .rodata,"a"\n' + kd(KNAME, 256, 102)
    return out

if __name__ == '__main__':
    dst = 'cdna_kernels/' + NAME + '.s'
    for a in sys.argv[1:]:
        if '=' in a:
            k, v = a.split('=', 1)
            if k == 'out': dst = v
            elif isinstance(OPT[k], bool): OPT[k] = (v == '1')
            elif isinstance(OPT[k], int): OPT[k] = int(v)
            else: OPT[k] = v.replace('+', ' ')
    open(dst, 'w').write(build())
```

```python
import sys, struct, math, re
from dsl import *

NAME = 'concat_heads__mha_block_cached__gqa_block_cached__near_ridge'
def fbits(x): return struct.unpack('<I', struct.pack('<f', x))[0]
CSC = math.log2(math.e) / math.sqrt(128.0)
BIG = 0x20000000

OPT = dict(kv_pol='nt', x_pol='', w_pol='', o_st='sc1', o_ld='sc1', wo_pol='', out_st='', ts=False, ts2=False, clk=False,
           qrot=True, k2a=1, k2b=0, cpf=2, abl='', abl2='', t0=22, lak=4, w2=True, cyc=False, krot=0, slp=3, nw=8, nw0=2, pa=27, dyn=False, nf=True, rtc=0, ea='15,16,16', wpos=31, trace=False, dbg=False, tlb=0, abl3='', wpf=True, spread=True, dla=4, ela=4, la=4, kvq='5,8,11,14', st='', sti=1, hprio=1, post4=3)

def mfma(P, d, a, b, first=False):
    c = '0' if first else vr(d, 4)
    P.e(f'v_mfma_f32_16x16x32_bf16 {vr(d,4)}, {vr(a,4)}, {vr(b,4)}, {c}')

def mfma32(P, d, a, b, first=False):
    c = '0' if first else vr(d, 16)
    P.e(f'v_mfma_f32_32x32x16_bf16 {vr(d,16)}, {vr(a,4)}, {vr(b,4)}, {c}')

def femit(P, dst, x, t1, t2):
    P.e(f'v_lshrrev_b32 v{t1}, 3, v{x}')
    P.e(f'v_lshrrev_b32 v{t2}, 2, v{x}')
    P.e(f'v_xor_b32 v{t2}, v{t2}, v{t1}')
    P.e(f'v_and_b32 v{t2}, 1, v{t2}')
    P.e(f'v_lshl_or_b32 v{t1}, v{t2}, 1, v{t1}')
    P.e(f'v_and_b32 v{dst}, 3, v{x}')
    P.e(f'v_lshl_or_b32 v{dst}, v{dst}, 2, v{t1}')

def srd(P, d, lo, hi, size):
    P.e(f's_mov_b32 s{d}, s{lo}')
    P.e(f's_and_b32 s{d+1}, s{hi}, 0xffff')
    P.e(f's_mov_b32 s{d+2}, {size}')
    P.e(f's_mov_b32 s{d+3}, 0x20000')

def stamp(P, idx, cond=True):
    if OPT['ts'] and cond:
        P.e(f's_memrealtime s[{60+2*idx}:{61+2*idx}]')
        if OPT['clk'] and idx in (3, 4): P.e(f's_memtime s[{70+2*idx}:{71+2*idx}]')
        if OPT['clk'] and idx in (1, 2): P.e(f's_memtime s[{74+2*idx}:{75+2*idx}]')
        if OPT['clk'] and idx == 2: P.e('s_waitcnt lgkmcnt(0)'); P.e('s_sub_u32 s80, s78, s76')
        P.e('s_waitcnt lgkmcnt(0)')
def stamp_it(P, idx, itv):
    if OPT['ts'] and OPT['ts2']:
        def f():
            P.e(f'{"s_memtime" if OPT["cyc"] else "s_memrealtime"} s[{60+2*idx}:{61+2*idx}]')
            if not OPT['cyc']: P.e('s_waitcnt lgkmcnt(0)')
        P.ool([f's_cmp_eq_u32 s27, {itv}'], 's_cbranch_scc1', f, lambda w, it: it == itv)
def stamps_out(P, off, wreg, wg_shift):
    e = P.e
    P.wait(vm='all')
    stamp(P, 7)
    if OPT['dbg']:
        def f():
            e('s_not_b32 s3, s60'); e('v_mov_b32 v2, s3'); e('v_mov_b32 v0, 0'); e('s_mov_b64 exec, 1')
            e('global_atomic_umax v0, v2, s[82:83] offset:4 sc1')
            for k in range(8):
                e(f'v_mov_b32 v{3+k}, s{60+2*k}'); e(f'global_atomic_umax v0, v{3+k}, s[82:83] offset:{8+4*k} sc1')
            for i, k in enumerate((1, 2, 4, 7)):
                e(f's_sub_u32 s3, 0, s{60+2*k}'); e(f'v_mov_b32 v{12+i}, s3'); e(f'global_atomic_umax v0, v{12+i}, s[82:83] offset:{40+4*i} sc1')
            e('s_mov_b64 exec, -1'); e('s_waitcnt vmcnt(0)')
        P.only(None, f, pred=lambda w, it: True, cmp=f's_cmp_eq_u32 {wreg}, 0')
        return
    if OPT['clk']:
        e('s_sub_u32 s72, s78, s76'); e('s_mov_b32 s73, 0'); e('s_mov_b32 s70, s80'); e('s_mov_b32 s71, 0')
    if False:
        e('s_sub_u32 s70, s12, s10'); e('s_mov_b32 s71, 0')
        if P.name == 'k1':
            e('s_sub_u32 s72, s16, s14'); e('s_mov_b32 s73, 0')
    e('s_load_dwordx2 s[24:25], s[0:1], 96'); e('s_waitcnt lgkmcnt(0)')
    e(f's_add_u32 s24, s24, {off}'); e('s_addc_u32 s25, s25, 0')
    e(f's_lshl_b32 s3, s2, {wg_shift}'); e(f's_lshl_b32 s26, {wreg}, 6'); e('s_add_u32 s3, s3, s26')
    e('v_mov_b32 v0, s3')
    for k in range(8):
        e(f'v_mov_b32 v2, s{60+2*k}'); e(f'v_mov_b32 v3, s{61+2*k}')
        e(f'global_store_dwordx2 v0, v[2:3], s[24:25] offset:{8*k}')
        e('s_waitcnt vmcnt(0)')

def code_prefetch(P, start, end, dst):
    e = P.e
    e('s_getpc_b64 s[56:57]')
    P.lab(f'.Lpc_{P.name}')
    e(f's_sub_u32 s56, s56, .Lpc_{P.name}-{start}'); e('s_subb_u32 s57, s57, 0')
    if OPT['cpf'] == 2:
        e('s_lshr_b32 s3, s2, 3'); e('s_lshl_b32 s3, s3, 11'); e('v_and_b32 v12, 15, v0'); e('v_lshlrev_b32 v12, 7, v12'); e('v_add_u32 v12, s3, v12')
    else: e('v_lshlrev_b32 v12, 7, v0')
    e(f's_mov_b32 s3, {end}-{start}-4')
    e(f'v_min_u32 v13, s3, v12')
    P.vmem(f'global_load_dword v{dst}, v13, s[56:57]', 'pf')

STG, XB = 25600, 9216
QB0, NQ = 0, 5
XCH = 131072
FLG = 161792
K1_LDS = 163840
SX, SW, SK, SV, SO = 28, 32, 36, 40, 44
FW, FRL, FRC, FT, FV, LANE = 186, 187, 188, 189, 190, 191

def sidx(s): return (s + 2) % NQ

class Flags:
    def __init__(s, P): s.P = P
    def post(s, val, off=0):
        s.P.e(f'v_mov_b32 v{FV}, {val}')
        s.P.ds(f'ds_write_b32 v{FW}, v{FV} offset:{off}', 'fw')
    def read(s, ad): s.P.ds(f'ds_read_b32 v{FT}, v{ad}', 'fr')
    def check(s, ad, val):
        P = s.P
        P.wait(lg='fr')
        def spin():
            sp = P.newlab('sp'); P.lab(sp)
            if OPT['slp']: P.e(f's_sleep {OPT["slp"]}')
            P.e(f'ds_read_b32 v{FT}, v{ad}'); P.e('s_waitcnt lgkmcnt(0)')
            P.e(f'v_cmp_gt_u32 vcc, {val}, v{FT}'); P.e('s_nop 0'); P.e(f's_cbranch_vccnz {sp}')
        P.ool([f'v_cmp_gt_u32 vcc, {val}, v{FT}'], 's_cbranch_vccnz', spin, lambda w, it: False)
    def need(s, ad, val): s.read(ad); s.check(ad, val)

KNAME = NAME + '_kernel'
FLAGOFF = 0x2000000
NONCE = FLG + 1024

def gen_k1():
    P = Prog('k1', 's4'); e = P.e
    F = Flags(P)
    e('s_cmp_ge_u32 s2, 256'); e('s_cbranch_scc1 .Lk1_end')
    e('s_load_dwordx8 s[8:15], s[0:1], 0')
    e('s_load_dwordx8 s[16:23], s[0:1], 40')
    e('s_load_dwordx2 s[24:25], s[0:1], 96')
    e('s_load_dwordx2 s[82:83], s[0:1], 88')
    if OPT['ts']:
        e('s_memrealtime s[60:61]')
        for k in range(62, 76): e(f's_mov_b32 s{k}, 0')
    if OPT['cpf']: code_prefetch(P, KNAME, '.Lcode_end', 87)
    e('v_lshrrev_b32 v14, 6, v0')
    e('v_readfirstlane_b32 s87, v14')
    e(f'v_and_b32 v{LANE}, 63, v0')
    e('s_and_b32 s4, s87, 3'); e('s_lshr_b32 s81, s87, 2')
    e('s_and_b32 s48, s2, 7'); e('s_lshr_b32 s49, s2, 3')
    e('s_lshr_b32 s50, s48, 2')
    e('s_and_b32 s51, s48, 3'); e('s_lshl_b32 s51, s51, 3')
    e('s_and_b32 s55, s49, 3'); e('s_lshl_b32 s55, s55, 1'); e('s_add_u32 s51, s51, s55')
    e('s_lshr_b32 s52, s49, 2')
    e(f's_mov_b32 s7, {fbits(CSC):#x}')
    gens, st = {True: gen_main(P, F), False: gen_helper(P, F)}, {}
    def role1(m):
        next(gens[m]); st[m] = list(P.vm); P.vm = []
    P.variant(None, role1, pred=lambda w, it: (w & 4) == 0, cmp='s_cmp_eq_u32 s81, 0')
    e(f'v_and_b32 v2, 31, v0'); e('v_lshlrev_b32 v2, 2, v2'); e('v_lshl_add_u32 v2, v14, 7, v2'); e(f'v_add_u32 v{FW}, {FLG}, v2')
    e('v_and_b32 v2, 3, v0'); e('v_mul_u32_u24 v2, 132, v2'); e(f'v_add_u32 v{FRL}, {FLG + 1536}, v2')
    e('v_and_b32 v2, 7, v0'); e('v_mul_u32_u24 v2, 132, v2'); e(f'v_add_u32 v{FRC}, {FLG}, v2')
    e(f'v_mov_b32 v{FV}, 0')
    e(f'ds_write_b32 v{FW}, v{FV}'); e(f'ds_write_b32 v{FW}, v{FV} offset:1024'); e('s_waitcnt lgkmcnt(0)')
    def role(m):
        P.vm = st[m]
        for _ in gens[m]: pass
        P.lg = []; P.vm = []
    P.variant(None, role, pred=lambda w, it: (w & 4) == 0, cmp='s_cmp_eq_u32 s81, 0')
    P.lab('.Lk1_fin')
    if OPT['ts']:
        e('s_waitcnt vmcnt(0) lgkmcnt(0)')
        stamps_out(P, 0x4000000, 's87', 9)
    P.lab('.Lk1_end')
    e('s_endpgm')
    return P

def o_srd(P):
    e = P.e
    e('s_mul_i32 s3, s50, 72'); e('s_mul_i32 s26, s52, 9'); e('s_add_u32 s3, s3, s26'); e('s_lshl_b32 s3, s3, 7')
    e('s_lshl_b32 s26, s51, 2'); e('s_add_u32 s3, s3, s26'); e('s_lshl_b32 s3, s3, 10')
    e('s_add_u32 s24, s24, s3'); e('s_addc_u32 s25, s25, 0'); srd(P, SO, 24, 25, (8 * 128 + 8) * 1024)

def qrot(P):
    e = P.e
    if OPT['qrot']:
        e('s_add_u32 s53, s55, s52'); e('s_and_b32 s53, s53, 7'); e('s_mul_i32 s53, s53, 9'); e('s_lshr_b32 s53, s53, 2')
    else: e('s_mov_b32 s53, 0')

def latest(P, tags):
    need = [t for t in tags if t in P.lg]
    if need: P.wait(lg=max(need, key=lambda t: len(P.lg) - 1 - P.lg[::-1].index(t)))

def ablate(items, ab):
    out = []
    for x in items:
        if isinstance(x, Ins):
            if 'mfma' in ab and x.kind == 'mfma': continue
            if 'valu' in ab and x.op in ('v_exp_f32', 'v_add_f32', 'v_cvt_pk_bf16_f32', 'v_max3_f32'): continue
            if 'exp' in ab and x.op in ('v_exp_f32', 'v_add_f32', 'v_cvt_pk_bf16_f32'): continue
            if 'pv' in ab and x.kind == 'mfma' and re.match(r'v\[(0|16|32|48):', x.ops[0]): continue
            if 'tr' in ab and 'tr_b16' in x.op: continue
            if 'ds' in ab and x.kind == 'dsr' and f'v{FT},' not in x.text: continue
            if 'dma' in ab and x.kind == 'dma' and ' nt ' in x.text: continue
            if 'st' in ab and x.kind == 'vstore' and 's[44:47]' in x.text: continue
            if 'qdma' in ab and x.kind == 'dma' and ' nt ' not in x.text: continue
        elif isinstance(x, Variant): x.A = ablate(x.A, ab); x.B = ablate(x.B, ab)
        elif isinstance(x, Loop): x.body = ablate(x.body, ab)
        out.append(x)
    return out

def gen_main(P, F):
    e = P.e
    O, S, FB, AK, AV, QA, QBr = 0, 64, 128, 160, 168, 192, 224
    VST, M_, L_, LC, R_, T1 = 152, 164, 166, 154, 156, 158
    AW, AX, BFm, AW2, VW, SAV = 160, 168, 170, 192, 202, 204
    t = 20
    e(f'v_and_b32 v{t}, 15, v{LANE}'); e(f'v_lshrrev_b32 v{t+1}, 4, v{LANE}')
    for u in range(2):
        e('s_lshl_b32 s3, s4, 3'); e(f's_add_u32 s3, s3, {4*u}'); e(f'v_add_u32 v{t+4}, s3, v{t+1}'); e(f'v_and_b32 v{t+5}, 15, v{t+4}')
        femit(P, t+6, t+5, t+7, t+8)
        e(f'v_xor_b32 v{t+6}, v{t+6}, v{t}'); e(f'v_lshlrev_b32 v{t+6}, 4, v{t+6}'); e(f'v_lshl_add_u32 v{VW+u}, v{t+4}, 13, v{t+6}')
    e('s_lshl_b32 s6, s4, 11')
    qrot(P); e('s_lshl_b32 s54, s53, 18')
    e('s_waitcnt lgkmcnt(0)')
    e('s_cmp_eq_u32 s50, 0'); e('s_cselect_b64 s[14:15], s[14:15], s[22:23]')
    e('s_lshl_b32 s3, s51, 8'); e('s_add_u32 s14, s14, s3'); e('s_addc_u32 s15, s15, 0')
    srd(P, SW, 14, 15, 575 * 8192 + 512)
    def wpiece(s, k):
        hd, u = k // 2, k % 2
        def pre(): e(f's_add_u32 m0, s6, {QB0 + sidx(s)*STG + XB + hd*8192 + u*1024 - hd*256}')
        def post():
            P.vmem(f'buffer_load_dwordx4 v{VW+u}, s[{SW}:{SW+3}], s54 offen offset:{hd*256} {OPT["w_pol"]} lds', ('q', s))
        return pre, post
    def wadv(): e('s_add_u32 s54, s54, 262144'); e(f's_cmp_eq_u32 s54, {18*262144}'); e('s_cselect_b32 s54, 0, s54')
    for s in range(2):
        for k in range(4): a_, b_ = wpiece(s, k); a_(); b_()
        wadv()
    yield
    e(f'v_lshrrev_b32 v{t+2}, 2, v{t}'); e(f'v_and_b32 v{t+3}, 3, v{t}')
    def traddr(dst, shift, base):
        e(f'v_lshl_add_u32 v{t+4}, v{t+1}, {shift}, v{t+2}'); e(f'v_and_b32 v{t+5}, 15, v{t+4}'); femit(P, t+6, t+5, t+7, t+8)
        e(f'v_lshrrev_b32 v{t+7}, 1, v{t+3}'); e(f'v_xor_b32 v{t+6}, v{t+6}, v{t+7}')
        e(f'v_lshlrev_b32 v{t+6}, 4, v{t+6}'); e(f'v_and_b32 v{t+7}, 1, v{t+3}'); e(f'v_lshl_or_b32 v{t+6}, v{t+7}, 3, v{t+6}')
        e(f'v_lshl_add_u32 v{t+6}, v{t+4}, 8, v{t+6}'); e(f'v_add_u32 v{dst}, {base}, v{t+6}')
    traddr(AW, 3, QB0 + XB)
    for d in range(1, 8): e(f'v_xor_b32 v{AW+d}, {d << 5}, v{AW}')
    e(f'v_sub_u32 v{t+6}, 4, v{t+2}'); e(f'v_and_b32 v{t+6}, 3, v{t+6}'); e(f'v_xor_b32 v{t+6}, v{t+6}, v{t+1}'); e(f'v_lshlrev_b32 v{t+6}, 4, v{t+6}')
    e(f'v_lshl_add_u32 v{t+6}, v{t}, 6, v{t+6}'); e(f's_add_u32 s3, s6, {QB0}'); e(f'v_add_u32 v{AX}, s3, v{t+6}')
    for k in range(9): e(f'v_add_u32 v{AW2+k}, {2*STG}, v{AW+k}')
    def qa(s): return (AW, sidx(s)*STG) if sidx(s) < 2 else (AW2, (sidx(s) - 2)*STG)
    traddr(SAV, 2, 32768)
    femit(P, t+6, t, t+7, t+8)
    e(f'v_xor_b32 v{t+6}, v{t+6}, v{t+1}'); e(f'v_lshlrev_b32 v{t+6}, 4, v{t+6}'); e(f'v_lshl_add_u32 v{FRC}, v{t}, 8, v{t+6}')
    o_srd(P)
    P.wait(vm=('q', 0))
    seq = [(s, hd, dt) for s in range(18) for hd in range(2) for dt in range(8)]
    NB, LA = 8, 5
    def rdA(i, hf):
        s, hd, dt = seq[i]; a, off = qa(s)
        P.ds(f'ds_read_b64_tr_b16 {vr(FB + 4*(i % NB) + 2*hf, 2)}, v{a + (dt ^ hf)} offset:{off + hd*8192 + 1024*hf}', ('A', i))
    def rdB(s, j):
        a, off = qa(s)
        P.ds(f'ds_read_b128 {vr(BFm + 8*(s % 2) + 4*j, 4)}, v{a + 8} offset:{off + 1024*j}', ('B', s, j))
    e('s_barrier')
    stamp(P, 1, not OPT['ts2'])
    rdB(0, 0); rdB(0, 1)
    for i in range(LA): rdA(i, 0); rdA(i, 1)
    for k in range(4): a_, b_ = wpiece(2, k); a_(); b_()
    wadv()
    i0 = len(P.cur)
    for i, (s, hd, dt) in enumerate(seq):
        k = i % 16
        WP = {1: 0, 3: 1, 5: 2, 7: 3}
        if k in WP and s + 3 < 18: wpiece(s + 3, WP[k])[0]()
        latest(P, [('A', i), ('B', s, 0), ('B', s, 1)])
        mfma(P, hd*64 + dt*8, FB + 4*(i % NB), BFm + 8*(s % 2), s == 0)
        if k in WP and s + 3 < 18: wpiece(s + 3, WP[k])[1]()
        if k == 8 and s + 3 < 18: wadv()
        if s < 17 and k == 16 - LA - 1:
            P.wait(vm=('q', s + 1)); e('s_barrier')
        if i + LA < len(seq): rdA(i + LA, 0)
        mfma(P, hd*64 + dt*8 + 4, FB + 4*(i % NB), BFm + 8*(s % 2) + 4, s == 0)
        if i + LA < len(seq): rdA(i + LA, 1)
        if s < 17:
            if k == 11: rdB(s + 1, 0)
            if k == 12: rdB(s + 1, 1)
        if i == len(seq) - 1: e('s_barrier')
    if OPT['abl']: P.cur[i0:] = ablate(P.cur[i0:], OPT['abl'].split())
    stamp(P, 2, not OPT['ts2'])
    P.wait(vm='all')
    e(f'v_mov_b32 v{AK}, v{FRC}')
    for u in range(1, 4): e(f'v_xor_b32 v{AK+u}, {u << 6}, v{AK}')
    e(f'v_mov_b32 v{AV}, v{SAV}')
    for d in range(1, 8): e(f'v_xor_b32 v{AV+d}, {d << 5}, v{AV}')
    e(f'v_lshlrev_b32 v{VST}, 4, v{LANE}')
    NB = 6
    PX = 176
    order = [('S', 0), ('S', 1), ('P', 2), ('S', 2), ('S', 3), ('P', 3), ('P', 0), ('P', 1)]
    pbase = lambda b, j: PX + 4*j if b == 3 else S + 16*b + 8*j
    mf, reads = [], []
    for kind, b in order:
        for k in range(8):
            if kind == 'S':
                tt, u = k // 4, k % 4
                reads.append((('K', b, k), 1, AK + u, b*8192 + tt*4096))
                mf.append([(S + 16*b + 8*j + 4*tt, QA + 16*j + 4*u, u == 0) for j in range(2)])
            else:
                reads.append((('V', b, k), 2, AV + k, b*8192))
                mf.append([(O + 32*j + 4*k, pbase(b, j), False) for j in range(2)])
    prev = lambda m: order[m // 8] in (('P', 2), ('P', 3))
    CHK, LA = 48, OPT['lak']
    def rd(i, it=0):
        tag, n, ad, off = reads[i]; b = FB + 4*(i % NB)
        if n == 1: P.ds(f'ds_read_b128 {vr(b,4)}, v{ad} offset:{off}', (it,) + tag)
        else:
            P.ds(f'ds_read_b64_tr_b16 {vr(b,2)}, v{ad} offset:{off}', (it,) + tag)
            P.ds(f'ds_read_b64_tr_b16 {vr(b+2,2)}, v{ad} offset:{off + 4096}', (it,) + tag)
    groups = [(b, j) for b in range(4) for j in range(2)]
    gb = {g: S + 16*g[0] + 8*g[1] for g in groups}
    sdone = {0: 7, 1: 15, 2: 31, 3: 39}
    dline = {0: 48, 1: 56, 2: 80, 3: 96}
    def valu_plan():
        T0 = OPT['t0']
        at = {m: [] for m in range(128)}
        for b in range(4):
            for k in range(8): at[min(sdone[b] + 1 + k, CHK - 1)].append(((b, k // 4), 'max', k % 4))
        for i, g in enumerate(groups):
            for k in range(8):
                m = T0 + 8*i + k
                at[m].insert(0, (g, 'exp', k))
                at[m + 1].append((g, 'add', k))
                if k % 2 == 1: at[m + 1].append((g, 'cvt', k // 2))
            assert T0 + 8*i + 8 < dline[g[0]] and T0 + 8*i > min(sdone[g[0]] + 1 + 4*g[1] + 3, CHK - 1)
        post = {m: [(1,) + o for o in at[m + 64]] + [(0,) + o for o in at[m]] for m in range(64)}
        for m in post: post[m].sort(key=lambda o: o[2] != 'exp')
        return post
    vpost = valu_plan()
    lc0 = [next(o for m in range(CHK) for o in vpost[m] if o[0] == 0 and o[2] == 'add' and o[1][1] == j) for j in range(2)]
    def vop(o, m, slow=False):
        lag, g, k_, k = o; r = gb[g]; j = g[1]
        if k_ == 'max': e(f'v_max3_f32 v{M_+j}, v{M_+j}, v{r+2*k}, v{r+2*k+1}')
        elif k_ == 'exp': e(f'v_exp_f32 v{r+k}, v{r+k}')
        elif k_ == 'cvt': e(f'v_cvt_pk_bf16_f32 v{pbase(*g)+k}, v{r+2*k}, v{r+2*k+1}')
        elif lag == 0 and m < CHK and not slow:
            e(f'v_mov_b32 v{LC+j}, v{r+k}' if o == lc0[j] else f'v_add_f32 v{LC+j}, v{LC+j}, v{r+k}')
        else: e(f'v_add_f32 v{L_+j}, v{L_+j}, v{r+k}')
    CK = {16 - LA - 1: 's90', 24 - LA - 1: 's91', 48 - LA - 1: 's92', 64 - LA - 1: 's93'}
    POST = {47: 's94', 49: 's95', 63: 's96'}
    def ostore(D, k): P.vmem(f'buffer_store_dwordx4 {vr(D + 4*k,4)}, v{VST}, s[{SO}:{SO+3}], s{88 if k < 4 else 99} offen offset:{(k % 4)*1024} {OPT["o_st"]}', 'st', optional=True)
    def slots(lo, hi, mode, events=True, zero=False):
        STS = {x: i + 1 for i, x in enumerate(OPT['st'].split(','))} if mode == 'fast' else {}
        skip = lambda m: (mode in ('first', 'redo') and prev(m)) or (mode == 'tail' and not prev(m))
        keep = lambda o: mode == 'fast' or (mode == 'first' and o[0] == 0) or (mode == 'tail' and o[0] == 1)
        for m in range(lo, hi):
            ops = [o for o in vpost[m] if keep(o)]
            if not skip(m):
                w2 = m + 1 if (OPT['w2'] and m % 2 == 0 and (0,) + reads[m + 1][0] in P.lg) else m
                P.wait(lg=(0,) + reads[w2][0])
                mfma(P, mf[m][0][0], FB + 4*(m % NB), mf[m][0][1], mf[m][0][2] or zero)
            if ops: vop(ops.pop(0), m)
            if not skip(m): mfma(P, mf[m][1][0], FB + 4*(m % NB), mf[m][1][1], mf[m][1][2] or zero)
            if f'{m}' in STS: stamp_it(P, STS[f'{m}'], OPT['sti'])
            if events:
                if m + 2 in CK and not (mode == 'first' and CK[m + 2] == 's90'): F.read(FRL)
                if m in CK and not (mode == 'first' and CK[m] == 's90'): F.check(FRL, CK[m])
                if m == 45 and mode == 'fast': P.ool(['s_cmp_eq_u32 s27, 6'], 's_cbranch_scc1', lambda: e('s_waitcnt vmcnt(0)'), lambda w, it: it == 6)
                if m in POST: F.post(POST[m])
            i = m + LA
            if i >= 64:
                if events: rd(i - 64, 1)
            elif not skip(i) and not (mode in ('redo', 'tail') and i >= CHK): rd(i)
            for o in ops: vop(o, m)
            if events and m % 16 == 6 and mode != 'first':
                P.ool(['s_cmp_eq_u32 s27, 5'], 's_cbranch_scc1', lambda: (ostore(QBr, m // 16 * 2), ostore(QBr, m // 16 * 2 + 1)), lambda w, it: it == 5)
            if events and 50 <= m < 54: e(f'v_xor_b32 v{AK + m - 50}, 0x10000, v{AK + m - 50}')
            if events and m == 47 - LA and mode != 'first':
                for k in range(8): e(f'v_xor_b32 v{AV + k}, 0x10000, v{AV + k}')
    F.need(FRL, 19)
    for i in range(LA):
        if i == LA - 1: F.post(18)
        rd(i)
    for hd in range(2):
        for k in range(0, 64, 2): e(f'v_pk_mul_f32 {vr(hd*64+k,2)}, {vr(hd*64+k,2)}, s[6:7] op_sel:[0,1]')
        qs = []
        for j in range(2):
            for u in range(4):
                q, X, Y = (QA, QBr)[hd] + 16*j + 4*u, hd*64 + 16*u + 4*j, hd*64 + 16*u + 8 + 4*j
                e(f'v_cvt_pk_bf16_f32 v{q}, v{X}, v{X+1}'); e(f'v_cvt_pk_bf16_f32 v{q+1}, v{X+2}, v{X+3}')
                e(f'v_cvt_pk_bf16_f32 v{q+2}, v{Y}, v{Y+1}'); e(f'v_cvt_pk_bf16_f32 v{q+3}, v{Y+2}, v{Y+3}')
                qs.append(q)
        for sw in ('32', '16'):
            for q in qs: e(f'v_permlane{sw}_swap_b32 v{q}, v{q+2}'); e(f'v_permlane{sw}_swap_b32 v{q+1}, v{q+3}')
    def reset():
        for j in range(2): e(f'v_mov_b32 v{L_+j}, 0'); e(f'v_mov_b32 v{R_+j}, 0')
        e(f's_mov_b32 s7, {fbits(64.0):#x}')
    def mreset():
        for j in range(2): e(f'v_mov_b32 v{M_+j}, {fbits(-1e30):#x}')
    reset(); mreset()
    e(f's_mov_b32 s89, {fbits(64.0):#x}'); e('s_mov_b32 s90, 19'); e('s_mov_b32 s94, 19'); e('s_mov_b32 s97, 0xee')
    e('s_lshl_b32 s88, s4, 18'); e('s_add_u32 s99, s88, 131072')
    stamp(P, 3, not OPT['ts2'])
    def xlane(R, op):
        for sw in ('32', '16'):
            for j in range(2): e(f'v_mov_b32 v{T1+j}, v{R+j}')
            for j in range(2): e(f'v_permlane{sw}_swap_b32 v{R+j}, v{T1+j}')
            for j in range(2): e(f'{op} v{R+j}, v{R+j}, v{T1+j}')
    def finish(D, store):
        xlane(L_, 'v_add_f32')
        for j in range(2): e(f'v_rcp_f32 v{L_+j}, v{L_+j}')
        for j in range(2):
            for u in range(4):
                a = O + 32*j + 8*u
                for k in range(0, 8, 2): e(f'v_pk_mul_f32 {vr(a+k,2)}, {vr(a+k,2)}, {vr(L_,2)} ' + ('op_sel:[0,1]' if j else 'op_sel_hi:[1,0]'))
                for k in range(4): e(f'v_cvt_pk_bf16_f32 v{D + 16*j + 4*u + k}, v{a+2*k}, v{a+2*k+1}')
                if store: ostore(D, 4*j + u)
    def body():
        for k in range(1, 4): e(f's_add_u32 s{90+k}, s90, {k}')
        for k in range(1, 3): e(f's_add_u32 s{94+k}, s94, {k}')
        if OPT['st'] == 'I':
            for k in range(1, 7): stamp_it(P, k, k + OPT['sti'])
        def switch():
            for k in range(32): e(f'v_mov_b32 v{QA+k}, v{QBr+k}')
            mreset()
        P.ool(['s_cmp_eq_u32 s27, 4'], 's_cbranch_scc1', switch, lambda w, it: it == 4)
        P.ool(['s_cmp_eq_u32 s27, 0'], 's_cbranch_scc1', lambda: slots(0, CHK, 'first'), lambda w, it: it == 0, lambda: slots(0, CHK, 'fast'))
        def fin_a():
            finish(QBr, False); reset()
        P.ool(['s_cmp_eq_u32 s27, 4'], 's_cbranch_scc1', fin_a, lambda w, it: it == 4)
        e(f'v_max_f32 v{T1}, abs(v{M_}), abs(v{M_+1})')
        e(f'v_cmp_lt_f32 vcc, s7, v{T1}')
        def pv(mode):
            P.ool(['s_bitcmp0_b32 s97, s27'], 's_cbranch_scc1', lambda: slots(CHK, CHK + 8, mode, zero=True), lambda w, it: it % 4 == 0,
                  lambda: slots(CHK, CHK + 8, mode))
            slots(CHK + 8, 64, mode)
        def rest(fast):
            if fast:
                for j in range(2): e(f'v_add_f32 v{L_+j}, v{L_+j}, v{LC+j}')
                pv('fast'); return
            P.wait(lg='all')
            for i in range(LA): rd(i)
            slots(0, CHK, 'redo', events=False)
            xlane(M_, 'v_max_f32')
            for j in range(2):
                e(f'v_sub_f32 v{T1+j}, v{R_+j}, v{M_+j}'); e(f'v_min_f32 v{T1+j}, s89, v{T1+j}'); e(f'v_exp_f32 v{T1+j}, v{T1+j}')
                e(f'v_mov_b32 v{R_+j}, v{M_+j}')
            e('s_mov_b32 s7, -1.0')
            for j in range(2): e(f'v_mul_f32 v{L_+j}, v{L_+j}, v{T1+j}')
            for g in groups:
                for k in range(8): e(f'v_sub_f32 v{gb[g]+k}, v{gb[g]+k}, v{M_+g[1]}')
            for k in range(64): e(f'v_mul_f32 v{O+k}, v{O+k}, v{T1 + k // 32}')
            for m in range(64):
                for o in vpost[m]:
                    if o[0] == 0 and o[2] != 'max': vop(o, m, slow=True)
            for i in range(CHK, CHK + LA): rd(i)
            pv('slow')
        P.ool([], 's_cbranch_vccnz', lambda: rest(False), lambda w, it: (w >> 3) % 2 == 1, lambda: rest(True))
        e('s_add_u32 s90, s90, 4'); e('s_add_u32 s94, s94, 3')
    i0 = len(P.cur)
    P.vm = []
    P.loop(8, 's27', body, lambda t: (t[0] - 1,) + tuple(t[1:]) if isinstance(t, tuple) else t)
    P.wait(lg='all')
    slots(0, CHK, 'tail', events=False)
    e('s_add_u32 s88, s88, 4096'); e('s_add_u32 s99, s99, 4096')
    finish(S, True)
    if OPT['abl2']: P.cur[i0:] = ablate(P.cur[i0:], OPT['abl2'].split())
    stamp(P, 4, not OPT['ts2'])
    gen_oproj(P)

def gen_helper(P, F):
    e = P.e
    kvp, xp, wp = OPT['kv_pol'], OPT['x_pol'], OPT['w_pol']
    O8, Q8, S8, FB, QA8 = 0, 32, 64, 72, 136
    VKV, VW, VX, AK8, AV8, AW8, AX8, L16, FRH = 152, 156, 158, 161, 165, 173, 175, 176, 177
    R_, L_, T, M_, FA, TK = 178, 179, 180, 156, 157, 240
    if OPT['hprio']: e(f's_setprio {OPT["hprio"]}')
    e(f'v_and_b32 v3, 15, v{LANE}'); e(f'v_lshrrev_b32 v4, 4, v{LANE}'); e('v_lshrrev_b32 v5, 2, v3'); e('v_and_b32 v6, 3, v3')
    e(f'v_lshrrev_b32 v7, 2, v{LANE}'); e('v_lshrrev_b32 v8, 2, v7'); e('v_sub_u32 v8, 4, v8'); e('v_and_b32 v8, 3, v8')
    e('v_xor_b32 v8, v8, v6'); e('v_lshlrev_b32 v8, 4, v8')
    e('v_mul_u32_u24 v9, 1152, v7'); e('v_add_u32 v9, v9, v8'); e(f'v_add_u32 v{VX+2}, {128*1152}, v9')
    e('s_mul_i32 s3, s4, 18432'); e(f'v_add_u32 v{VX}, s3, v9'); e(f'v_add_u32 v{VX+1}, 73728, v{VX}')
    e('s_lshl_b32 s5, s4, 10'); e('s_lshl_b32 s6, s4, 11'); e('s_lshl_b32 s59, s4, 12')
    e('s_waitcnt lgkmcnt(0)')
    e('s_cmp_eq_u32 s50, 0')
    for k in range(4): e(f's_cselect_b64 s[{8+2*k}:{9+2*k}], s[{8+2*k}:{9+2*k}], s[{16+2*k}:{17+2*k}]')
    e('s_mul_i32 s3, s52, 165888'); e('s_add_u32 s8, s8, s3'); e('s_addc_u32 s9, s9, 0')
    srd(P, SX, 8, 9, 165888)
    qrot(P); e('s_lshl_b32 s53, s53, 6')
    def qstage(s):
        st, tag = QB0 + sidx(s)*STG, ('q', s)
        for u in range(2):
            e(f's_add_u32 m0, s5, {st + u*4096}')
            P.vmem(f'buffer_load_dwordx4 v{VX+u}, s[{SX}:{SX+3}], s53 offen {xp} lds', tag)
        def x8():
            e(f's_mov_b32 m0, {st + 8192}')
            P.vmem(f'buffer_load_dwordx4 v{VX+2}, s[{SX}:{SX+3}], s53 offen {xp} lds', tag, optional=True)
        P.only(s % 4, x8)
        e('s_add_u32 s53, s53, 64'); e('s_cmp_eq_u32 s53, 1152'); e('s_cselect_b32 s53, 0, s53')
    qstage(0); qstage(1)
    yield
    i00 = len(P.cur)
    def tag():
        e('s_memrealtime s[84:85]'); e('s_waitcnt lgkmcnt(0)'); e('s_or_b32 s84, s84, 1')
        e('v_mov_b32 v7, 0'); e('v_mov_b32 v8, s84')
        e('s_mov_b64 exec, 1')
        P.vmem('global_store_dword v7, v8, s[82:83] sc1', 'tag', optional=True)
        e('s_mov_b64 exec, -1')
    e('s_lshl_b32 s3, s2, 3'); e('s_add_u32 s3, s3, s87')
    P.ool(['s_cmp_eq_u32 s3, 4'], 's_cbranch_scc1', tag, lambda w, it: w == 4)
    if OPT['krot'] == 1: e('s_lshr_b32 s58, s2, 3')
    elif OPT['krot'] == 2: e('s_mov_b32 s58, s2')
    elif OPT['krot'] == 3:
        e('s_lshr_b32 s58, s2, 3'); e('s_add_u32 s58, s58, s2'); e('s_lshr_b32 s3, s2, 6'); e('s_add_u32 s58, s58, s3')
    else: e('s_mov_b32 s58, 0')
    e('s_and_b32 s58, s58, 7'); e('s_lshl_b32 s58, s58, 14')
    e('s_lshl_b32 s3, s52, 5'); e('s_add_u32 s3, s3, s51'); e('s_lshl_b32 s3, s3, 17')
    e('s_add_u32 s10, s10, s3'); e('s_addc_u32 s11, s11, 0'); srd(P, SK, 10, 11, 262144)
    e('s_add_u32 s12, s12, s3'); e('s_addc_u32 s13, s13, 0'); srd(P, SV, 12, 13, 262144)
    o_srd(P)
    if OPT['tlb']:
        e(f'v_and_b32 v7, 7, v{LANE}'); e('v_lshlrev_b32 v7, 15, v7')
        def tk():
            P.vmem(f'buffer_load_dword v252, v7, s[{SK}:{SK+3}], 0 offen nt', 'tl', optional=True)
            P.vmem(f'buffer_load_dword v253, v7, s[{SV}:{SV+3}], 0 offen nt', 'tl', optional=True)
            e(f'v_min_u32 v8, 8, v{LANE}'); e('v_lshlrev_b32 v8, 17, v8')
            P.vmem(f'buffer_store_dword v8, v8, s[{SO}:{SO+3}], 0 offen sc1', 'tl', optional=True)
        P.only(1, tk)
    for t in range(4):
        e(f'v_add_u32 v7, {4*t}, v4'); femit(P, 8, 7, 9, 10)
        e('v_xor_b32 v8, v8, v3'); e('v_lshlrev_b32 v8, 4, v8'); e('v_lshl_add_u32 v8, v4, 8, v8'); e(f'v_add_u32 v{VKV+t}, s59, v8')
    femit(P, 8, 3, 9, 10)
    e('v_xor_b32 v8, v8, v4'); e('v_lshlrev_b32 v8, 4, v8'); e('v_lshl_add_u32 v8, v3, 8, v8'); e(f'v_add_u32 v{AK8}, s59, v8')
    for u in range(1, 4): e(f'v_xor_b32 v{AK8+u}, {u << 6}, v{AK8}')
    def traddr16(dst, shift, base_s, base):
        e(f'v_lshl_add_u32 v7, v4, {shift}, v5'); e('v_and_b32 v11, 15, v7'); femit(P, 8, 11, 9, 10)
        e('v_lshrrev_b32 v9, 1, v6'); e('v_xor_b32 v8, v8, v9'); e('s_lshl_b32 s3, s4, 2'); e('v_xor_b32 v8, s3, v8')
        e('v_lshlrev_b32 v8, 4, v8'); e('v_and_b32 v9, 1, v6'); e('v_lshl_or_b32 v8, v9, 3, v8'); e('v_lshl_add_u32 v8, v7, 8, v8')
        if base_s: e(f'v_add_u32 v8, {base_s}, v8')
        e(f'v_add_u32 v{dst}, {base}, v8')
    traddr16(AV8, 2, 's59', 32768)
    for d in range(1, 8): e(f'v_xor_b32 v{AV8+d}, {d << 5}, v{AV8}')
    traddr16(AW8, 3, None, QB0 + XB); e(f'v_xor_b32 v{AW8+1}, 32, v{AW8}')
    e('v_sub_u32 v8, 4, v5'); e('v_and_b32 v8, 3, v8'); e('v_xor_b32 v8, v8, v4'); e('v_lshlrev_b32 v8, 4, v8')
    e('v_lshl_add_u32 v8, v3, 6, v8'); e(f'v_add_u32 v{AX8}, {QB0 + 8192}, v8')
    e(f'v_lshlrev_b32 v{L16}, 4, v{LANE}')
    AW8b = 183
    for k in range(3): e(f'v_add_u32 v{AW8b+k}, {2*STG}, v{AW8+k}')
    e(f'v_add_u32 v{FRH}, {FLG + 512 - (FLG + 1536)}, v{FRL}')
    def item(n):
        S = SK if n % 4 < 2 else SV
        e(f's_add_u32 m0, s59, {(n % 8)*16384}')
        e(f's_xor_b32 s26, s58, {(n // 4)*32768 + (n % 2)*16384}')
        for t in range(4):
            if 'kv8' in OPT['abl2'] and n >= 8: continue
            P.vmem(f'buffer_load_dwordx4 v{VKV+t}, s[{S}:{S+3}], s26 offen offset:{t*1024} {kvp} lds', ('kv', n))
    SEQ = [0, 1, 2] + [x for c in range(1, 8) for x in (4*c, 4*c - 1, 4*c + 1, 4*c + 2)] + [31]
    def cneed(n):
        c, k = (n - 8) // 4, n % 4
        return 19 + 3*c + (1, 1, 2, 3)[k]
    EA = [int(x) for x in OPT['ea'].split(',')]
    P.wait(vm=('q', 0)); e('s_barrier')
    stamp(P, 1, not OPT['ts2'])
    qstage(2)
    for s in range(18):
        a, off = (AW8, sidx(s)*STG) if sidx(s) < 2 else (AW8b, (sidx(s) - 2)*STG)
        P.ds(f'ds_read_b128 {vr(FB,4)}, v{a+2} offset:{off}', 'b')
        for hd in range(2):
            for dd in range(2):
                b = FB + 4 + 8*hd + 4*dd if hd == 0 else S8 + 4*dd
                P.ds(f'ds_read_b64_tr_b16 {vr(b,2)}, v{a+dd} offset:{off + hd*8192}', ('a', hd, dd))
                P.ds(f'ds_read_b64_tr_b16 {vr(b+2,2)}, v{a+(dd^1)} offset:{off + hd*8192 + 1024}', ('a', hd, dd))
        if s + 3 < 18: qstage(s + 3)
        for i, x in enumerate(EA):
            if x == s: item(i)
        for hd in range(2):
            for dd in range(2):
                P.wait(lg=('a', hd, dd)); mfma(P, QA8 + 8*hd + 4*dd, FB + 4 + 8*hd + 4*dd if hd == 0 else S8 + 4*dd, FB, s == 0)
        if s < 17: P.wait(vm=('q', s + 1))
        e('s_barrier')
    stamp(P, 2, not OPT['ts2'])
    for i, x in enumerate(EA):
        if x == 18: item(i)
    item(SEQ[3])
    P.wait(vm=('kv', 0)); F.post(19, 1024); item(SEQ[4])
    for k in range(16): e(f'v_mul_f32 v{QA8+k}, s7, v{QA8+k}')
    e(f's_add_u32 s3, s5, {XCH}'); e(f'v_add_u32 v{T}, s3, v{L16}')
    for hd in range(2):
        d, X, Y = FB + 4*hd, QA8 + 8*hd, QA8 + 8*hd + 4
        e(f'v_cvt_pk_bf16_f32 v{d}, v{X}, v{X+1}'); e(f'v_cvt_pk_bf16_f32 v{d+1}, v{X+2}, v{X+3}')
        e(f'v_cvt_pk_bf16_f32 v{d+2}, v{Y}, v{Y+1}'); e(f'v_cvt_pk_bf16_f32 v{d+3}, v{Y+2}, v{Y+3}')
        for sw in ('32', '16'):
            e(f'v_permlane{sw}_swap_b32 v{d}, v{d+2}'); e(f'v_permlane{sw}_swap_b32 v{d+1}, v{d+3}')
        P.ds(f'ds_write_b128 v{T}, {vr(d,4)} offset:{hd*4096}', 'xw')
    e(f's_mov_b32 s89, {fbits(64.0):#x}')
    hep = [1000]
    def hsync():
        P.wait(lg='all'); hep[0] += 1
        F.post(hep[0]); F.need(FRH, hep[0])
    hsync()
    e(f'v_add_u32 v{T}, {XCH}, v{L16}')
    for k in range(8): P.ds(f'ds_read_b128 {vr(Q8+4*k,4)}, v{T} offset:{k*1024}', 'q8')
    P.wait(lg='all')
    stamp(P, 3, not OPT['ts2'])
    e('s_mov_b32 s98, 19')
    def postL(v):
        e(f's_max_u32 s98, s98, {v}'); F.post('s98', 1024)
    def touch():
        e('s_getpc_b64 s[56:57]'); lb = P.newlab('pc'); P.lab(lb)
        e(f's_sub_u32 s56, s56, {lb}-{KNAME}'); e('s_subb_u32 s57, s57, 0')
        e(f'v_lshlrev_b32 v242, 7, v{LANE}'); e('s_lshl_b32 s3, s4, 14'); e('v_add_u32 v242, s3, v242')
        e(f's_mov_b32 s3, .Lcode_end-{KNAME}-4')
        for k in range(2):
            e(f'v_min_u32 v243, s3, v242'); P.vmem(f'global_load_dword v{244+k}, v243, s[56:57]', 'ct', optional=True)
            e('v_add_u32 v242, 8192, v242')
    def need_free(val, lv, nxt):
        F.read(FRC); P.wait(lg='fr')
        def slow():
            done = P.newlab('nf')
            vm0 = list(P.vm)
            for i, tg in enumerate(nxt):
                if not any(t[0] == tg for t in P.vm): break
                P.wait(vm=tg); e(f's_add_u32 s3, {lv}, {i + 1}'); postL('s3')
                e(f'ds_read_b32 v{FT}, v{FRC}'); e('s_waitcnt lgkmcnt(0)')
                e(f'v_cmp_gt_u32 vcc, {val}, v{FT}'); e(f's_cbranch_vccz {done}')
            sp = P.newlab('sp'); P.lab(sp)
            e(f's_sleep {OPT["slp"]}'); e(f'ds_read_b32 v{FT}, v{FRC}'); e('s_waitcnt lgkmcnt(0)')
            e(f'v_cmp_gt_u32 vcc, {val}, v{FT}'); e(f's_cbranch_vccnz {sp}')
            P.lab(done)
            P.vm = vm0
        P.ool([f'v_cmp_gt_u32 vcc, {val}, v{FT}'], 's_cbranch_vccnz', slow, lambda w, it: False)
    def scores():
        for tt in range(2):
            for u in range(4): P.ds(f'ds_read_b128 {vr(FB + 16*tt + 4*u, 4)}, v{AK8+u} offset:{tt*16384}', ('k', tt, u))
        for tt in range(2):
            for u in range(4):
                P.wait(lg=('k', tt, u)); mfma(P, S8 + 4*tt, FB + 16*tt + 4*u, Q8 + 4*u, u == 0)
        for u in range(4): e(f'v_xor_b32 v{AK8+u}, 0x10000, v{AK8+u}')
        for k in range(4): e(f'v_max3_f32 v{M_}, v{M_}, v{S8+2*k}, v{S8+2*k+1}')
        e(f'v_cmp_lt_f32 vcc, s7, abs(v{M_})')
        def shift():
            for sw in ('32', '16'):
                e(f'v_mov_b32 v{T}, v{M_}'); e(f'v_permlane{sw}_swap_b32 v{M_}, v{T}'); e(f'v_max_f32 v{M_}, v{M_}, v{T}')
            e(f'v_sub_f32 v{T}, v{R_}, v{M_}'); e(f'v_min_f32 v{T}, s89, v{T}'); e(f'v_exp_f32 v{T}, v{T}')
            e(f'v_mov_b32 v{R_}, v{M_}'); e('s_mov_b32 s7, -1.0')
            for k in range(8): e(f'v_sub_f32 v{S8+k}, v{S8+k}, v{M_}')
            e(f'v_mul_f32 v{L_}, v{L_}, v{T}')
            for k in range(32): e(f'v_mul_f32 v{O8+k}, v{O8+k}, v{T}')
        P.ool([], 's_cbranch_vccnz', shift, lambda w, it: (w >> 3) % 2 == 1)
        for k in range(8): e(f'v_exp_f32 v{S8+k}, v{S8+k}')
        for k in range(8): e(f'v_add_f32 v{L_}, v{L_}, v{S8+k}')
        for k in range(4): e(f'v_cvt_pk_bf16_f32 v{S8+k}, v{S8+2*k}, v{S8+2*k+1}')
    def pv8():
        def rv(d):
            P.ds(f'ds_read_b64_tr_b16 {vr(FB + 4*d, 2)}, v{AV8+d}', ('v', d))
            P.ds(f'ds_read_b64_tr_b16 {vr(FB + 4*d + 2, 2)}, v{AV8+d} offset:16384', ('v', d))
        for d in range(6): rv(d)
        for d in range(8):
            P.wait(lg=('v', d)); mfma(P, O8 + 4*d, FB + 4*d, S8)
            if d < 2: rv(6 + d)
        for d in range(8): e(f'v_xor_b32 v{AV8+d}, 0x10000, v{AV8+d}')
    def hreset():
        for k in range(32): e(f'v_mov_b32 v{O8+k}, 0')
        e(f'v_mov_b32 v{M_}, {fbits(-1e30):#x}'); e(f'v_mov_b32 v{L_}, 0'); e(f'v_mov_b32 v{R_}, 0'); e(f's_mov_b32 s7, {fbits(64.0):#x}')
    def combine(head):
        for sw in ('32', '16'):
            e(f'v_mov_b32 v{T}, v{L_}'); e(f'v_permlane{sw}_swap_b32 v{L_}, v{T}'); e(f'v_add_f32 v{L_}, v{L_}, v{T}')
        for q in range(1, 4):
            e(f's_xor_b32 s3, s4, {q}'); e('s_mul_i32 s3, s3, 6144'); e(f's_add_u32 s3, s3, {XCH + (q-1)*2048}')
            e(f'v_add_u32 v{T}, s3, v{L16}')
            for k in range(2): P.ds(f'ds_write_b128 v{T}, {vr(O8 + 8*q + 4*k, 4)} offset:{k*1024}', 'cw')
        e(f'v_lshrrev_b32 v{T+1}, 1, v{L16}'); e('s_lshl_b32 s3, s4, 9'); e(f's_add_u32 s3, s3, {XCH + 24576}')
        e(f'v_add_u32 v{T+1}, s3, v{T+1}')
        P.ds(f'ds_write_b64 v{T+1}, {vr(R_,2)}', 'cw')
        hsync()
        e('s_mul_i32 s3, s4, 6144'); e(f's_add_u32 s3, s3, {XCH}'); e(f'v_add_u32 v{T}, s3, v{L16}')
        ST, CB, W = FB, FB + 8, S8
        for q in range(1, 4):
            e(f'v_xor_b32 v{FT}, {q << 9}, v{T+1}')
            P.ds(f'ds_read_b64 {vr(ST + 2*q, 2)}, v{FT}', 'cs')
        for q in range(1, 4):
            for k in range(2): P.ds(f'ds_read_b128 {vr(CB + 8*q + 4*k, 4)}, v{T} offset:{(q-1)*2048 + k*1024}', ('co', q))
        e(f'v_mov_b32 v{ST}, v{R_}'); e(f'v_mov_b32 v{ST+1}, v{L_}')
        P.wait(lg='cs')
        e(f'v_max3_f32 v{W}, v{ST}, v{ST+2}, v{ST+4}'); e(f'v_max_f32 v{W}, v{W}, v{ST+6}')
        for q in range(4): e(f'v_sub_f32 v{W+4+q}, v{ST+2*q}, v{W}')
        for q in range(4): e(f'v_exp_f32 v{W+4+q}, v{W+4+q}')
        e(f'v_mul_f32 v{W+1}, v{W+4}, v{ST+1}')
        for q in range(1, 4): e(f'v_fma_f32 v{W+1}, v{W+4+q}, v{ST+2*q+1}, v{W+1}')
        e(f'v_rcp_f32 v{W+1}, v{W+1}')
        for q in range(4): e(f'v_mul_f32 v{W+4+q}, v{W+4+q}, v{W+1}')
        for k in range(8): e(f'v_mul_f32 v{O8+k}, v{O8+k}, v{W+4}')
        for q in range(1, 4):
            P.wait(lg=('co', q))
            for k in range(8): e(f'v_fma_f32 v{O8+k}, v{CB+8*q+k}, v{W+4+q}, v{O8+k}')
        for k in range(4): e(f'v_cvt_pk_bf16_f32 v{W+k}, v{O8+2*k}, v{O8+2*k+1}')
        e(f's_add_u32 s26, s5, {1048576 + head*4096}')
        P.vmem(f'buffer_store_dwordx4 {vr(W,4)}, v{L16}, s[{SO}:{SO+3}], s26 offen {OPT["o_st"]}', 'st', optional=True)
    P.wait(vm=('kv', 1)); postL(20); item(SEQ[5])
    hreset(); scores()
    P.wait(vm=('kv', 2)); postL(21); item(SEQ[6])
    e('s_load_dwordx2 s[8:9], s[0:1], 32'); e('s_load_dwordx2 s[10:11], s[0:1], 72'); e('s_load_dwordx2 s[12:13], s[0:1], 96')
    e(f'v_mov_b32 v{VX}, 0')
    P.vmem(f'global_load_dword v{VX+1}, v{VX}, s[82:83] sc1', 'tagld', optional=True)
    e('s_lshl_b32 s3, s50, 3'); e('s_add_u32 s3, s3, s52'); e('s_lshl_b32 s3, s3, 4'); e('s_lshr_b32 s26, s51, 1'); e('s_add_u32 s3, s3, s26')
    e('s_lshl_b32 s3, s3, 7'); e(f's_add_u32 s3, s3, {FLAGOFF}'); e(f'v_mov_b32 v{FA}, s3')
    e('s_mov_b32 s20, 22'); e('s_mov_b32 s21, 19'); e('s_mov_b32 s22, 65536'); e('s_mov_b32 s23, s59')
    e('s_mov_b32 s18, 32768'); e('s_add_u32 s19, s59, 65536')
    e('s_waitcnt lgkmcnt(0)'); P.lg = []
    P.vm = [(('kv', -1), False)] * 4 + [(('kv', k), False) for k in range(3) for _ in range(4)] + [('tagld', True)]
    def tr(v):
        if OPT['trace']:
            e('s_memrealtime s[76:77]'); e('s_sub_u32 m0, s24, 19'); e('s_waitcnt lgkmcnt(0)'); e('s_sub_u32 s76, s76, s60'); e(f'v_writelane_b32 v{v}, s76, m0')
    KIND = [(0, 1, 1), (3, 0, 0), (1, 1, 1), (2, 1, 2)]
    def step(k, issue=True):
        P.wait(vm=('kv', k - 1)); e(f's_add_u32 s24, s20, {k}'); postL('s24')
        tr(246)
        if not issue: return
        kind, nx, co = KIND[k]
        e(f's_add_u32 s25, s21, {co}')
        need_free('s25', 's24', [('kv', k + i) for i in range(3)])
        tr(247)
        S = SK if kind < 2 else SV
        e(f's_add_u32 m0, {"s23" if nx else "s19"}, {kind*16384}')
        e(f's_add_u32 s26, {"s22" if nx else "s18"}, {(kind % 2)*16384}')
        for t in range(4):
            P.vmem(f'buffer_load_dwordx4 v{VKV+t}, s[{S}:{S+3}], s26 offen offset:{t*1024} {kvp} lds', ('kv', k + 3))
        tr(248)
    def wtouch():
        e(f'v_lshlrev_b32 v{VX+2}, 7, v{LANE}'); e('s_lshl_b32 s3, s4, 13'); e(f'v_add_u32 v{VX+2}, s3, v{VX+2}')
        e('s_and_b32 s3, s2, 127'); e('s_mul_i32 s3, s3, 36864')
        e('s_cmp_lt_u32 s2, 128'); e('s_cselect_b64 s[8:9], s[8:9], s[10:11]')
        e('s_add_u32 s8, s8, s3'); e('s_addc_u32 s9, s9, 0'); srd(P, SX, 8, 9, 36864)
        if OPT['wpf']:
            e('s_mov_b32 s26, 32768')
            P.vmem(f'buffer_load_dword v250, v{VX+2}, s[{SX}:{SX+3}], 0 offen', 'wt', optional=True)
            P.vmem(f'buffer_load_dword v251, v{VX+2}, s[{SX}:{SX+3}], s26 offen', 'wt', optional=True)
    H = OprojHelper(P, VX + 1)
    def hbody():
        step(0)
        step(1); pv8()
        def mid():
            combine(0); hreset()
            for k in range(16): e(f'v_mov_b32 v{Q8+k}, v{Q8+16+k}')
            if OPT['rtc']: touch()
        P.ool(['s_cmp_eq_u32 s27, 3'], 's_cbranch_scc1', mid, lambda w, it: it == 3)
        step(2); scores()
        step(3)
        e('s_add_u32 s20, s20, 4'); e('s_add_u32 s21, s21, 3'); e('s_mov_b32 s18, s22'); e('s_add_u32 s22, s22, 32768')
        e('s_xor_b32 s23, s23, 65536'); e('s_xor_b32 s19, s19, 65536')
    P.loop(6, 's27', hbody, lambda t: ('kv', t[1] - 4) if t[0] == 'kv' else t)
    P.vm = [(('kv', t[0][1] - 4), t[1]) if t[0][0] == 'kv' else t for t in P.vm]
    step(0, False)
    if OPT['wpos'] == 27: wtouch()
    if OPT['rtc']: touch()
    def respin():
        sp = P.newlab('tg'); P.lab(sp)
        e('s_sleep 8'); e(f'global_load_dword v{VX+1}, v{VX}, s[82:83] sc1'); e('s_waitcnt vmcnt(0)')
        e(f'v_cmp_eq_u32 vcc, 0, v{VX+1}'); e(f's_cbranch_vccnz {sp}')
    P.ool([f'v_cmp_eq_u32 vcc, 0, v{VX+1}'], 's_cbranch_vccnz', respin, lambda w, it: False)
    step(1)
    hsync()
    def sig_a():
        e(f'v_mov_b32 v{T}, {NONCE}')
        e('s_mov_b64 exec, 1')
        P.vmem(f'global_store_dword v{FA}, v{VX+1}, s[12:13] offset:64 sc1', 'fa', optional=True)
        e(f'ds_write_b32 v{T}, v{VX+1}')
        e('s_mov_b64 exec, -1'); e('s_waitcnt lgkmcnt(0)')
    P.only(0, sig_a)
    pv8()
    step(2, False); scores()
    H.setup()
    step(3, False)
    P.wait(vm='f'); postL(50)
    wtouch()
    def pre():
        F.need(FRC, 41); H.first()
    P.only(None, pre, pred=lambda w, it: True, cmp='s_cmp_lt_u32 s2, 216')
    pv8(); combine(1)
    ab = (OPT['abl'] + ' ' + OPT['abl2']).split()
    if ab: P.cur[i00:] = ablate(P.cur[i00:], [x for x in ab if x in ('dma', 'qdma', 'st')] + (['mfma', 'ds', 'valu'] if 'hc' in ab else []))
    stamp(P, 4, not OPT['ts2'])
    def signal():
        e('s_mov_b64 exec, 1')
        e(f'global_store_dword v{FA}, v{VX+1}, s[12:13] sc1')
        e('s_mov_b64 exec, -1')
    def idle():
        e('s_waitcnt vmcnt(0)'); e('s_barrier')
        P.only(0, signal)
        e('s_branch .Lk1_fin')
    P.ool(['s_cmp_ge_u32 s2, 216'], 's_cbranch_scc1', idle, lambda w, it: False)
    H.run(signal)

WST, OST, OR0, NS = 12288, 8192, 49152, 4
PBUF, FLAG2 = 0x2800000, 0x2100000

def op_ids(P):
    e = P.e
    e('s_and_b32 s48, s2, 3'); e('s_bfe_u32 s50, s2, 0x10002'); e('s_lshr_b32 s49, s2, 3')
    e('s_mul_i32 s51, s49, 43'); e('s_lshr_b32 s51, s51, 7'); e('s_mul_i32 s3, s51, 3'); e('s_sub_u32 s52, s49, s3')
    e('s_mul_i32 s53, s50, 27'); e('s_add_u32 s53, s53, s49')

def kstep(P, cnt, dst):
    e = P.e
    e(f's_and_b32 {dst}, {cnt}, 31'); e(f's_add_u32 {cnt}, {cnt}, 1'); e(f's_and_b32 s3, {cnt}, 4'); e(f's_bitcmp1_b32 {cnt}, 6')
    e(f's_cselect_b32 s57, 4, 0'); e('s_xor_b32 s3, s3, s57'); e(f's_add_u32 {cnt}, {cnt}, s3')
    e(f's_cmp_eq_u32 {cnt}, 32'); e(f's_cselect_b32 {cnt}, 68, {cnt}')

def poll_fn(P, val, ad, base, tag):
    def poll():
        sp = P.newlab('fl'); P.lab(sp)
        P.e('s_sleep 4'); P.e(f'global_load_dword v{val}, v{ad}, {base} sc1'); P.e('s_waitcnt vmcnt(0)')
        P.e(f'v_cmp_ne_u32 vcc, v{tag}, v{val}'); P.e(f's_cbranch_vccnz {sp}')
    return poll

class OprojHelper:
    SWO, SO2 = 36, 40
    VW3, VO, FLA, FLV, t = 200, 203, 205, 206, 208
    def __init__(s, P, tag): s.P, s.TAG = P, tag
    def setup(s):
        P = s.P; e = P.e; t = s.t
        op_ids(P)
        for b3 in range(3):
            e(f'v_add_u32 v{t}, {64*b3}, v{LANE}'); e(f'v_mul_u32_u24 v{t+1}, 2731, v{t}'); e(f'v_lshrrev_b32 v{t+1}, 16, v{t+1}')
            e(f'v_mul_u32_u24 v{t+2}, 24, v{t+1}'); e(f'v_sub_u32 v{t+2}, v{t}, v{t+2}')
            e(f'v_bfe_u32 v{t+3}, v{t+1}, 1, 2'); e(f'v_lshlrev_b32 v{t+3}, 1, v{t+3}'); e(f'v_xor_b32 v{t+2}, v{t+2}, v{t+3}'); e(f'v_lshlrev_b32 v{t+2}, 4, v{t+2}')
            e('s_lshl_b32 s3, s4, 3'); e(f'v_add_u32 v{t+1}, s3, v{t+1}'); e(f'v_mul_u32_u24 v{t+1}, 1152, v{t+1}'); e(f'v_add_u32 v{s.VW3+b3}, v{t+1}, v{t+2}')
        e('s_xor_b32 s3, s4, s48'); e('s_lshl_b32 s3, s3, 18'); e(f'v_lshlrev_b32 v{t}, 4, v{LANE}'); e(f'v_add_u32 v{s.VO}, s3, v{t}')
        e(f'v_add_u32 v{s.VO+1}, 131072, v{s.VO}')
        e('s_mul_i32 s14, s4, 3072'); e('s_lshl_b32 s15, s4, 11'); e(f's_add_u32 s15, s15, {OR0}')
        e('s_cmp_eq_u32 s50, 0'); e('s_cselect_b64 s[16:17], s[8:9], s[10:11]')
        e(f's_mul_i32 s3, s48, {1024*1152}'); e('s_mul_i32 s26, s52, 384'); e('s_add_u32 s3, s3, s26')
        e('s_add_u32 s16, s16, s3'); e('s_addc_u32 s17, s17, 0'); srd(P, s.SWO, 16, 17, 1023*1152 + 384)
        e('s_mul_i32 s3, s50, 72'); e('s_lshl_b32 s26, s51, 3'); e('s_add_u32 s3, s3, s26'); e('s_lshl_b32 s3, s3, 2'); e('s_add_u32 s3, s3, s48')
        e('s_lshl_b32 s3, s3, 15'); e('s_add_u32 s16, s12, s3'); e('s_addc_u32 s17, s13, 0'); srd(P, s.SO2, 16, 17, 7*131072 + 32768)
        e('s_lshl_b32 s3, s51, 3'); e('s_add_u32 s26, s3, 7'); e('s_mul_i32 s3, s3, 57'); e('s_lshr_b32 s3, s3, 9'); e('s_mul_i32 s26, s26, 57'); e('s_lshr_b32 s26, s26, 9')
        e('s_min_u32 s3, s3, 7'); e('s_min_u32 s26, s26, 7')
        e(f'v_mov_b32 v{t}, s3'); e(f'v_mov_b32 v{t+1}, s26'); e(f'v_and_b32 v{t+2}, 4, v{LANE}'); e(f'v_cmp_eq_u32 vcc, 0, v{t+2}'); e('s_nop 1')
        e(f'v_cndmask_b32 v{t}, v{t+1}, v{t}, vcc')
        e('s_lshl_b32 s3, s50, 5'); e('s_add_u32 s3, s3, s48'); e('s_lshl_b32 s3, s3, 2')
        e(f'v_lshlrev_b32 v{t}, 4, v{t}'); e(f'v_and_b32 v{t+1}, 3, v{LANE}'); e(f'v_add3_u32 v{t}, v{t}, v{t+1}, s3')
        e(f'v_lshlrev_b32 v{t}, 7, v{t}'); e(f'v_add_u32 v{s.FLA}, {FLAGOFF + 64}, v{t}')
        e('s_mov_b32 s54, 0'); e('s_mov_b32 s55, 0')
        P.vmem(f'global_load_dword v{s.FLV}, v{s.FLA}, s[12:13] sc1', 'f')
    def pages(s):
        P = s.P; e = P.e; t = s.t
        e('s_load_dwordx2 s[16:17], s[0:1], 80')
        e(f'v_lshlrev_b32 v{t}, 16, v{LANE}'); e(f'v_min_u32 v{t+1}, 40, v{LANE}'); e(f'v_lshlrev_b32 v{t+1}, 16, v{t+1}')
        e('s_waitcnt lgkmcnt(0)')
        def f():
            P.vmem(f'global_load_dword v252, v{t}, s[8:9]', 'tl', optional=True)
            P.vmem(f'global_load_dword v253, v{t}, s[10:11]', 'tl', optional=True)
            P.vmem(f'global_load_dword v254, v{t+1}, s[16:17]', 'tl', optional=True)
        P.only(2, f)
    def wo(s, k, opt=False):
        P = s.P; kstep(P, 's54', 's56'); P.e('s_mul_i32 s56, s56, 36864')
        for b3 in range(3):
            P.e(f's_add_u32 m0, s14, {(k % NS)*WST + b3*1024}')
            P.vmem(f'buffer_load_dwordx4 v{s.VW3+b3}, s[{s.SWO}:{s.SWO+3}], s56 offen lds', ('L', k), optional=opt)
    def oo(s, k, opt=False):
        P = s.P; kstep(P, 's55', 's56'); P.e('s_lshl_b32 s56, s56, 10')
        for x in range(2):
            P.e(f's_add_u32 m0, s15, {(k % NS)*OST + x*1024}')
            P.vmem(f'buffer_load_dwordx4 v{s.VO+x}, s[{s.SO2}:{s.SO2+3}], s56 offen sc1 lds', ('L', k), optional=opt)
    def check(s):
        s.P.ool([f'v_cmp_ne_u32 vcc, v{s.TAG}, v{s.FLV}'], 's_cbranch_vccnz', poll_fn(s.P, s.FLV, s.FLA, 's[12:13]', s.TAG), lambda w, it: False)
    def first(s):
        s.check()
        for k in range(NS): s.wo(k, True); s.oo(k, True)
    def run(s, signal):
        P = s.P; e = P.e
        e('s_waitcnt vmcnt(16)'); e('s_barrier')
        stamp(P, 5, not OPT['ts2'])
        P.vm = [(('F', -3), False)] + [(('L', k), False) for k in (1, 2, 3) for _ in range(5)]
        def body():
            for k in range(NS):
                P.wait(vm=('L', k + 1)); e('s_barrier')
                if k == 0:
                    e('s_cmp_eq_u32 s27, 7'); e(f's_cselect_b32 s59, {BIG}, 0')
                    for r in range(5): e(f'v_add_u32 v{s.VW3+r}, s59, v{s.VW3+r}')
                if k == 1:
                    e('s_cmp_eq_u32 s27, 2'); e('s_cselect_b32 s57, 64, 0'); e(f'v_subrev_u32 v{s.FLA}, s57, v{s.FLA}')
                    P.vmem(f'global_load_dword v{s.FLV}, v{s.FLA}, s[12:13] sc1', ('F', 1))
                if k == 3:
                    e('s_lshl_b32 s3, s27, 2'); e('s_add_u32 s3, s3, s4')
                    P.ool(['s_cmp_eq_u32 s3, 0'], 's_cbranch_scc1', signal, lambda w, it: False)
                s.wo(k + NS)
                if k == 0: s.check()
                s.oo(k + NS)
        P.loop(8, 's27', body, lambda t: (t[0], t[1] - NS) if isinstance(t, tuple) else t)
        stamp(P, 6, not OPT['ts2'])
        e('s_barrier')
        def sig2():
            e('s_lshl_b32 s3, s53, 2'); e('s_add_u32 s3, s3, s48'); e('s_lshl_b32 s3, s3, 7'); e(f's_add_u32 s3, s3, {FLAG2}'); e('v_mov_b32 v2, s3')
            e('s_mov_b64 exec, 1'); e(f'global_store_dword v2, v{s.TAG}, s[12:13] sc1'); e('s_mov_b64 exec, -1')
        P.only(0, sig2)

def gen_oproj(P):
    e = P.e
    SP, SOUT = 28, 32
    ACC, AF, BF, AA, AB, L16, VOUT, FLA, FLV, TAG = 0, 96, 144, 176, 182, 183, 184, 185, 186, 235
    def idle():
        e('s_waitcnt vmcnt(0)'); e('s_barrier'); e('s_branch .Lk1_fin')
    P.ool(['s_cmp_ge_u32 s2, 216'], 's_cbranch_scc1', idle, lambda w, it: False)
    e('s_load_dwordx2 s[12:13], s[0:1], 80'); e('s_load_dwordx2 s[14:15], s[0:1], 96')
    e('v_mbcnt_lo_u32_b32 v0, -1, 0'); e('v_mbcnt_hi_u32_b32 v0, -1, v0')
    e('v_and_b32 v3, 15, v0'); e('v_lshrrev_b32 v4, 4, v0'); e('v_lshrrev_b32 v5, 2, v3'); e('v_and_b32 v6, 3, v3')
    e(f'v_lshlrev_b32 v{L16}, 4, v0')
    e('s_and_b32 s5, s4, 1'); e('s_lshr_b32 s6, s4, 1')
    e('v_lshl_add_u32 v7, v4, 2, v5'); e('v_bfe_u32 v8, v7, 1, 2'); e('v_mul_u32_u24 v7, 384, v7'); e('v_lshl_add_u32 v7, v6, 3, v7')
    e('s_mul_i32 s3, s5, 6')
    for k in range(6):
        e(f's_add_u32 s26, s3, {k}'); e('v_xor_b32 v9, s26, v8'); e(f'v_lshl_add_u32 v{AA+k}, v9, 5, v7')
    e('s_lshl_b32 s3, s6, 12'); e(f's_add_u32 s3, s3, {OR0}'); e(f'v_add_u32 v{AB}, s3, v{L16}')
    e('v_mul_u32_u24 v7, 2304, v3'); e('v_lshl_add_u32 v7, v4, 4, v7'); e('s_mul_i32 s3, s5, 192'); e(f'v_add_u32 v{VOUT}, s3, v7')
    e('v_and_b32 v7, 3, v0'); e('v_max_u32 v7, 1, v7'); e(f'v_mov_b32 v{FLA}, v7')
    for i in range(96): e(f'v_mov_b32 v{i}, 0')
    e('s_waitcnt lgkmcnt(0)'); P.vm = []; P.lg = []
    e('s_barrier')
    stamp(P, 5, not OPT['ts2'])
    def ids():
        op_ids(P)
        e(f'v_mov_b32 v{TAG}, {NONCE}'); P.ds(f'ds_read_b32 v{TAG}, v{TAG}', 'n')
        e('s_mul_i32 s3, s53, 294912'); e(f's_add_u32 s3, s3, {PBUF}'); e('s_add_u32 s8, s14, s3'); e('s_addc_u32 s9, s15, 0'); srd(P, SP, 8, 9, 294912)
        e('s_lshl_b32 s3, s51, 2'); e('s_add_u32 s3, s3, s48'); e(f's_mul_i32 s3, s3, {32*2304}'); e('s_mul_i32 s26, s50, 1152'); e('s_add_u32 s3, s3, s26')
        e('s_mul_i32 s26, s52, 384'); e('s_add_u32 s3, s3, s26'); e('s_add_u32 s12, s12, s3'); e('s_addc_u32 s13, s13, 0'); srd(P, SOUT, 12, 13, 31*2304 + 384)
        e(f'v_xor_b32 v{FLA}, s48, v{FLA}'); e('s_lshl_b32 s3, s53, 2'); e(f'v_add_u32 v{FLA}, s3, v{FLA}'); e(f'v_lshlrev_b32 v{FLA}, 7, v{FLA}')
        e(f'v_add_u32 v{FLA}, {FLAG2}, v{FLA}')
    def reads(s):
        a, b = AF + 24*(s % 2), BF + 16*(s % 2)
        rb = [(lambda l=l: P.ds(f'ds_read_b128 {vr(b + 4*l, 4)}, v{AB} offset:{(s % NS)*OST + l*1024}', ('R', s))) for l in range(4)]
        ra = [(lambda k=k, hf=hf: P.ds(f'ds_read_b64_tr_b16 {vr(a + 4*k + 2*hf, 2)}, v{AA+k} offset:{(s % NS)*WST + hf*6144}', ('R', s)))
              for k in range(6) for hf in range(2)]
        return rb[:1] + ra[:6] + rb[1:2] + ra[6:] + rb[2:]
    for i, f in enumerate(reads(0)):
        if i == 12: e('s_waitcnt lgkmcnt(8)'); P.lg = P.lg[-8:]
        f()
    ids()
    def body():
        for s in range(NS):
            P.wait(lg='all')
            if s == 3: e('s_waitcnt vmcnt(0)')
            e('s_barrier')
            rs = reads(s + 1)
            for n in range(24):
                l, k = n // 6, n % 6
                mfma(P, ACC + (l*6 + k)*4, AF + 24*(s % 2) + 4*k, BF + 16*(s % 2) + 4*l)
                if n == 13: e('s_waitcnt lgkmcnt(8)'); P.lg = P.lg[-8:]
                if n < 16: rs[n]()
    P.lg = [('R', 0)] * 11
    P.loop(8, 's27', body, lambda t: (t[0], t[1] - NS))
    stamp(P, 6, not OPT['ts2'])
    P.wait(lg='all')
    def send(half, r):
        e(f's_xor_b32 s3, s48, {r}'); e('s_mul_i32 s3, s3, 73728'); e('s_mul_i32 s26, s5, 12288'); e('s_add_u32 s3, s3, s26')
        for t in range(12):
            if t % 4 == 0: e(f's_add_u32 s26, s3, {(r - 1)*24576 + t*1024}')
            P.vmem(f'buffer_store_dwordx4 {vr(ACC + (half*12 + t)*4, 4)}, v{L16}, s[{SP}:{SP+3}], s26 offen offset:{(t % 4)*1024} sc1', 'st', optional=True)
    def snd(first):
        if first: send(1, 1)
        else: send(0, 2); send(1, 3)
    P.variant(None, snd, pred=lambda w, it: (w & 2) == 0, cmp='s_cmp_eq_u32 s6, 0')
    e('s_waitcnt vmcnt(0)'); P.vm = []
    e('s_barrier')
    e('s_cmp_lg_u32 s6, 0'); e('s_cbranch_scc1 .Lk1_fin')
    e(f'global_load_dword v{FLV}, v{FLA}, s[14:15] sc1'); e('s_waitcnt vmcnt(0)')
    P.ool([f'v_cmp_ne_u32 vcc, v{TAG}, v{FLV}'], 's_cbranch_vccnz', poll_fn(P, FLV, FLA, 's[14:15]', TAG), lambda w, it: False)
    e('s_mul_i32 s3, s48, 73728'); e('s_mul_i32 s26, s5, 12288'); e('s_add_u32 s3, s3, s26')
    RB = lambda q, t: 48 + (q*12 + t)*4 if q*12 + t < 32 else 188 + (q*12 + t - 32)*4
    for t in range(12):
        for q in range(3):
            e(f's_add_u32 s26, s3, {q*24576 + (t // 4)*4096}')
            P.vmem(f'buffer_load_dwordx4 {vr(RB(q, t), 4)}, v{L16}, s[{SP}:{SP+3}], s26 offen offset:{(t % 4)*1024} sc1', ('p', t))
    for l in range(2):
        for kp in range(3):
            for k in (2*kp, 2*kp + 1):
                t = l*6 + k
                P.wait(vm=('p', t))
                for q in range(3):
                    for i in range(4): e(f'v_add_f32 v{ACC + 4*t + i}, v{ACC + 4*t + i}, v{RB(q, t) + i}')
            X, Y, D = ACC + (l*6 + 2*kp)*4, ACC + (l*6 + 2*kp + 1)*4, 208 + (l*3 + kp)*4
            e(f'v_cvt_pk_bf16_f32 v{D}, v{X}, v{X+1}'); e(f'v_cvt_pk_bf16_f32 v{D+1}, v{X+2}, v{X+3}')
            e(f'v_cvt_pk_bf16_f32 v{D+2}, v{Y}, v{Y+1}'); e(f'v_cvt_pk_bf16_f32 v{D+3}, v{Y+2}, v{Y+3}')
            for sw in ('32', '16'):
                e(f'v_permlane{sw}_swap_b32 v{D}, v{D+2}'); e(f'v_permlane{sw}_swap_b32 v{D+1}, v{D+3}')
            e(f's_mov_b32 s26, {l*16*2304}')
            P.vmem(f'buffer_store_dwordx4 {vr(D,4)}, v{VOUT}, s[{SOUT}:{SOUT+3}], s26 offen offset:{kp*64} {OPT["out_st"]}', 'st')

HDR = open('cdna_kernels/' + NAME + '.s.ref').read().split('; Override launch')[0]

def kd(name, vg, sg):
    return f""".p2align 6
.amdhsa_kernel {name}
  .amdhsa_next_free_vgpr {vg}
  .amdhsa_next_free_sgpr {sg}
  .amdhsa_accum_offset {(vg+3)//4*4}
  .amdhsa_group_segment_fixed_size 0
  .amdhsa_kernarg_size 104
  .amdhsa_user_sgpr_count 2
  .amdhsa_user_sgpr_kernarg_segment_ptr 1
  .amdhsa_system_sgpr_workgroup_id_x 1
.end_amdhsa_kernel
"""

def build():
    P = gen_k1()
    out = HDR
    out += f'; @launch grid=(256,1,1) block=(512,1,1) lds={K1_LDS}\n'
    out += '.amdgcn_target "amdgcn-amd-amdhsa--gfx950"\n.text\n'
    P.pad_hazards()
    if not OPT["abl"] and not OPT["abl2"] and not OPT["abl3"] and not OPT.get("cyc") and not OPT["trace"]: P.check_loads()
    sys.stderr.write(f'{dict(P.count(0))}\n')
    out += f'.globl {KNAME}\n.p2align 8\n.type {KNAME},@function\n{KNAME}:\n' + '\n'.join(P.emit()) + '\n'
    out += '.Lcode_end:\n'
    out += '.section .rodata,"a"\n' + kd(KNAME, 256, 102)
    return out

if __name__ == '__main__':
    dst = 'cdna_kernels/' + NAME + '.s'
    for a in sys.argv[1:]:
        if '=' in a:
            k, v = a.split('=', 1)
            if k == 'out': dst = v
            elif isinstance(OPT[k], bool): OPT[k] = (v == '1')
            elif isinstance(OPT[k], int): OPT[k] = int(v)
            else: OPT[k] = v.replace('+', ' ')
    open(dst, 'w').write(build())
```

```python
import sys, struct, math, re
from dsl import *

NAME = 'concat_heads__mha_block_cached__gqa_block_cached__near_ridge'
def fbits(x): return struct.unpack('<I', struct.pack('<f', x))[0]
CSC = math.log2(math.e) / math.sqrt(128.0)
BIG = 0x20000000

OPT = dict(kv_pol='nt', x_pol='', w_pol='', o_st='sc1', o_ld='sc1', wo_pol='', out_st='', ts=False, ts2=False, clk=False,
           qrot=True, k2a=1, k2b=0, cpf=2, abl='', abl2='', t0=22, lak=4, w2=True, cyc=False, krot=0, slp=3, nw=8, nw0=2, pa=27, dyn=False, nf=True, rtc=0, ea='15,16,16', wpos=31, trace=False, dbg=False, tlb=0, qx=4, abl3='', wpf=True, spread=True, dla=4, ela=4, la=4, kvq='5,8,11,14', st='', sti=1, hprio=1, post4=3)

def mfma(P, d, a, b, first=False):
    c = '0' if first else vr(d, 4)
    P.e(f'v_mfma_f32_16x16x32_bf16 {vr(d,4)}, {vr(a,4)}, {vr(b,4)}, {c}')

def mfma32(P, d, a, b, first=False):
    c = '0' if first else vr(d, 16)
    P.e(f'v_mfma_f32_32x32x16_bf16 {vr(d,16)}, {vr(a,4)}, {vr(b,4)}, {c}')

def femit(P, dst, x, t1, t2):
    P.e(f'v_lshrrev_b32 v{t1}, 3, v{x}')
    P.e(f'v_lshrrev_b32 v{t2}, 2, v{x}')
    P.e(f'v_xor_b32 v{t2}, v{t2}, v{t1}')
    P.e(f'v_and_b32 v{t2}, 1, v{t2}')
    P.e(f'v_lshl_or_b32 v{t1}, v{t2}, 1, v{t1}')
    P.e(f'v_and_b32 v{dst}, 3, v{x}')
    P.e(f'v_lshl_or_b32 v{dst}, v{dst}, 2, v{t1}')

def srd(P, d, lo, hi, size):
    P.e(f's_mov_b32 s{d}, s{lo}')
    P.e(f's_and_b32 s{d+1}, s{hi}, 0xffff')
    P.e(f's_mov_b32 s{d+2}, {size}')
    P.e(f's_mov_b32 s{d+3}, 0x20000')

def stamp(P, idx, cond=True):
    if OPT['ts'] and cond:
        P.e(f's_memrealtime s[{60+2*idx}:{61+2*idx}]')
        if OPT['clk'] and idx in (3, 4): P.e(f's_memtime s[{94+2*idx}:{95+2*idx}]')
        if OPT['clk'] and idx in (1, 2): P.e(f's_memtime s[{74+2*idx}:{75+2*idx}]')
        if OPT['clk'] and idx == 2: P.e('s_waitcnt lgkmcnt(0)'); P.e('s_sub_u32 s80, s78, s76')
        P.e('s_waitcnt lgkmcnt(0)')
def stamp_it(P, idx, itv):
    if OPT['ts'] and OPT['ts2']:
        def f():
            P.e(f'{"s_memtime" if OPT["cyc"] else "s_memrealtime"} s[{60+2*idx}:{61+2*idx}]')
            if not OPT['cyc']: P.e('s_waitcnt lgkmcnt(0)')
        P.ool([f's_cmp_eq_u32 s27, {itv}'], 's_cbranch_scc1', f, lambda w, it: it == itv)
def stamps_out(P, off, wreg, wg_shift):
    e = P.e
    P.wait(vm='all')
    stamp(P, 7)
    if OPT['dbg']:
        def f():
            e('s_not_b32 s3, s60'); e('v_mov_b32 v2, s3'); e('v_mov_b32 v0, 0'); e('s_mov_b64 exec, 1')
            e('global_atomic_umax v0, v2, s[82:83] offset:4 sc1')
            for k in range(8):
                e(f'v_mov_b32 v{3+k}, s{60+2*k}'); e(f'global_atomic_umax v0, v{3+k}, s[82:83] offset:{8+4*k} sc1')
            for i, k in enumerate((1, 2, 4, 7)):
                e(f's_sub_u32 s3, 0, s{60+2*k}'); e(f'v_mov_b32 v{12+i}, s3'); e(f'global_atomic_umax v0, v{12+i}, s[82:83] offset:{40+4*i} sc1')
            e('s_mov_b64 exec, -1'); e('s_waitcnt vmcnt(0)')
        P.only(None, f, pred=lambda w, it: True, cmp=f's_cmp_eq_u32 {wreg}, 0')
        return
    if OPT['clk']:
        e('s_sub_u32 s72, s78, s76'); e('s_mov_b32 s73, 0'); e('s_mov_b32 s70, s80'); e('s_mov_b32 s71, 0')
    if False:
        e('s_sub_u32 s70, s12, s10'); e('s_mov_b32 s71, 0')
        if P.name == 'k1':
            e('s_sub_u32 s72, s16, s14'); e('s_mov_b32 s73, 0')
    e('s_load_dwordx2 s[24:25], s[0:1], 96'); e('s_waitcnt lgkmcnt(0)')
    e(f's_add_u32 s24, s24, {off}'); e('s_addc_u32 s25, s25, 0')
    e(f's_lshl_b32 s3, s2, {wg_shift}'); e(f's_lshl_b32 s26, {wreg}, 6'); e('s_add_u32 s3, s3, s26')
    e('v_mov_b32 v0, s3')
    for k in range(8):
        e(f'v_mov_b32 v2, s{60+2*k}'); e(f'v_mov_b32 v3, s{61+2*k}')
        e(f'global_store_dwordx2 v0, v[2:3], s[24:25] offset:{8*k}')
        e('s_waitcnt vmcnt(0)')

def code_prefetch(P, start, end, dst):
    e = P.e
    e('s_getpc_b64 s[56:57]')
    P.lab(f'.Lpc_{P.name}')
    e(f's_sub_u32 s56, s56, .Lpc_{P.name}-{start}'); e('s_subb_u32 s57, s57, 0')
    if OPT['cpf'] == 2:
        e('s_lshr_b32 s3, s2, 3'); e('s_lshl_b32 s3, s3, 11'); e('v_and_b32 v12, 15, v0'); e('v_lshlrev_b32 v12, 7, v12'); e('v_add_u32 v12, s3, v12')
    else: e('v_lshlrev_b32 v12, 7, v0')
    e(f's_mov_b32 s3, {end}-{start}-4')
    e(f'v_min_u32 v13, s3, v12')
    P.vmem(f'global_load_dword v{dst}, v13, s[56:57]', 'pf')

STG, XB = 25600, 9216
QB0, NQ = 0, 5
XCH = 131072
FLG = 161792
K1_LDS = 163840
SX, SW, SK, SV, SO = 28, 32, 36, 40, 44
FW, FRL, FRC, FT, FV, LANE = 186, 187, 188, 189, 190, 191

def sidx(s): return (s + 2) % NQ

class Flags:
    def __init__(s, P): s.P = P
    def post(s, val, off=0):
        s.P.e(f'v_mov_b32 v{FV}, {val}')
        s.P.ds(f'ds_write_b32 v{FW}, v{FV} offset:{off}', 'fw')
    def read(s, ad): s.P.ds(f'ds_read_b32 v{FT}, v{ad}', 'fr')
    def check(s, ad, val):
        P = s.P
        P.wait(lg='fr')
        def spin():
            sp = P.newlab('sp'); P.lab(sp)
            if OPT['slp']: P.e(f's_sleep {OPT["slp"]}')
            P.e(f'ds_read_b32 v{FT}, v{ad}'); P.e('s_waitcnt lgkmcnt(0)')
            P.e(f'v_cmp_gt_u32 vcc, {val}, v{FT}'); P.e('s_nop 0'); P.e(f's_cbranch_vccnz {sp}')
        P.ool([f'v_cmp_gt_u32 vcc, {val}, v{FT}'], 's_cbranch_vccnz', spin, lambda w, it: False)
    def need(s, ad, val): s.read(ad); s.check(ad, val)

KNAME = NAME + '_kernel'
FLAGOFF = 0x2000000
NONCE = FLG + 1024

def gen_k1():
    P = Prog('k1', 's4'); e = P.e
    F = Flags(P)
    e('s_cmp_ge_u32 s2, 256'); e('s_cbranch_scc1 .Lk1_end')
    e('s_load_dwordx8 s[8:15], s[0:1], 0')
    e('s_load_dwordx8 s[16:23], s[0:1], 40')
    e('s_load_dwordx2 s[24:25], s[0:1], 96')
    e('s_load_dwordx2 s[82:83], s[0:1], 88')
    if OPT['ts']:
        e('s_memrealtime s[60:61]')
        for k in range(62, 76): e(f's_mov_b32 s{k}, 0')
    if OPT['cpf']: code_prefetch(P, KNAME, '.Lcode_end', 87)
    e('v_lshrrev_b32 v14, 6, v0')
    e('v_readfirstlane_b32 s87, v14')
    e(f'v_and_b32 v{LANE}, 63, v0')
    e('s_and_b32 s4, s87, 3'); e('s_lshr_b32 s81, s87, 2')
    e('s_and_b32 s48, s2, 7'); e('s_lshr_b32 s49, s2, 3')
    e('s_lshr_b32 s50, s48, 2')
    e('s_and_b32 s51, s48, 3'); e('s_lshl_b32 s51, s51, 3')
    e('s_and_b32 s55, s49, 3'); e('s_lshl_b32 s55, s55, 1'); e('s_add_u32 s51, s51, s55')
    e('s_lshr_b32 s52, s49, 2')
    e(f's_mov_b32 s7, {fbits(CSC):#x}')
    gens, st = {True: gen_main(P, F), False: gen_helper(P, F)}, {}
    def role1(m):
        next(gens[m]); st[m] = list(P.vm); P.vm = []
    P.variant(None, role1, pred=lambda w, it: (w & 4) == 0, cmp='s_cmp_eq_u32 s81, 0')
    e(f'v_and_b32 v2, 31, v0'); e('v_lshlrev_b32 v2, 2, v2'); e('v_lshl_add_u32 v2, v14, 7, v2'); e(f'v_add_u32 v{FW}, {FLG}, v2')
    e('v_and_b32 v2, 3, v0'); e('v_mul_u32_u24 v2, 132, v2'); e(f'v_add_u32 v{FRL}, {FLG + 1536}, v2')
    e('v_and_b32 v2, 7, v0'); e('v_mul_u32_u24 v2, 132, v2'); e(f'v_add_u32 v{FRC}, {FLG}, v2')
    e(f'v_mov_b32 v{FV}, 0')
    e(f'ds_write_b32 v{FW}, v{FV}'); e(f'ds_write_b32 v{FW}, v{FV} offset:1024'); e('s_waitcnt lgkmcnt(0)')
    def role(m):
        P.vm = st[m]
        for _ in gens[m]: pass
        P.lg = []; P.vm = []
    P.variant(None, role, pred=lambda w, it: (w & 4) == 0, cmp='s_cmp_eq_u32 s81, 0')
    P.lab('.Lk1_fin')
    if OPT['ts']:
        e('s_waitcnt vmcnt(0) lgkmcnt(0)')
        stamps_out(P, 0x4000000, 's87', 9)
    P.lab('.Lk1_end')
    e('s_endpgm')
    return P

def o_srd(P):
    e = P.e
    e('s_mul_i32 s3, s50, 72'); e('s_mul_i32 s26, s52, 9'); e('s_add_u32 s3, s3, s26'); e('s_lshl_b32 s3, s3, 7')
    e('s_lshl_b32 s26, s51, 2'); e('s_add_u32 s3, s3, s26'); e('s_lshl_b32 s3, s3, 10')
    e('s_add_u32 s24, s24, s3'); e('s_addc_u32 s25, s25, 0'); srd(P, SO, 24, 25, (8 * 128 + 8) * 1024)

def qrot(P):
    e = P.e
    if OPT['qrot']:
        e('s_add_u32 s53, s55, s52'); e('s_and_b32 s53, s53, 7'); e('s_mul_i32 s53, s53, 9'); e('s_lshr_b32 s53, s53, 2')
    else: e('s_mov_b32 s53, 0')

def latest(P, tags):
    need = [t for t in tags if t in P.lg]
    if need: P.wait(lg=max(need, key=lambda t: len(P.lg) - 1 - P.lg[::-1].index(t)))

def ablate(items, ab):
    out = []
    for x in items:
        if isinstance(x, Ins):
            if 'mfma' in ab and x.kind == 'mfma': continue
            if 'valu' in ab and x.op in ('v_exp_f32', 'v_add_f32', 'v_cvt_pk_bf16_f32', 'v_max3_f32'): continue
            if 'exp' in ab and x.op in ('v_exp_f32', 'v_add_f32', 'v_cvt_pk_bf16_f32'): continue
            if 'pv' in ab and x.kind == 'mfma' and re.match(r'v\[(0|16|32|48):', x.ops[0]): continue
            if 'tr' in ab and 'tr_b16' in x.op: continue
            if 'ds' in ab and x.kind == 'dsr' and f'v{FT},' not in x.text: continue
            if 'dma' in ab and x.kind == 'dma' and ' nt ' in x.text: continue
            if 'st' in ab and x.kind == 'vstore' and 's[44:47]' in x.text: continue
            if 'qdma' in ab and x.kind == 'dma' and ' nt ' not in x.text: continue
        elif isinstance(x, Variant): x.A = ablate(x.A, ab); x.B = ablate(x.B, ab)
        elif isinstance(x, Loop): x.body = ablate(x.body, ab)
        out.append(x)
    return out

def gen_main(P, F):
    e = P.e
    O, S, FB, AK, AV, QA, QBr = 0, 64, 128, 160, 168, 224, 192
    VST, M_, L_, LC, R_, T1 = 152, 164, 166, 154, 156, 158
    AW, AX, BFm, AW2, VW, SAV = 160, 168, 170, 64, 74, 76
    ACC = (0, 192)
    t = 20
    e(f'v_and_b32 v{t}, 15, v{LANE}'); e(f'v_lshrrev_b32 v{t+1}, 4, v{LANE}')
    for u in range(2):
        e('s_lshl_b32 s3, s4, 3'); e(f's_add_u32 s3, s3, {4*u}'); e(f'v_add_u32 v{t+4}, s3, v{t+1}'); e(f'v_and_b32 v{t+5}, 15, v{t+4}')
        femit(P, t+6, t+5, t+7, t+8)
        e(f'v_xor_b32 v{t+6}, v{t+6}, v{t}'); e(f'v_lshlrev_b32 v{t+6}, 4, v{t+6}'); e(f'v_lshl_add_u32 v{VW+u}, v{t+4}, 13, v{t+6}')
    e('s_lshl_b32 s6, s4, 11')
    qrot(P); e('s_lshl_b32 s54, s53, 18')
    e('s_waitcnt lgkmcnt(0)')
    e('s_cmp_eq_u32 s50, 0'); e('s_cselect_b64 s[14:15], s[14:15], s[22:23]')
    e('s_lshl_b32 s3, s51, 8'); e('s_add_u32 s14, s14, s3'); e('s_addc_u32 s15, s15, 0')
    srd(P, SW, 14, 15, 575 * 8192 + 512)
    def wpiece(s, k):
        hd, u = k // 2, k % 2
        def pre(): e(f's_add_u32 m0, s6, {QB0 + sidx(s)*STG + XB + hd*8192 + u*1024 - hd*256}')
        def post():
            P.vmem(f'buffer_load_dwordx4 v{VW+u}, s[{SW}:{SW+3}], s54 offen offset:{hd*256} {OPT["w_pol"]} lds', ('q', s))
        return pre, post
    def wadv(): e('s_add_u32 s54, s54, 262144'); e(f's_cmp_eq_u32 s54, {18*262144}'); e('s_cselect_b32 s54, 0, s54')
    for s in range(2):
        for k in range(4): a_, b_ = wpiece(s, k); a_(); b_()
        wadv()
    yield
    e(f'v_lshrrev_b32 v{t+2}, 2, v{t}'); e(f'v_and_b32 v{t+3}, 3, v{t}')
    def traddr(dst, shift, base):
        e(f'v_lshl_add_u32 v{t+4}, v{t+1}, {shift}, v{t+2}'); e(f'v_and_b32 v{t+5}, 15, v{t+4}'); femit(P, t+6, t+5, t+7, t+8)
        e(f'v_lshrrev_b32 v{t+7}, 1, v{t+3}'); e(f'v_xor_b32 v{t+6}, v{t+6}, v{t+7}')
        e(f'v_lshlrev_b32 v{t+6}, 4, v{t+6}'); e(f'v_and_b32 v{t+7}, 1, v{t+3}'); e(f'v_lshl_or_b32 v{t+6}, v{t+7}, 3, v{t+6}')
        e(f'v_lshl_add_u32 v{t+6}, v{t+4}, 8, v{t+6}'); e(f'v_add_u32 v{dst}, {base}, v{t+6}')
    traddr(AW, 3, QB0 + XB)
    for d in range(1, 8): e(f'v_xor_b32 v{AW+d}, {d << 5}, v{AW}')
    e(f'v_sub_u32 v{t+6}, 4, v{t+2}'); e(f'v_and_b32 v{t+6}, 3, v{t+6}'); e(f'v_xor_b32 v{t+6}, v{t+6}, v{t+1}'); e(f'v_lshlrev_b32 v{t+6}, 4, v{t+6}')
    e(f'v_lshl_add_u32 v{t+6}, v{t}, 6, v{t+6}'); e(f's_add_u32 s3, s6, {QB0}'); e(f'v_add_u32 v{AX}, s3, v{t+6}')
    for k in range(9): e(f'v_add_u32 v{AW2+k}, {2*STG}, v{AW+k}')
    def qa(s): return (AW, sidx(s)*STG) if sidx(s) < 2 else (AW2, (sidx(s) - 2)*STG)
    traddr(SAV, 2, 32768)
    femit(P, t+6, t, t+7, t+8)
    e(f'v_xor_b32 v{t+6}, v{t+6}, v{t+1}'); e(f'v_lshlrev_b32 v{t+6}, 4, v{t+6}'); e(f'v_lshl_add_u32 v{FRC}, v{t}, 8, v{t+6}')
    o_srd(P)
    P.wait(vm=('q', 0))
    seq = [(s, hd, dt) for s in range(18) for hd in range(2) for dt in range(8)]
    NB, LA = 8, 5
    def rdA(i, hf):
        s, hd, dt = seq[i]; a, off = qa(s)
        P.ds(f'ds_read_b64_tr_b16 {vr(FB + 4*(i % NB) + 2*hf, 2)}, v{a + (dt ^ hf)} offset:{off + hd*8192 + 1024*hf}', ('A', i))
    def rdB(s, j):
        a, off = qa(s)
        P.ds(f'ds_read_b128 {vr(BFm + 8*(s % 2) + 4*j, 4)}, v{a + 8} offset:{off + 1024*j}', ('B', s, j))
    e('s_barrier')
    stamp(P, 1, not OPT['ts2'])
    rdB(0, 0); rdB(0, 1)
    for i in range(LA): rdA(i, 0); rdA(i, 1)
    for k in range(4): a_, b_ = wpiece(2, k); a_(); b_()
    wadv()
    i0 = len(P.cur)
    for i, (s, hd, dt) in enumerate(seq):
        k = i % 16
        WP = {1: 0, 3: 1, 5: 2, 7: 3}
        if k in WP and s + 3 < 18: wpiece(s + 3, WP[k])[0]()
        latest(P, [('A', i), ('B', s, 0), ('B', s, 1)])
        mfma(P, ACC[hd] + dt*8, FB + 4*(i % NB), BFm + 8*(s % 2), s == 0)
        if k in WP and s + 3 < 18: wpiece(s + 3, WP[k])[1]()
        if k == 8 and s + 3 < 18: wadv()
        if s < 17 and k == 16 - LA - 1:
            P.wait(vm=('q', s + 1)); e('s_barrier')
        if i + LA < len(seq): rdA(i + LA, 0)
        mfma(P, ACC[hd] + dt*8 + 4, FB + 4*(i % NB), BFm + 8*(s % 2) + 4, s == 0)
        if i + LA < len(seq): rdA(i + LA, 1)
        if s < 17:
            if k == 11: rdB(s + 1, 0)
            if k == 12: rdB(s + 1, 1)
        if i == len(seq) - 1: e('s_barrier')
    if OPT['abl']: P.cur[i0:] = ablate(P.cur[i0:], OPT['abl'].split())
    stamp(P, 2, not OPT['ts2'])
    P.wait(vm='all')
    e(f'v_mov_b32 v{AK}, v{FRC}')
    for u in range(1, 4): e(f'v_xor_b32 v{AK+u}, {u << 6}, v{AK}')
    e(f'v_mov_b32 v{AV}, v{SAV}')
    for d in range(1, 8): e(f'v_xor_b32 v{AV+d}, {d << 5}, v{AV}')
    e(f'v_lshlrev_b32 v{VST}, 4, v{LANE}')
    NB = 6
    PX = 176
    order = [('S', 0), ('S', 1), ('P', 2), ('S', 2), ('S', 3), ('P', 3), ('P', 0), ('P', 1)]
    pbase = lambda b, j: PX + 4*j if b == 3 else S + 16*b + 8*j
    mf, reads = [], []
    for kind, b in order:
        for k in range(8):
            if kind == 'S':
                tt, u = k // 4, k % 4
                reads.append((('K', b, k), 1, AK + u, b*8192 + tt*4096))
                mf.append([(S + 16*b + 8*j + 4*tt, QA + 8*u + 4*j, u == 0) for j in range(2)])
            else:
                reads.append((('V', b, k), 2, AV + k, b*8192))
                mf.append([(O + 32*j + 4*k, pbase(b, j), False) for j in range(2)])
    prev = lambda m: order[m // 8] in (('P', 2), ('P', 3))
    CHK, LA = 48, OPT['lak']
    def rd(i, it=0):
        tag, n, ad, off = reads[i]; b = FB + 4*(i % NB)
        if n == 1: P.ds(f'ds_read_b128 {vr(b,4)}, v{ad} offset:{off}', (it,) + tag)
        else:
            P.ds(f'ds_read_b64_tr_b16 {vr(b,2)}, v{ad} offset:{off}', (it,) + tag)
            P.ds(f'ds_read_b64_tr_b16 {vr(b+2,2)}, v{ad} offset:{off + 4096}', (it,) + tag)
    groups = [(b, j) for b in range(4) for j in range(2)]
    gb = {g: S + 16*g[0] + 8*g[1] for g in groups}
    sdone = {0: 7, 1: 15, 2: 31, 3: 39}
    dline = {0: 48, 1: 56, 2: 80, 3: 96}
    def valu_plan():
        T0 = OPT['t0']
        at = {m: [] for m in range(128)}
        for b in range(4):
            for k in range(8): at[min(sdone[b] + 1 + k, CHK - 1)].append(((b, k // 4), 'max', k % 4))
        for i, g in enumerate(groups):
            for k in range(8):
                m = T0 + 8*i + k
                at[m].insert(0, (g, 'exp', k))
                at[m + 1].append((g, 'add', k))
                if k % 2 == 1: at[m + 1].append((g, 'cvt', k // 2))
            assert T0 + 8*i + 8 < dline[g[0]] and T0 + 8*i > min(sdone[g[0]] + 1 + 4*g[1] + 3, CHK - 1)
        post = {m: [(1,) + o for o in at[m + 64]] + [(0,) + o for o in at[m]] for m in range(64)}
        for m in post: post[m].sort(key=lambda o: o[2] != 'exp')
        return post
    vpost = valu_plan()
    lc0 = [next(o for m in range(CHK) for o in vpost[m] if o[0] == 0 and o[2] == 'add' and o[1][1] == j) for j in range(2)]
    def vop(o, m, slow=False):
        lag, g, k_, k = o; r = gb[g]; j = g[1]
        if k_ == 'max': e(f'v_max3_f32 v{M_+j}, v{M_+j}, v{r+2*k}, v{r+2*k+1}')
        elif k_ == 'exp': e(f'v_exp_f32 v{r+k}, v{r+k}')
        elif k_ == 'cvt': e(f'v_cvt_pk_bf16_f32 v{pbase(*g)+k}, v{r+2*k}, v{r+2*k+1}')
        elif lag == 0 and m < CHK and not slow:
            e(f'v_mov_b32 v{LC+j}, v{r+k}' if o == lc0[j] else f'v_add_f32 v{LC+j}, v{LC+j}, v{r+k}')
        else: e(f'v_add_f32 v{L_+j}, v{L_+j}, v{r+k}')
    CK = {16 - LA - 1: 's90', 24 - LA - 1: 's91', 48 - LA - 1: 's92', 64 - LA - 1: 's93'}
    POST = {47: 's94', 49: 's95', 63: 's96'}
    def qfin(a, pk):
        ops = [f'v_pk_mul_f32 {vr(a+k,2)}, {vr(a+k,2)}, s[84:85] op_sel:[0,1]' for k in range(0, 64, 2)] if pk else [f'v_mul_f32 v{a+k}, s85, v{a+k}' for k in range(64)]
        for u in range(4):
            for j in range(2):
                q, X, Y = a + 8*u + 4*j, a + 16*u + 4*j, a + 16*u + 8 + 4*j
                ops += [f'v_cvt_pk_bf16_f32 v{q}, v{X}, v{X+1}', f'v_cvt_pk_bf16_f32 v{q+1}, v{X+2}, v{X+3}',
                        f'v_cvt_pk_bf16_f32 v{q+2}, v{Y}, v{Y+1}', f'v_cvt_pk_bf16_f32 v{q+3}, v{Y+2}, v{Y+3}']
        for sw in ('32', '16'):
            for q in range(a, a + 32, 4): ops += [f'v_permlane{sw}_swap_b32 v{q}, v{q+2}', f'v_permlane{sw}_swap_b32 v{q+1}, v{q+3}']
        return ops
    def ostore(D, k): P.vmem(f'buffer_store_dwordx4 {vr(D + 4*k,4)}, v{VST}, s[{SO}:{SO+3}], s{88 if k < 4 else 99} offen offset:{(k % 4)*1024} {OPT["o_st"]}', 'st', optional=True)
    def slots(lo, hi, mode, events=True, zero=False, fin=False):
        STS = {x: i + 1 for i, x in enumerate(OPT['st'].split(','))} if mode == 'fast' else {}
        skip = lambda m: (mode in ('first', 'redo') and prev(m)) or (mode == 'tail' and not prev(m))
        keep = lambda o: mode == 'fast' or (mode == 'first' and o[0] == 0) or (mode == 'tail' and o[0] == 1)
        extra = qfin(ACC[1], False) if mode == 'first' else []
        for m in range(lo, hi):
            ops = [o for o in vpost[m] if keep(o)]
            qb = (lambda r: r - QA + ACC[0]) if mode == 'first' else (lambda r: r)
            if not skip(m):
                w2 = m + 1 if (OPT['w2'] and m % 2 == 0 and (0,) + reads[m + 1][0] in P.lg) else m
                P.wait(lg=(0,) + reads[w2][0])
                mfma(P, mf[m][0][0], FB + 4*(m % NB), qb(mf[m][0][1]), mf[m][0][2] or zero)
            if ops: vop(ops.pop(0), m)
            if not skip(m): mfma(P, mf[m][1][0], FB + 4*(m % NB), qb(mf[m][1][1]), mf[m][1][2] or zero)
            if f'{m}' in STS: stamp_it(P, STS[f'{m}'], OPT['sti'])
            if events:
                if m + 2 in CK and not (mode == 'first' and CK[m + 2] == 's90'): F.read(FRL)
                if m in CK and not (mode == 'first' and CK[m] == 's90'): F.check(FRL, CK[m])
                if m == 45 and mode == 'fast': P.ool(['s_cmp_eq_u32 s27, 6'], 's_cbranch_scc1', lambda: e('s_waitcnt vmcnt(0)'), lambda w, it: it == 6)
                if m in POST: F.post(POST[m])
            i = m + LA
            if i >= 64:
                if events: rd(i - 64, 1)
            elif not skip(i) and not (mode in ('redo', 'tail') and i >= CHK): rd(i)
            for o in ops: vop(o, m)
            if fin and m % 2 == 1 and m + 1 < hi: finish_u(QBr, (m + 1 - CHK) // 2)
            if mode == 'first':
                for _ in range(OPT['qx'] if m < 32 else 99):
                    if extra: e(extra.pop(0))
                if m >= 40:
                    for k in range(4): e(f'v_mov_b32 v{QA + 4*(m-40) + k}, v{ACC[0] + 4*(m-40) + k}')
            if events and m % 16 == 6 and mode != 'first':
                P.ool(['s_cmp_eq_u32 s27, 5'], 's_cbranch_scc1', lambda: (ostore(QBr, m // 16 * 2), ostore(QBr, m // 16 * 2 + 1)), lambda w, it: it == 5)
            if events and 50 <= m < 54: e(f'v_xor_b32 v{AK + m - 50}, 0x10000, v{AK + m - 50}')
            if events and m == 47 - LA and mode != 'first':
                for k in range(8): e(f'v_xor_b32 v{AV + k}, 0x10000, v{AV + k}')
    e('s_mov_b32 s85, s7')
    F.need(FRL, 19)
    for i in range(LA):
        if i == LA - 1: F.post(18)
        rd(i)
    for t_ in qfin(ACC[0], True): e(t_)
    def reset():
        for j in range(2): e(f'v_mov_b32 v{L_+j}, 0'); e(f'v_mov_b32 v{R_+j}, 0')
        e(f's_mov_b32 s7, {fbits(64.0):#x}')
    def mreset():
        for j in range(2): e(f'v_mov_b32 v{M_+j}, {fbits(-1e30):#x}')
    reset(); mreset()
    e(f's_mov_b32 s89, {fbits(64.0):#x}'); e('s_mov_b32 s90, 19'); e('s_mov_b32 s94, 19'); e('s_mov_b32 s97, 0xee')
    e('s_lshl_b32 s88, s4, 18'); e('s_add_u32 s99, s88, 131072')
    stamp(P, 3, not OPT['ts2'])
    def xlane(R, op):
        for sw in ('32', '16'):
            for j in range(2): e(f'v_mov_b32 v{T1+j}, v{R+j}')
            for j in range(2): e(f'v_permlane{sw}_swap_b32 v{R+j}, v{T1+j}')
            for j in range(2): e(f'{op} v{R+j}, v{R+j}, v{T1+j}')
    LI = 184
    def finish_l():
        xlane(L_, 'v_add_f32')
        for j in range(2): e(f'v_rcp_f32 v{LI+j}, v{L_+j}')
    def finish_u(D, u, pk=False):
        for j in range(2):
            a = O + 32*j + 8*u
            if pk:
                for k in range(0, 8, 2): e(f'v_pk_mul_f32 {vr(a+k,2)}, {vr(a+k,2)}, {vr(LI,2)} ' + ('op_sel:[0,1]' if j else 'op_sel_hi:[1,0]'))
            else:
                for k in range(8): e(f'v_mul_f32 v{a+k}, v{a+k}, v{LI+j}')
            for k in range(4): e(f'v_cvt_pk_bf16_f32 v{D + 16*j + 4*u + k}, v{a+2*k}, v{a+2*k+1}')
    def body():
        for k in range(1, 4): e(f's_add_u32 s{90+k}, s90, {k}')
        for k in range(1, 3): e(f's_add_u32 s{94+k}, s94, {k}')
        if OPT['st'] == 'I':
            for k in range(1, 7): stamp_it(P, k, k + OPT['sti'])
        def switch():
            for k in range(32): e(f'v_mov_b32 v{QA+k}, v{QBr+k}')
            mreset()
        P.ool(['s_cmp_eq_u32 s27, 4'], 's_cbranch_scc1', switch, lambda w, it: it == 4)
        P.ool(['s_cmp_eq_u32 s27, 0'], 's_cbranch_scc1', lambda: slots(0, CHK, 'first'), lambda w, it: it == 0, lambda: slots(0, CHK, 'fast'))
        def fin_a():
            finish_l(); reset()
        P.ool(['s_cmp_eq_u32 s27, 4'], 's_cbranch_scc1', fin_a, lambda w, it: it == 4)
        e(f'v_max_f32 v{T1}, abs(v{M_}), abs(v{M_+1})')
        e(f'v_cmp_lt_f32 vcc, s7, v{T1}')
        def pv(mode):
            def start():
                if mode == 'fast':
                    P.variant(None, lambda f: (finish_u(QBr, 0) if f else None, slots(CHK, CHK + 8, mode, zero=True, fin=f)),
                              pred=lambda w, it: it == 4, cmp='s_cmp_eq_u32 s27, 4')
                else: slots(CHK, CHK + 8, mode, zero=True)
            P.ool(['s_bitcmp0_b32 s97, s27'], 's_cbranch_scc1', start, lambda w, it: it % 4 == 0, lambda: slots(CHK, CHK + 8, mode))
            slots(CHK + 8, 64, mode)
        def rest(fast):
            if fast:
                for j in range(2): e(f'v_add_f32 v{L_+j}, v{L_+j}, v{LC+j}')
                pv('fast'); return
            P.only(None, lambda: [finish_u(QBr, u, True) for u in range(4)], pred=lambda w, it: it == 4, cmp='s_cmp_eq_u32 s27, 4')
            P.wait(lg='all')
            for i in range(LA): rd(i)
            slots(0, CHK, 'redo', events=False)
            xlane(M_, 'v_max_f32')
            for j in range(2):
                e(f'v_sub_f32 v{T1+j}, v{R_+j}, v{M_+j}'); e(f'v_min_f32 v{T1+j}, s89, v{T1+j}'); e(f'v_exp_f32 v{T1+j}, v{T1+j}')
                e(f'v_mov_b32 v{R_+j}, v{M_+j}')
            e('s_mov_b32 s7, -1.0')
            for j in range(2): e(f'v_mul_f32 v{L_+j}, v{L_+j}, v{T1+j}')
            for g in groups:
                for k in range(8): e(f'v_sub_f32 v{gb[g]+k}, v{gb[g]+k}, v{M_+g[1]}')
            for k in range(64): e(f'v_mul_f32 v{O+k}, v{O+k}, v{T1 + k // 32}')
            for m in range(64):
                for o in vpost[m]:
                    if o[0] == 0 and o[2] != 'max': vop(o, m, slow=True)
            for i in range(CHK, CHK + LA): rd(i)
            pv('slow')
        P.ool([], 's_cbranch_vccnz', lambda: rest(False), lambda w, it: (w >> 3) % 2 == 1, lambda: rest(True))
        e('s_add_u32 s90, s90, 4'); e('s_add_u32 s94, s94, 3')
    i0 = len(P.cur)
    P.vm = []
    P.loop(8, 's27', body, lambda t: (t[0] - 1,) + tuple(t[1:]) if isinstance(t, tuple) else t)
    P.wait(lg='all')
    slots(0, CHK, 'tail', events=False)
    e('s_add_u32 s88, s88, 4096'); e('s_add_u32 s99, s99, 4096')
    finish_l()
    for u in range(4):
        finish_u(S, u, True); ostore(S, u); ostore(S, 4 + u)
    if OPT['abl2']: P.cur[i0:] = ablate(P.cur[i0:], OPT['abl2'].split())
    stamp(P, 4, not OPT['ts2'])
    gen_oproj(P)

def gen_helper(P, F):
    e = P.e
    kvp, xp, wp = OPT['kv_pol'], OPT['x_pol'], OPT['w_pol']
    O8, Q8, S8, FB, QA8 = 0, 32, 64, 72, 136
    VKV, VW, VX, AK8, AV8, AW8, AX8, L16, FRH = 152, 156, 158, 161, 165, 173, 175, 176, 177
    R_, L_, T, M_, FA, TK = 178, 179, 180, 156, 157, 240
    if OPT['hprio']: e(f's_setprio {OPT["hprio"]}')
    e(f'v_and_b32 v3, 15, v{LANE}'); e(f'v_lshrrev_b32 v4, 4, v{LANE}'); e('v_lshrrev_b32 v5, 2, v3'); e('v_and_b32 v6, 3, v3')
    e(f'v_lshrrev_b32 v7, 2, v{LANE}'); e('v_lshrrev_b32 v8, 2, v7'); e('v_sub_u32 v8, 4, v8'); e('v_and_b32 v8, 3, v8')
    e('v_xor_b32 v8, v8, v6'); e('v_lshlrev_b32 v8, 4, v8')
    e('v_mul_u32_u24 v9, 1152, v7'); e('v_add_u32 v9, v9, v8'); e(f'v_add_u32 v{VX+2}, {128*1152}, v9')
    e('s_mul_i32 s3, s4, 18432'); e(f'v_add_u32 v{VX}, s3, v9'); e(f'v_add_u32 v{VX+1}, 73728, v{VX}')
    e('s_lshl_b32 s5, s4, 10'); e('s_lshl_b32 s6, s4, 11'); e('s_lshl_b32 s59, s4, 12')
    e('s_waitcnt lgkmcnt(0)')
    e('s_cmp_eq_u32 s50, 0')
    for k in range(4): e(f's_cselect_b64 s[{8+2*k}:{9+2*k}], s[{8+2*k}:{9+2*k}], s[{16+2*k}:{17+2*k}]')
    e('s_mul_i32 s3, s52, 165888'); e('s_add_u32 s8, s8, s3'); e('s_addc_u32 s9, s9, 0')
    srd(P, SX, 8, 9, 165888)
    qrot(P); e('s_lshl_b32 s53, s53, 6')
    def qstage(s):
        st, tag = QB0 + sidx(s)*STG, ('q', s)
        for u in range(2):
            e(f's_add_u32 m0, s5, {st + u*4096}')
            P.vmem(f'buffer_load_dwordx4 v{VX+u}, s[{SX}:{SX+3}], s53 offen {xp} lds', tag)
        def x8():
            e(f's_mov_b32 m0, {st + 8192}')
            P.vmem(f'buffer_load_dwordx4 v{VX+2}, s[{SX}:{SX+3}], s53 offen {xp} lds', tag, optional=True)
        P.only(s % 4, x8)
        e('s_add_u32 s53, s53, 64'); e('s_cmp_eq_u32 s53, 1152'); e('s_cselect_b32 s53, 0, s53')
    qstage(0); qstage(1)
    yield
    i00 = len(P.cur)
    def tag():
        e('s_memrealtime s[84:85]'); e('s_waitcnt lgkmcnt(0)'); e('s_or_b32 s84, s84, 1')
        e('v_mov_b32 v7, 0'); e('v_mov_b32 v8, s84')
        e('s_mov_b64 exec, 1')
        P.vmem('global_store_dword v7, v8, s[82:83] sc1', 'tag', optional=True)
        e('s_mov_b64 exec, -1')
    e('s_lshl_b32 s3, s2, 3'); e('s_add_u32 s3, s3, s87')
    P.ool(['s_cmp_eq_u32 s3, 4'], 's_cbranch_scc1', tag, lambda w, it: w == 4)
    if OPT['krot'] == 1: e('s_lshr_b32 s58, s2, 3')
    elif OPT['krot'] == 2: e('s_mov_b32 s58, s2')
    elif OPT['krot'] == 3:
        e('s_lshr_b32 s58, s2, 3'); e('s_add_u32 s58, s58, s2'); e('s_lshr_b32 s3, s2, 6'); e('s_add_u32 s58, s58, s3')
    else: e('s_mov_b32 s58, 0')
    e('s_and_b32 s58, s58, 7'); e('s_lshl_b32 s58, s58, 14')
    e('s_lshl_b32 s3, s52, 5'); e('s_add_u32 s3, s3, s51'); e('s_lshl_b32 s3, s3, 17')
    e('s_add_u32 s10, s10, s3'); e('s_addc_u32 s11, s11, 0'); srd(P, SK, 10, 11, 262144)
    e('s_add_u32 s12, s12, s3'); e('s_addc_u32 s13, s13, 0'); srd(P, SV, 12, 13, 262144)
    o_srd(P)
    if OPT['tlb']:
        e(f'v_and_b32 v7, 7, v{LANE}'); e('v_lshlrev_b32 v7, 15, v7')
        def tk():
            P.vmem(f'buffer_load_dword v252, v7, s[{SK}:{SK+3}], 0 offen nt', 'tl', optional=True)
            P.vmem(f'buffer_load_dword v253, v7, s[{SV}:{SV+3}], 0 offen nt', 'tl', optional=True)
            e(f'v_min_u32 v8, 8, v{LANE}'); e('v_lshlrev_b32 v8, 17, v8')
            P.vmem(f'buffer_store_dword v8, v8, s[{SO}:{SO+3}], 0 offen sc1', 'tl', optional=True)
        P.only(1, tk)
    for t in range(4):
        e(f'v_add_u32 v7, {4*t}, v4'); femit(P, 8, 7, 9, 10)
        e('v_xor_b32 v8, v8, v3'); e('v_lshlrev_b32 v8, 4, v8'); e('v_lshl_add_u32 v8, v4, 8, v8'); e(f'v_add_u32 v{VKV+t}, s59, v8')
    femit(P, 8, 3, 9, 10)
    e('v_xor_b32 v8, v8, v4'); e('v_lshlrev_b32 v8, 4, v8'); e('v_lshl_add_u32 v8, v3, 8, v8'); e(f'v_add_u32 v{AK8}, s59, v8')
    for u in range(1, 4): e(f'v_xor_b32 v{AK8+u}, {u << 6}, v{AK8}')
    def traddr16(dst, shift, base_s, base):
        e(f'v_lshl_add_u32 v7, v4, {shift}, v5'); e('v_and_b32 v11, 15, v7'); femit(P, 8, 11, 9, 10)
        e('v_lshrrev_b32 v9, 1, v6'); e('v_xor_b32 v8, v8, v9'); e('s_lshl_b32 s3, s4, 2'); e('v_xor_b32 v8, s3, v8')
        e('v_lshlrev_b32 v8, 4, v8'); e('v_and_b32 v9, 1, v6'); e('v_lshl_or_b32 v8, v9, 3, v8'); e('v_lshl_add_u32 v8, v7, 8, v8')
        if base_s: e(f'v_add_u32 v8, {base_s}, v8')
        e(f'v_add_u32 v{dst}, {base}, v8')
    traddr16(AV8, 2, 's59', 32768)
    for d in range(1, 8): e(f'v_xor_b32 v{AV8+d}, {d << 5}, v{AV8}')
    traddr16(AW8, 3, None, QB0 + XB); e(f'v_xor_b32 v{AW8+1}, 32, v{AW8}')
    e('v_sub_u32 v8, 4, v5'); e('v_and_b32 v8, 3, v8'); e('v_xor_b32 v8, v8, v4'); e('v_lshlrev_b32 v8, 4, v8')
    e('v_lshl_add_u32 v8, v3, 6, v8'); e(f'v_add_u32 v{AX8}, {QB0 + 8192}, v8')
    e(f'v_lshlrev_b32 v{L16}, 4, v{LANE}')
    AW8b = 183
    for k in range(3): e(f'v_add_u32 v{AW8b+k}, {2*STG}, v{AW8+k}')
    e(f'v_add_u32 v{FRH}, {FLG + 512 - (FLG + 1536)}, v{FRL}')
    def item(n):
        S = SK if n % 4 < 2 else SV
        e(f's_add_u32 m0, s59, {(n % 8)*16384}')
        e(f's_xor_b32 s26, s58, {(n // 4)*32768 + (n % 2)*16384}')
        for t in range(4):
            if 'kv8' in OPT['abl2'] and n >= 8: continue
            P.vmem(f'buffer_load_dwordx4 v{VKV+t}, s[{S}:{S+3}], s26 offen offset:{t*1024} {kvp} lds', ('kv', n))
    SEQ = [0, 1, 2] + [x for c in range(1, 8) for x in (4*c, 4*c - 1, 4*c + 1, 4*c + 2)] + [31]
    def cneed(n):
        c, k = (n - 8) // 4, n % 4
        return 19 + 3*c + (1, 1, 2, 3)[k]
    EA = [int(x) for x in OPT['ea'].split(',')]
    P.wait(vm=('q', 0)); e('s_barrier')
    stamp(P, 1, not OPT['ts2'])
    qstage(2)
    for s in range(18):
        a, off = (AW8, sidx(s)*STG) if sidx(s) < 2 else (AW8b, (sidx(s) - 2)*STG)
        P.ds(f'ds_read_b128 {vr(FB,4)}, v{a+2} offset:{off}', 'b')
        for hd in range(2):
            for dd in range(2):
                b = FB + 4 + 8*hd + 4*dd if hd == 0 else S8 + 4*dd
                P.ds(f'ds_read_b64_tr_b16 {vr(b,2)}, v{a+dd} offset:{off + hd*8192}', ('a', hd, dd))
                P.ds(f'ds_read_b64_tr_b16 {vr(b+2,2)}, v{a+(dd^1)} offset:{off + hd*8192 + 1024}', ('a', hd, dd))
        if s + 3 < 18: qstage(s + 3)
        for i, x in enumerate(EA):
            if x == s: item(i)
        for hd in range(2):
            for dd in range(2):
                P.wait(lg=('a', hd, dd)); mfma(P, QA8 + 8*hd + 4*dd, FB + 4 + 8*hd + 4*dd if hd == 0 else S8 + 4*dd, FB, s == 0)
        if s < 17: P.wait(vm=('q', s + 1))
        e('s_barrier')
    stamp(P, 2, not OPT['ts2'])
    for i, x in enumerate(EA):
        if x == 18: item(i)
    P.wait(vm=('kv', 0)); F.post(19, 1024)
    item(SEQ[3]); P.wait(vm=('kv', 1)); F.post(20, 1024)
    item(SEQ[4]); P.wait(vm=('kv', 2)); F.post(21, 1024)
    item(SEQ[5]); item(SEQ[6])
    for k in range(16): e(f'v_mul_f32 v{QA8+k}, s7, v{QA8+k}')
    e(f's_add_u32 s3, s5, {XCH}'); e(f'v_add_u32 v{T}, s3, v{L16}')
    for hd in range(2):
        d, X, Y = FB + 4*hd, QA8 + 8*hd, QA8 + 8*hd + 4
        e(f'v_cvt_pk_bf16_f32 v{d}, v{X}, v{X+1}'); e(f'v_cvt_pk_bf16_f32 v{d+1}, v{X+2}, v{X+3}')
        e(f'v_cvt_pk_bf16_f32 v{d+2}, v{Y}, v{Y+1}'); e(f'v_cvt_pk_bf16_f32 v{d+3}, v{Y+2}, v{Y+3}')
        for sw in ('32', '16'):
            e(f'v_permlane{sw}_swap_b32 v{d}, v{d+2}'); e(f'v_permlane{sw}_swap_b32 v{d+1}, v{d+3}')
        P.ds(f'ds_write_b128 v{T}, {vr(d,4)} offset:{hd*4096}', 'xw')
    e(f's_mov_b32 s89, {fbits(64.0):#x}')
    hep = [1000]
    def hsync():
        P.wait(lg='all'); hep[0] += 1
        F.post(hep[0]); F.need(FRH, hep[0])
    hsync()
    e(f'v_add_u32 v{T}, {XCH}, v{L16}')
    for k in range(8): P.ds(f'ds_read_b128 {vr(Q8+4*k,4)}, v{T} offset:{k*1024}', 'q8')
    P.wait(lg='all')
    stamp(P, 3, not OPT['ts2'])
    e('s_mov_b32 s98, 21')
    def postL(v):
        e(f's_max_u32 s98, s98, {v}'); F.post('s98', 1024)
    def touch():
        e('s_getpc_b64 s[56:57]'); lb = P.newlab('pc'); P.lab(lb)
        e(f's_sub_u32 s56, s56, {lb}-{KNAME}'); e('s_subb_u32 s57, s57, 0')
        e(f'v_lshlrev_b32 v242, 7, v{LANE}'); e('s_lshl_b32 s3, s4, 14'); e('v_add_u32 v242, s3, v242')
        e(f's_mov_b32 s3, .Lcode_end-{KNAME}-4')
        for k in range(2):
            e(f'v_min_u32 v243, s3, v242'); P.vmem(f'global_load_dword v{244+k}, v243, s[56:57]', 'ct', optional=True)
            e('v_add_u32 v242, 8192, v242')
    def need_free(val, lv, nxt):
        F.read(FRC); P.wait(lg='fr')
        def slow():
            done = P.newlab('nf')
            vm0 = list(P.vm)
            for i, tg in enumerate(nxt):
                if not any(t[0] == tg for t in P.vm): break
                P.wait(vm=tg); e(f's_add_u32 s3, {lv}, {i + 1}'); postL('s3')
                e(f'ds_read_b32 v{FT}, v{FRC}'); e('s_waitcnt lgkmcnt(0)')
                e(f'v_cmp_gt_u32 vcc, {val}, v{FT}'); e(f's_cbranch_vccz {done}')
            sp = P.newlab('sp'); P.lab(sp)
            e(f's_sleep {OPT["slp"]}'); e(f'ds_read_b32 v{FT}, v{FRC}'); e('s_waitcnt lgkmcnt(0)')
            e(f'v_cmp_gt_u32 vcc, {val}, v{FT}'); e(f's_cbranch_vccnz {sp}')
            P.lab(done)
            P.vm = vm0
        P.ool([f'v_cmp_gt_u32 vcc, {val}, v{FT}'], 's_cbranch_vccnz', slow, lambda w, it: False)
    def scores():
        for tt in range(2):
            for u in range(4): P.ds(f'ds_read_b128 {vr(FB + 16*tt + 4*u, 4)}, v{AK8+u} offset:{tt*16384}', ('k', tt, u))
        for tt in range(2):
            for u in range(4):
                P.wait(lg=('k', tt, u)); mfma(P, S8 + 4*tt, FB + 16*tt + 4*u, Q8 + 4*u, u == 0)
        for u in range(4): e(f'v_xor_b32 v{AK8+u}, 0x10000, v{AK8+u}')
        for k in range(4): e(f'v_max3_f32 v{M_}, v{M_}, v{S8+2*k}, v{S8+2*k+1}')
        e(f'v_cmp_lt_f32 vcc, s7, abs(v{M_})')
        def shift():
            for sw in ('32', '16'):
                e(f'v_mov_b32 v{T}, v{M_}'); e(f'v_permlane{sw}_swap_b32 v{M_}, v{T}'); e(f'v_max_f32 v{M_}, v{M_}, v{T}')
            e(f'v_sub_f32 v{T}, v{R_}, v{M_}'); e(f'v_min_f32 v{T}, s89, v{T}'); e(f'v_exp_f32 v{T}, v{T}')
            e(f'v_mov_b32 v{R_}, v{M_}'); e('s_mov_b32 s7, -1.0')
            for k in range(8): e(f'v_sub_f32 v{S8+k}, v{S8+k}, v{M_}')
            e(f'v_mul_f32 v{L_}, v{L_}, v{T}')
            for k in range(32): e(f'v_mul_f32 v{O8+k}, v{O8+k}, v{T}')
        P.ool([], 's_cbranch_vccnz', shift, lambda w, it: (w >> 3) % 2 == 1)
        for k in range(8): e(f'v_exp_f32 v{S8+k}, v{S8+k}')
        for k in range(8): e(f'v_add_f32 v{L_}, v{L_}, v{S8+k}')
        for k in range(4): e(f'v_cvt_pk_bf16_f32 v{S8+k}, v{S8+2*k}, v{S8+2*k+1}')
    def pv8():
        def rv(d):
            P.ds(f'ds_read_b64_tr_b16 {vr(FB + 4*d, 2)}, v{AV8+d}', ('v', d))
            P.ds(f'ds_read_b64_tr_b16 {vr(FB + 4*d + 2, 2)}, v{AV8+d} offset:16384', ('v', d))
        for d in range(6): rv(d)
        for d in range(8):
            P.wait(lg=('v', d)); mfma(P, O8 + 4*d, FB + 4*d, S8)
            if d < 2: rv(6 + d)
        for d in range(8): e(f'v_xor_b32 v{AV8+d}, 0x10000, v{AV8+d}')
    def hreset():
        for k in range(32): e(f'v_mov_b32 v{O8+k}, 0')
        e(f'v_mov_b32 v{M_}, {fbits(-1e30):#x}'); e(f'v_mov_b32 v{L_}, 0'); e(f'v_mov_b32 v{R_}, 0'); e(f's_mov_b32 s7, {fbits(64.0):#x}')
    OS, SS, W = 216, 224, 228
    def combine1():
        for sw in ('32', '16'):
            e(f'v_mov_b32 v{T}, v{L_}'); e(f'v_permlane{sw}_swap_b32 v{L_}, v{T}'); e(f'v_add_f32 v{L_}, v{L_}, v{T}')
        for q in range(1, 4):
            e(f's_xor_b32 s3, s4, {q}'); e('s_mul_i32 s3, s3, 6144'); e(f's_add_u32 s3, s3, {XCH + (q-1)*2048}')
            e(f'v_add_u32 v{T}, s3, v{L16}')
            for k in range(2): P.ds(f'ds_write_b128 v{T}, {vr(O8 + 8*q + 4*k, 4)} offset:{k*1024}', 'cw')
        e(f'v_lshrrev_b32 v{SS+2}, 1, v{L16}'); e('s_lshl_b32 s3, s4, 9'); e(f's_add_u32 s3, s3, {XCH + 24576}')
        e(f'v_add_u32 v{SS+2}, s3, v{SS+2}')
        P.ds(f'ds_write_b64 v{SS+2}, {vr(R_,2)}', 'cw')
        for k in range(8): e(f'v_mov_b32 v{OS+k}, v{O8+k}')
        e(f'v_mov_b32 v{SS}, v{R_}'); e(f'v_mov_b32 v{SS+1}, v{L_}')
        P.wait(lg='all'); hep[0] += 1; F.post(hep[0]); P.wait(lg='all')
    def combine2(head):
        F.need(FRH, hep[0])
        e('s_mul_i32 s3, s4, 6144'); e(f's_add_u32 s3, s3, {XCH}'); e(f'v_add_u32 v{T}, s3, v{L16}')
        ST, CB = FB, FB + 8
        for q in range(1, 4):
            e(f'v_xor_b32 v{FT}, {q << 9}, v{SS+2}')
            P.ds(f'ds_read_b64 {vr(ST + 2*q, 2)}, v{FT}', 'cs')
        for q in range(1, 4):
            for k in range(2): P.ds(f'ds_read_b128 {vr(CB + 8*q + 4*k, 4)}, v{T} offset:{(q-1)*2048 + k*1024}', ('co', q))
        e(f'v_mov_b32 v{ST}, v{SS}'); e(f'v_mov_b32 v{ST+1}, v{SS+1}')
        P.wait(lg='cs')
        e(f'v_max3_f32 v{W}, v{ST}, v{ST+2}, v{ST+4}'); e(f'v_max_f32 v{W}, v{W}, v{ST+6}')
        for q in range(4): e(f'v_sub_f32 v{W+4+q}, v{ST+2*q}, v{W}')
        for q in range(4): e(f'v_exp_f32 v{W+4+q}, v{W+4+q}')
        e(f'v_mul_f32 v{W+1}, v{W+4}, v{ST+1}')
        for q in range(1, 4): e(f'v_fma_f32 v{W+1}, v{W+4+q}, v{ST+2*q+1}, v{W+1}')
        e(f'v_rcp_f32 v{W+1}, v{W+1}')
        for q in range(4): e(f'v_mul_f32 v{W+4+q}, v{W+4+q}, v{W+1}')
        for k in range(8): e(f'v_mul_f32 v{OS+k}, v{OS+k}, v{W+4}')
        for q in range(1, 4):
            P.wait(lg=('co', q))
            for k in range(8): e(f'v_fma_f32 v{OS+k}, v{CB+8*q+k}, v{W+4+q}, v{OS+k}')
        for k in range(4): e(f'v_cvt_pk_bf16_f32 v{W+k}, v{OS+2*k}, v{OS+2*k+1}')
        e(f's_add_u32 s26, s5, {1048576 + head*4096}')
        P.vmem(f'buffer_store_dwordx4 {vr(W,4)}, v{L16}, s[{SO}:{SO+3}], s26 offen {OPT["o_st"]}', 'st', optional=True)
    hreset(); scores()
    e('s_load_dwordx2 s[8:9], s[0:1], 32'); e('s_load_dwordx2 s[10:11], s[0:1], 72'); e('s_load_dwordx2 s[12:13], s[0:1], 96')
    e(f'v_mov_b32 v{VX}, 0')
    P.vmem(f'global_load_dword v{VX+1}, v{VX}, s[82:83] sc1', 'tagld', optional=True)
    e('s_lshl_b32 s3, s50, 3'); e('s_add_u32 s3, s3, s52'); e('s_lshl_b32 s3, s3, 4'); e('s_lshr_b32 s26, s51, 1'); e('s_add_u32 s3, s3, s26')
    e('s_lshl_b32 s3, s3, 7'); e(f's_add_u32 s3, s3, {FLAGOFF}'); e(f'v_mov_b32 v{FA}, s3')
    e('s_mov_b32 s20, 22'); e('s_mov_b32 s21, 19'); e('s_mov_b32 s22, 65536'); e('s_mov_b32 s23, s59')
    e('s_mov_b32 s18, 32768'); e('s_add_u32 s19, s59, 65536')
    e('s_waitcnt lgkmcnt(0)'); P.lg = []
    P.vm = [(('kv', -1), False)] * 4 + [(('kv', k), False) for k in range(3) for _ in range(4)] + [('tagld', True)]
    def tr(v):
        if OPT['trace']:
            e('s_memrealtime s[76:77]'); e('s_sub_u32 m0, s24, 19'); e('s_waitcnt lgkmcnt(0)'); e('s_sub_u32 s76, s76, s60'); e(f'v_writelane_b32 v{v}, s76, m0')
    KIND = [(0, 1, 1), (3, 0, 0), (1, 1, 1), (2, 1, 2)]
    def step(k, issue=True):
        P.wait(vm=('kv', k - 1)); e(f's_add_u32 s24, s20, {k}'); postL('s24')
        tr(246)
        if not issue: return
        kind, nx, co = KIND[k]
        e(f's_add_u32 s25, s21, {co}')
        need_free('s25', 's24', [('kv', k + i) for i in range(3)])
        tr(247)
        S = SK if kind < 2 else SV
        e(f's_add_u32 m0, {"s23" if nx else "s19"}, {kind*16384}')
        e(f's_add_u32 s26, {"s22" if nx else "s18"}, {(kind % 2)*16384}')
        for t in range(4):
            P.vmem(f'buffer_load_dwordx4 v{VKV+t}, s[{S}:{S+3}], s26 offen offset:{t*1024} {kvp} lds', ('kv', k + 3))
        tr(248)
    def wtouch():
        e(f'v_lshlrev_b32 v{VX+2}, 7, v{LANE}'); e('s_lshl_b32 s3, s4, 13'); e(f'v_add_u32 v{VX+2}, s3, v{VX+2}')
        e('s_and_b32 s3, s2, 127'); e('s_mul_i32 s3, s3, 36864')
        e('s_cmp_lt_u32 s2, 128'); e('s_cselect_b64 s[8:9], s[8:9], s[10:11]')
        e('s_add_u32 s8, s8, s3'); e('s_addc_u32 s9, s9, 0'); srd(P, SX, 8, 9, 36864)
        if OPT['wpf']:
            e('s_mov_b32 s26, 32768')
            P.vmem(f'buffer_load_dword v250, v{VX+2}, s[{SX}:{SX+3}], 0 offen', 'wt', optional=True)
            P.vmem(f'buffer_load_dword v251, v{VX+2}, s[{SX}:{SX+3}], s26 offen', 'wt', optional=True)
    H = OprojHelper(P, VX + 1)
    def hbody():
        step(0)
        step(1); pv8()
        def mid():
            combine1(); hreset()
            for k in range(16): e(f'v_mov_b32 v{Q8+k}, v{Q8+16+k}')
            if OPT['rtc']: touch()
        P.ool(['s_cmp_eq_u32 s27, 3'], 's_cbranch_scc1', mid, lambda w, it: it == 3)
        step(2); scores()
        step(3)
        P.ool(['s_cmp_eq_u32 s27, 3'], 's_cbranch_scc1', lambda: combine2(0), lambda w, it: it == 3)
        e('s_add_u32 s20, s20, 4'); e('s_add_u32 s21, s21, 3'); e('s_mov_b32 s18, s22'); e('s_add_u32 s22, s22, 32768')
        e('s_xor_b32 s23, s23, 65536'); e('s_xor_b32 s19, s19, 65536')
    P.loop(6, 's27', hbody, lambda t: ('kv', t[1] - 4) if t[0] == 'kv' else t)
    P.vm = [(('kv', t[0][1] - 4), t[1]) if t[0][0] == 'kv' else t for t in P.vm]
    step(0, False)
    if OPT['wpos'] == 27: wtouch()
    if OPT['rtc']: touch()
    def respin():
        sp = P.newlab('tg'); P.lab(sp)
        e('s_sleep 8'); e(f'global_load_dword v{VX+1}, v{VX}, s[82:83] sc1'); e('s_waitcnt vmcnt(0)')
        e(f'v_cmp_eq_u32 vcc, 0, v{VX+1}'); e(f's_cbranch_vccnz {sp}')
    P.ool([f'v_cmp_eq_u32 vcc, 0, v{VX+1}'], 's_cbranch_vccnz', respin, lambda w, it: False)
    def ticket():
        if OPT['dyn']:
            e('s_and_b32 s3, s2, 7'); e('s_lshl_b32 s3, s3, 4'); e('s_add_u32 s3, s3, 64')
            e(f'v_mov_b32 v{TK+1}, s3'); e(f'v_mov_b32 v{TK}, 1')
            e('s_mov_b64 exec, 1')
            P.vmem(f'global_atomic_add v{TK}, v{TK+1}, v{TK}, s[82:83] sc0 sc1', 'tk', optional=True)
            e('s_mov_b64 exec, -1')
        else:
            e('s_lshr_b32 s3, s2, 3'); e(f'v_mov_b32 v{TK}, s3')
    P.only(0, ticket)
    step(1)
    hsync()
    def sig_a():
        e('s_mov_b64 exec, 1')
        P.vmem(f'global_store_dword v{FA}, v{VX+1}, s[12:13] offset:64 sc1', 'fa', optional=True)
        e('s_mov_b64 exec, -1')
    P.only(0, sig_a)
    pv8()
    step(2, False)
    def give():
        e('s_waitcnt vmcnt(5)')
        e(f'v_mov_b32 v{TK+1}, v{VX+1}'); e(f'v_mov_b32 v{T}, {NONCE}')
        e('s_mov_b64 exec, 1'); e(f'ds_write_b64 v{T}, {vr(TK,2)}'); e('s_mov_b64 exec, -1')
    P.only(0, give)
    scores()
    hsync()
    e(f'v_mov_b32 v{T}, {NONCE}'); e(f'ds_read_b32 v{T}, v{T}'); e('s_waitcnt lgkmcnt(0)'); e(f'v_readfirstlane_b32 s79, v{T}')
    H.setup()
    step(3, False)
    P.wait(vm='f'); postL(50)
    wtouch()
    pv8(); combine1()
    def pre():
        F.need(FRC, 41); H.first()
    P.only(None, pre, pred=lambda w, it: True, cmp='s_cmp_lt_u32 s79, 27')
    combine2(1)
    ab = (OPT['abl'] + ' ' + OPT['abl2']).split()
    if ab: P.cur[i00:] = ablate(P.cur[i00:], [x for x in ab if x in ('dma', 'qdma', 'st')] + (['mfma', 'ds', 'valu'] if 'hc' in ab else []))
    stamp(P, 4, not OPT['ts2'])
    def signal():
        e('s_mov_b64 exec, 1')
        e(f'global_store_dword v{FA}, v{VX+1}, s[12:13] sc1')
        e('s_mov_b64 exec, -1')
    def idle():
        e('s_waitcnt vmcnt(0)'); e('s_barrier')
        P.only(0, signal)
        e('s_branch .Lk1_fin')
    P.ool(['s_cmp_ge_u32 s79, 27'], 's_cbranch_scc1', idle, lambda w, it: False)
    H.run(signal)

WST, OST, OR0, NS = 12288, 8192, 49152, 4
PBUF, FLAG2 = 0x2800000, 0x2100000

def op_ids(P):
    e = P.e
    e('s_and_b32 s48, s2, 3'); e('s_bfe_u32 s50, s2, 0x10002'); e('s_min_u32 s49, s79, 27')
    e('s_mul_i32 s51, s49, 43'); e('s_lshr_b32 s51, s51, 7'); e('s_mul_i32 s3, s51, 3'); e('s_sub_u32 s52, s49, s3')
    e('s_mul_i32 s53, s50, 27'); e('s_add_u32 s53, s53, s49')

def kstep(P, cnt, dst):
    e = P.e
    e(f's_and_b32 {dst}, {cnt}, 31'); e(f's_add_u32 {cnt}, {cnt}, 1'); e(f's_and_b32 s3, {cnt}, 4'); e(f's_bitcmp1_b32 {cnt}, 6')
    e(f's_cselect_b32 s57, 4, 0'); e('s_xor_b32 s3, s3, s57'); e(f's_add_u32 {cnt}, {cnt}, s3')
    e(f's_cmp_eq_u32 {cnt}, 32'); e(f's_cselect_b32 {cnt}, 68, {cnt}')

def poll_fn(P, val, ad, base, tag):
    def poll():
        sp = P.newlab('fl'); P.lab(sp)
        P.e('s_sleep 2'); P.e(f'global_load_dword v{val}, v{ad}, {base} sc1'); P.e('s_waitcnt vmcnt(0)')
        P.e(f'v_cmp_ne_u32 vcc, v{tag}, v{val}'); P.e(f's_cbranch_vccnz {sp}')
    return poll

class OprojHelper:
    SWO, SO2 = 36, 40
    VW3, VO, FLA, FLV, t = 200, 203, 205, 206, 208
    def __init__(s, P, tag): s.P, s.TAG = P, tag
    def setup(s):
        P = s.P; e = P.e; t = s.t
        op_ids(P)
        for b3 in range(3):
            e(f'v_add_u32 v{t}, {64*b3}, v{LANE}'); e(f'v_mul_u32_u24 v{t+1}, 2731, v{t}'); e(f'v_lshrrev_b32 v{t+1}, 16, v{t+1}')
            e(f'v_mul_u32_u24 v{t+2}, 24, v{t+1}'); e(f'v_sub_u32 v{t+2}, v{t}, v{t+2}')
            e(f'v_bfe_u32 v{t+3}, v{t+1}, 1, 2'); e(f'v_lshlrev_b32 v{t+3}, 1, v{t+3}'); e(f'v_xor_b32 v{t+2}, v{t+2}, v{t+3}'); e(f'v_lshlrev_b32 v{t+2}, 4, v{t+2}')
            e('s_lshl_b32 s3, s4, 3'); e(f'v_add_u32 v{t+1}, s3, v{t+1}'); e(f'v_mul_u32_u24 v{t+1}, 1152, v{t+1}'); e(f'v_add_u32 v{s.VW3+b3}, v{t+1}, v{t+2}')
        e('s_xor_b32 s3, s4, s48'); e('s_lshl_b32 s3, s3, 18'); e(f'v_lshlrev_b32 v{t}, 4, v{LANE}'); e(f'v_add_u32 v{s.VO}, s3, v{t}')
        e(f'v_add_u32 v{s.VO+1}, 131072, v{s.VO}')
        e('s_mul_i32 s14, s4, 3072'); e('s_lshl_b32 s15, s4, 11'); e(f's_add_u32 s15, s15, {OR0}')
        e('s_cmp_eq_u32 s50, 0'); e('s_cselect_b64 s[16:17], s[8:9], s[10:11]')
        e(f's_mul_i32 s3, s48, {1024*1152}'); e('s_mul_i32 s26, s52, 384'); e('s_add_u32 s3, s3, s26')
        e('s_add_u32 s16, s16, s3'); e('s_addc_u32 s17, s17, 0'); srd(P, s.SWO, 16, 17, 1023*1152 + 384)
        e('s_mul_i32 s3, s50, 72'); e('s_lshl_b32 s26, s51, 3'); e('s_add_u32 s3, s3, s26'); e('s_lshl_b32 s3, s3, 2'); e('s_add_u32 s3, s3, s48')
        e('s_lshl_b32 s3, s3, 15'); e('s_add_u32 s16, s12, s3'); e('s_addc_u32 s17, s13, 0'); srd(P, s.SO2, 16, 17, 7*131072 + 32768)
        e('s_lshl_b32 s3, s51, 3'); e('s_add_u32 s26, s3, 7'); e('s_mul_i32 s3, s3, 57'); e('s_lshr_b32 s3, s3, 9'); e('s_mul_i32 s26, s26, 57'); e('s_lshr_b32 s26, s26, 9')
        e('s_min_u32 s3, s3, 7'); e('s_min_u32 s26, s26, 7')
        e(f'v_mov_b32 v{t}, s3'); e(f'v_mov_b32 v{t+1}, s26'); e(f'v_and_b32 v{t+2}, 4, v{LANE}'); e(f'v_cmp_eq_u32 vcc, 0, v{t+2}'); e('s_nop 1')
        e(f'v_cndmask_b32 v{t}, v{t+1}, v{t}, vcc')
        e('s_lshl_b32 s3, s50, 5'); e('s_add_u32 s3, s3, s48'); e('s_lshl_b32 s3, s3, 2')
        e(f'v_lshlrev_b32 v{t}, 4, v{t}'); e(f'v_and_b32 v{t+1}, 3, v{LANE}'); e(f'v_add3_u32 v{t}, v{t}, v{t+1}, s3')
        e(f'v_lshlrev_b32 v{t}, 7, v{t}'); e(f'v_add_u32 v{s.FLA}, {FLAGOFF + 64}, v{t}')
        e('s_mov_b32 s54, 0'); e('s_mov_b32 s55, 0')
        P.vmem(f'global_load_dword v{s.FLV}, v{s.FLA}, s[12:13] sc1', 'f')
    def pages(s):
        P = s.P; e = P.e; t = s.t
        e('s_load_dwordx2 s[16:17], s[0:1], 80')
        e(f'v_lshlrev_b32 v{t}, 16, v{LANE}'); e(f'v_min_u32 v{t+1}, 40, v{LANE}'); e(f'v_lshlrev_b32 v{t+1}, 16, v{t+1}')
        e('s_waitcnt lgkmcnt(0)')
        def f():
            P.vmem(f'global_load_dword v252, v{t}, s[8:9]', 'tl', optional=True)
            P.vmem(f'global_load_dword v253, v{t}, s[10:11]', 'tl', optional=True)
            P.vmem(f'global_load_dword v254, v{t+1}, s[16:17]', 'tl', optional=True)
        P.only(2, f)
    def wo(s, k, opt=False):
        P = s.P; kstep(P, 's54', 's56'); P.e('s_mul_i32 s56, s56, 36864')
        for b3 in range(3):
            P.e(f's_add_u32 m0, s14, {(k % NS)*WST + b3*1024}')
            P.vmem(f'buffer_load_dwordx4 v{s.VW3+b3}, s[{s.SWO}:{s.SWO+3}], s56 offen lds', ('L', k), optional=opt)
    def oo(s, k, opt=False):
        P = s.P; kstep(P, 's55', 's56'); P.e('s_lshl_b32 s56, s56, 10')
        for x in range(2):
            P.e(f's_add_u32 m0, s15, {(k % NS)*OST + x*1024}')
            P.vmem(f'buffer_load_dwordx4 v{s.VO+x}, s[{s.SO2}:{s.SO2+3}], s56 offen sc1 lds', ('L', k), optional=opt)
    def check(s):
        s.P.ool([f'v_cmp_ne_u32 vcc, v{s.TAG}, v{s.FLV}'], 's_cbranch_vccnz', poll_fn(s.P, s.FLV, s.FLA, 's[12:13]', s.TAG), lambda w, it: False)
    def first(s):
        s.check()
        for k in range(NS): s.wo(k, True); s.oo(k, True)
    def run(s, signal):
        P = s.P; e = P.e
        e('s_waitcnt vmcnt(16)'); e('s_barrier')
        stamp(P, 5, not OPT['ts2'])
        P.vm = [(('F', -3), False)] + [(('L', k), False) for k in (1, 2, 3) for _ in range(5)]
        def body():
            for k in range(NS):
                P.wait(vm=('L', k + 1)); e('s_barrier')
                if k == 0:
                    e('s_cmp_eq_u32 s27, 7'); e(f's_cselect_b32 s59, {BIG}, 0')
                    for r in range(5): e(f'v_add_u32 v{s.VW3+r}, s59, v{s.VW3+r}')
                if k == 1:
                    e('s_cmp_eq_u32 s27, 2'); e('s_cselect_b32 s57, 64, 0'); e(f'v_subrev_u32 v{s.FLA}, s57, v{s.FLA}')
                    P.vmem(f'global_load_dword v{s.FLV}, v{s.FLA}, s[12:13] sc1', ('F', 1))
                if k == 3:
                    e('s_lshl_b32 s3, s27, 2'); e('s_add_u32 s3, s3, s4')
                    P.ool(['s_cmp_eq_u32 s3, 0'], 's_cbranch_scc1', signal, lambda w, it: False)
                s.wo(k + NS)
                if k == 0: s.check()
                s.oo(k + NS)
        P.loop(8, 's27', body, lambda t: (t[0], t[1] - NS) if isinstance(t, tuple) else t)
        stamp(P, 6, not OPT['ts2'])
        e('s_barrier')
        def sig2():
            e('s_lshl_b32 s3, s53, 2'); e('s_add_u32 s3, s3, s48'); e('s_lshl_b32 s3, s3, 7'); e(f's_add_u32 s3, s3, {FLAG2}'); e('v_mov_b32 v2, s3')
            e('s_mov_b64 exec, 1'); e(f'global_store_dword v2, v{s.TAG}, s[12:13] sc1'); e('s_mov_b64 exec, -1')
        P.only(0, sig2)

def gen_oproj(P):
    e = P.e
    SP, SOUT = 28, 32
    ACC, AF, BF, AA, AB, L16, VOUT, FLA, FLV, TAG = 0, 96, 144, 176, 182, 183, 184, 185, 186, 235
    def idle():
        e('s_waitcnt vmcnt(0)'); e('s_barrier'); e('s_branch .Lk1_fin')
    e(f'v_mov_b32 v{TAG-1}, {NONCE}'); e(f'ds_read_b64 {vr(TAG-1,2)}, v{TAG-1}'); e('s_waitcnt lgkmcnt(0)'); e(f'v_readfirstlane_b32 s79, v{TAG-1}')
    P.ool(['s_cmp_ge_u32 s79, 27'], 's_cbranch_scc1', idle, lambda w, it: False)
    e('s_load_dwordx2 s[12:13], s[0:1], 80'); e('s_load_dwordx2 s[14:15], s[0:1], 96')
    e('v_mbcnt_lo_u32_b32 v0, -1, 0'); e('v_mbcnt_hi_u32_b32 v0, -1, v0')
    e('v_and_b32 v3, 15, v0'); e('v_lshrrev_b32 v4, 4, v0'); e('v_lshrrev_b32 v5, 2, v3'); e('v_and_b32 v6, 3, v3')
    e(f'v_lshlrev_b32 v{L16}, 4, v0')
    e('s_and_b32 s5, s4, 1'); e('s_lshr_b32 s6, s4, 1')
    e('v_lshl_add_u32 v7, v4, 2, v5'); e('v_bfe_u32 v8, v7, 1, 2'); e('v_mul_u32_u24 v7, 384, v7'); e('v_lshl_add_u32 v7, v6, 3, v7')
    e('s_mul_i32 s3, s5, 6')
    for k in range(6):
        e(f's_add_u32 s26, s3, {k}'); e('v_xor_b32 v9, s26, v8'); e(f'v_lshl_add_u32 v{AA+k}, v9, 5, v7')
    e('s_lshl_b32 s3, s6, 10'); e(f's_add_u32 s3, s3, {OR0}'); e(f'v_add_u32 v{AB}, s3, v{L16}')
    e('v_mul_u32_u24 v7, 2304, v3'); e('v_lshl_add_u32 v7, v4, 4, v7'); e('s_mul_i32 s3, s5, 192'); e(f's_mul_i32 s26, s6, {16*2304}'); e('s_add_u32 s3, s3, s26'); e(f'v_add_u32 v{VOUT}, s3, v7')
    e('v_and_b32 v7, 3, v0'); e('v_max_u32 v7, 1, v7'); e(f'v_mov_b32 v{FLA}, v7')
    for i in range(96): e(f'v_mov_b32 v{i}, 0')
    e('s_waitcnt lgkmcnt(0)'); P.vm = []; P.lg = []
    e('s_barrier')
    stamp(P, 5, not OPT['ts2'])
    def ids():
        op_ids(P)
        e('s_mul_i32 s3, s53, 147456'); e(f's_add_u32 s3, s3, {PBUF}'); e('s_add_u32 s8, s14, s3'); e('s_addc_u32 s9, s15, 0'); srd(P, SP, 8, 9, 147456)
        e('s_lshl_b32 s3, s51, 2'); e('s_add_u32 s3, s3, s48'); e(f's_mul_i32 s3, s3, {32*2304}'); e('s_mul_i32 s26, s50, 1152'); e('s_add_u32 s3, s3, s26')
        e('s_mul_i32 s26, s52, 384'); e('s_add_u32 s3, s3, s26'); e('s_add_u32 s12, s12, s3'); e('s_addc_u32 s13, s13, 0'); srd(P, SOUT, 12, 13, 31*2304 + 384)
        e(f'v_xor_b32 v{FLA}, s48, v{FLA}'); e('s_lshl_b32 s3, s53, 2'); e(f'v_add_u32 v{FLA}, s3, v{FLA}'); e(f'v_lshlrev_b32 v{FLA}, 7, v{FLA}')
        e(f'v_add_u32 v{FLA}, {FLAG2}, v{FLA}')
    def reads(s):
        a, b = AF + 24*(s % 2), BF + 16*(s % 2)
        rb = [(lambda l=l: P.ds(f'ds_read_b128 {vr(b + 4*l, 4)}, v{AB} offset:{(s % NS)*OST + l*2048}', ('R', s))) for l in range(4)]
        ra = [(lambda k=k, hf=hf: P.ds(f'ds_read_b64_tr_b16 {vr(a + 4*k + 2*hf, 2)}, v{AA+k} offset:{(s % NS)*WST + hf*6144}', ('R', s)))
              for k in range(6) for hf in range(2)]
        return rb[:1] + ra[:6] + rb[1:2] + ra[6:] + rb[2:]
    for i, f in enumerate(reads(0)):
        if i == 12: e('s_waitcnt lgkmcnt(8)'); P.lg = P.lg[-8:]
        f()
    ids()
    def body():
        for s in range(NS):
            P.wait(lg='all')
            if s == 3: e('s_waitcnt vmcnt(0)')
            e('s_barrier')
            rs = reads(s + 1)
            for n in range(24):
                l, k = n // 6, n % 6
                mfma(P, ACC + (l*6 + k)*4, AF + 24*(s % 2) + 4*k, BF + 16*(s % 2) + 4*l)
                if n == 13: e('s_waitcnt lgkmcnt(8)'); P.lg = P.lg[-8:]
                if n < 16: rs[n]()
    P.lg = [('R', 0)] * 11
    P.loop(8, 's27', body, lambda t: (t[0], t[1] - NS))
    stamp(P, 6, not OPT['ts2'])
    P.wait(lg='all')
    stamp(P, 1, OPT['st'] == 'X')
    e('s_mul_i32 s49, s4, 3072')
    for r in range(1, 4):
        e(f's_xor_b32 s3, s48, {r}'); e('s_mul_i32 s3, s3, 36864'); e('s_add_u32 s3, s3, s49'); e(f's_add_u32 s26, s3, {(r - 1)*12288}')
        for tp in range(3):
            a, D = ACC + (r*6 + 2*tp)*4, 96 + ((r - 1)*3 + tp)*4
            for i in range(4): e(f'v_cvt_pk_bf16_f32 v{D+i}, v{a+2*i}, v{a+2*i+1}')
            P.vmem(f'buffer_store_dwordx4 {vr(D, 4)}, v{L16}, s[{SP}:{SP+3}], s26 offen offset:{tp*1024} sc1', 'st')
    stamp(P, 2, OPT['st'] == 'X')
    e('s_waitcnt vmcnt(0)'); P.vm = []
    stamp(P, 3, OPT['st'] == 'X')
    e('s_barrier')
    e(f'global_load_dword v{FLV}, v{FLA}, s[14:15] sc1'); e('s_waitcnt vmcnt(0)')
    stamp(P, 4, OPT['st'] == 'X')
    P.ool([f'v_cmp_ne_u32 vcc, v{TAG}, v{FLV}'], 's_cbranch_vccnz', poll_fn(P, FLV, FLA, 's[14:15]', TAG), lambda w, it: False)
    stamp(P, 5, OPT['st'] == 'X')
    e('s_mul_i32 s3, s48, 36864'); e('s_add_u32 s3, s3, s49'); e('s_mov_b32 s57, 0xffff0000')
    RB = lambda q, tp: 24 + (q*3 + tp)*4
    for q in range(3): e(f's_add_u32 s{16+q}, s3, {q*12288}')
    for tp in range(3):
        for q in range(3):
            P.vmem(f'buffer_load_dwordx4 {vr(RB(q, tp), 4)}, v{L16}, s[{SP}:{SP+3}], s{16+q} offen offset:{tp*1024} sc1', ('p', tp))
    for kp in range(3):
        P.wait(vm=('p', kp))
        for q in range(3):
            for i in range(4):
                e(f'v_lshlrev_b32 v64, 16, v{RB(q, kp) + i}'); e(f'v_and_b32 v65, s57, v{RB(q, kp) + i}')
                e(f'v_add_f32 v{ACC + 8*kp + 2*i}, v{ACC + 8*kp + 2*i}, v64'); e(f'v_add_f32 v{ACC + 8*kp + 2*i + 1}, v{ACC + 8*kp + 2*i + 1}, v65')
        X, Y, D = ACC + 8*kp, ACC + 8*kp + 4, 136 + 4*kp
        e(f'v_cvt_pk_bf16_f32 v{D}, v{X}, v{X+1}'); e(f'v_cvt_pk_bf16_f32 v{D+1}, v{X+2}, v{X+3}')
        e(f'v_cvt_pk_bf16_f32 v{D+2}, v{Y}, v{Y+1}'); e(f'v_cvt_pk_bf16_f32 v{D+3}, v{Y+2}, v{Y+3}')
        for sw in ('32', '16'):
            e(f'v_permlane{sw}_swap_b32 v{D}, v{D+2}'); e(f'v_permlane{sw}_swap_b32 v{D+1}, v{D+3}')
        P.vmem(f'buffer_store_dwordx4 {vr(D,4)}, v{VOUT}, s[{SOUT}:{SOUT+3}], 0 offen offset:{kp*64} {OPT["out_st"]}', 'st')
    stamp(P, 6, OPT['st'] == 'X')

HDR = open('cdna_kernels/' + NAME + '.s.ref').read().split('; Override launch')[0]

def kd(name, vg, sg):
    return f""".p2align 6
.amdhsa_kernel {name}
  .amdhsa_next_free_vgpr {vg}
  .amdhsa_next_free_sgpr {sg}
  .amdhsa_accum_offset {(vg+3)//4*4}
  .amdhsa_group_segment_fixed_size 0
  .amdhsa_kernarg_size 104
  .amdhsa_user_sgpr_count 2
  .amdhsa_user_sgpr_kernarg_segment_ptr 1
  .amdhsa_system_sgpr_workgroup_id_x 1
.end_amdhsa_kernel
"""

def build():
    P = gen_k1()
    out = HDR
    out += f'; @launch grid=(256,1,1) block=(512,1,1) lds={K1_LDS}\n'
    out += '.amdgcn_target "amdgcn-amd-amdhsa--gfx950"\n.text\n'
    P.pad_hazards()
    if not OPT["abl"] and not OPT["abl2"] and not OPT["abl3"] and not OPT.get("cyc") and not OPT["trace"]: P.check_loads()
    sys.stderr.write(f'{dict(P.count(0))}\n')
    out += f'.globl {KNAME}\n.p2align 8\n.type {KNAME},@function\n{KNAME}:\n' + '\n'.join(P.emit()) + '\n'
    out += '.Lcode_end:\n'
    out += '.section .rodata,"a"\n' + kd(KNAME, 256, 102)
    return out

if __name__ == '__main__':
    dst = 'cdna_kernels/' + NAME + '.s'
    for a in sys.argv[1:]:
        if '=' in a:
            k, v = a.split('=', 1)
            if k == 'out': dst = v
            elif isinstance(OPT[k], bool): OPT[k] = (v == '1')
            elif isinstance(OPT[k], int): OPT[k] = int(v)
            else: OPT[k] = v.replace('+', ' ')
    open(dst, 'w').write(build())
```

```python
import sys, struct, math, re
from dsl import *

NAME = 'concat_heads__mha_block_cached__gqa_block_cached__near_ridge'
def fbits(x): return struct.unpack('<I', struct.pack('<f', x))[0]
CSC = math.log2(math.e) / math.sqrt(128.0)
BIG = 0x20000000

OPT = dict(kv_pol='nt', x_pol='', w_pol='', o_st='sc1', o_ld='sc1', wo_pol='', out_st='', ts=False, ts2=False, clk=False,
           qrot=True, k2a=1, k2b=0, cpf=2, abl='', abl2='', t0=22, lak=2, w2=False, cyc=False, krot=0, slp=3, nw=8, nw0=2, pa=27, dyn=False, nf=True, rtc=0, ea='15,16,16', wpos=31, trace=False, dbg=False, tlb=0, qx=4, pfi='0,1,4,5', pfs='3,6,9,12', abl3='', wpf=True, spread=True, dla=4, ela=4, la=4, kvq='5,8,11,14', st='', sti=1, hprio=1, post4=3)

def mfma(P, d, a, b, first=False):
    c = '0' if first else vr(d, 4)
    P.e(f'v_mfma_f32_16x16x32_bf16 {vr(d,4)}, {vr(a,4)}, {vr(b,4)}, {c}')

def mfma32(P, d, a, b, first=False):
    c = '0' if first else vr(d, 16)
    P.e(f'v_mfma_f32_32x32x16_bf16 {vr(d,16)}, {vr(a,4)}, {vr(b,4)}, {c}')

def femit(P, dst, x, t1, t2):
    P.e(f'v_lshrrev_b32 v{t1}, 3, v{x}')
    P.e(f'v_lshrrev_b32 v{t2}, 2, v{x}')
    P.e(f'v_xor_b32 v{t2}, v{t2}, v{t1}')
    P.e(f'v_and_b32 v{t2}, 1, v{t2}')
    P.e(f'v_lshl_or_b32 v{t1}, v{t2}, 1, v{t1}')
    P.e(f'v_and_b32 v{dst}, 3, v{x}')
    P.e(f'v_lshl_or_b32 v{dst}, v{dst}, 2, v{t1}')

def srd(P, d, lo, hi, size):
    P.e(f's_mov_b32 s{d}, s{lo}')
    P.e(f's_and_b32 s{d+1}, s{hi}, 0xffff')
    P.e(f's_mov_b32 s{d+2}, {size}')
    P.e(f's_mov_b32 s{d+3}, 0x20000')

def stamp(P, idx, cond=True):
    if OPT['ts'] and cond:
        P.e(f's_memrealtime s[{60+2*idx}:{61+2*idx}]')
        if OPT['clk'] and idx in (3, 4): P.e(f's_memtime s[{94+2*idx}:{95+2*idx}]')
        if OPT['clk'] and idx in (1, 2): P.e(f's_memtime s[{74+2*idx}:{75+2*idx}]')
        if OPT['clk'] and idx == 2: P.e('s_waitcnt lgkmcnt(0)'); P.e('s_sub_u32 s80, s78, s76')
        P.e('s_waitcnt lgkmcnt(0)')
def stamp_it(P, idx, itv):
    if OPT['ts'] and OPT['ts2']:
        def f():
            P.e(f'{"s_memtime" if OPT["cyc"] else "s_memrealtime"} s[{60+2*idx}:{61+2*idx}]')
            if not OPT['cyc']: P.e('s_waitcnt lgkmcnt(0)')
        P.ool([f's_cmp_eq_u32 s27, {itv}'], 's_cbranch_scc1', f, lambda w, it: it == itv)
def stamps_out(P, off, wreg, wg_shift):
    e = P.e
    P.wait(vm='all')
    stamp(P, 7)
    if OPT['dbg']:
        def f():
            e('s_not_b32 s3, s60'); e('v_mov_b32 v2, s3'); e('v_mov_b32 v0, 0'); e('s_mov_b64 exec, 1')
            e('global_atomic_umax v0, v2, s[82:83] offset:4 sc1')
            for k in range(8):
                e(f'v_mov_b32 v{3+k}, s{60+2*k}'); e(f'global_atomic_umax v0, v{3+k}, s[82:83] offset:{8+4*k} sc1')
            for i, k in enumerate((1, 2, 4, 7)):
                e(f's_sub_u32 s3, 0, s{60+2*k}'); e(f'v_mov_b32 v{12+i}, s3'); e(f'global_atomic_umax v0, v{12+i}, s[82:83] offset:{40+4*i} sc1')
            e('s_mov_b64 exec, -1'); e('s_waitcnt vmcnt(0)')
        P.only(None, f, pred=lambda w, it: True, cmp=f's_cmp_eq_u32 {wreg}, 0')
        return
    if OPT['clk']:
        e('s_sub_u32 s72, s78, s76'); e('s_mov_b32 s73, 0'); e('s_mov_b32 s70, s80'); e('s_mov_b32 s71, 0')
    if False:
        e('s_sub_u32 s70, s12, s10'); e('s_mov_b32 s71, 0')
        if P.name == 'k1':
            e('s_sub_u32 s72, s16, s14'); e('s_mov_b32 s73, 0')
    e('s_load_dwordx2 s[24:25], s[0:1], 96'); e('s_waitcnt lgkmcnt(0)')
    e(f's_add_u32 s24, s24, {off}'); e('s_addc_u32 s25, s25, 0')
    e(f's_lshl_b32 s3, s2, {wg_shift}'); e(f's_lshl_b32 s26, {wreg}, 6'); e('s_add_u32 s3, s3, s26')
    e('v_mov_b32 v0, s3')
    for k in range(8):
        e(f'v_mov_b32 v2, s{60+2*k}'); e(f'v_mov_b32 v3, s{61+2*k}')
        e(f'global_store_dwordx2 v0, v[2:3], s[24:25] offset:{8*k}')
        e('s_waitcnt vmcnt(0)')

def code_prefetch(P, start, end, dst):
    e = P.e
    e('s_getpc_b64 s[56:57]')
    P.lab(f'.Lpc_{P.name}')
    e(f's_sub_u32 s56, s56, .Lpc_{P.name}-{start}'); e('s_subb_u32 s57, s57, 0')
    if OPT['cpf'] == 2:
        e('s_lshr_b32 s3, s2, 3'); e('s_lshl_b32 s3, s3, 11'); e('v_and_b32 v12, 15, v0'); e('v_lshlrev_b32 v12, 7, v12'); e('v_add_u32 v12, s3, v12')
    else: e('v_lshlrev_b32 v12, 7, v0')
    e(f's_mov_b32 s3, {end}-{start}-4')
    e(f'v_min_u32 v13, s3, v12')
    P.vmem(f'global_load_dword v{dst}, v13, s[56:57]', 'pf')

STG, XB = 25600, 9216
QB0, NQ = 0, 5
XCH = 131072
FLG = 161792
K1_LDS = 163840
SX, SW, SK, SV, SO = 28, 32, 36, 40, 44
FW, FRL, FRC, FT, FV, LANE = 186, 187, 188, 189, 190, 191

def sidx(s): return (s + 2) % NQ

class Flags:
    def __init__(s, P): s.P = P
    def post(s, val, off=0):
        s.P.e(f'v_mov_b32 v{FV}, {val}')
        s.P.ds(f'ds_write_b32 v{FW}, v{FV} offset:{off}', 'fw')
    def read(s, ad): s.P.ds(f'ds_read_b32 v{FT}, v{ad}', 'fr')
    def check(s, ad, val):
        P = s.P
        P.wait(lg='fr')
        def spin():
            sp = P.newlab('sp'); P.lab(sp)
            if OPT['slp']: P.e(f's_sleep {OPT["slp"]}')
            P.e(f'ds_read_b32 v{FT}, v{ad}'); P.e('s_waitcnt lgkmcnt(0)')
            P.e(f'v_cmp_gt_u32 vcc, {val}, v{FT}'); P.e('s_nop 0'); P.e(f's_cbranch_vccnz {sp}')
        P.ool([f'v_cmp_gt_u32 vcc, {val}, v{FT}'], 's_cbranch_vccnz', spin, lambda w, it: False)
    def need(s, ad, val): s.read(ad); s.check(ad, val)

KNAME = NAME + '_kernel'
FLAGOFF = 0x2000000
NONCE = FLG + 1024

def gen_k1():
    P = Prog('k1', 's4'); e = P.e
    F = Flags(P)
    e('s_cmp_ge_u32 s2, 256'); e('s_cbranch_scc1 .Lk1_end')
    e('s_load_dwordx8 s[8:15], s[0:1], 0')
    e('s_load_dwordx8 s[16:23], s[0:1], 40')
    e('s_load_dwordx2 s[24:25], s[0:1], 96')
    e('s_load_dwordx2 s[82:83], s[0:1], 88')
    if OPT['ts']:
        e('s_memrealtime s[60:61]')
        for k in range(62, 76): e(f's_mov_b32 s{k}, 0')
    if OPT['cpf']: code_prefetch(P, KNAME, '.Lcode_end', 87)
    e('v_lshrrev_b32 v14, 6, v0')
    e('v_readfirstlane_b32 s87, v14')
    e(f'v_and_b32 v{LANE}, 63, v0')
    e('s_and_b32 s4, s87, 3'); e('s_lshr_b32 s81, s87, 2')
    e('s_and_b32 s48, s2, 7'); e('s_lshr_b32 s49, s2, 3')
    e('s_lshr_b32 s50, s48, 2')
    e('s_and_b32 s51, s48, 3'); e('s_lshl_b32 s51, s51, 3')
    e('s_and_b32 s55, s49, 3'); e('s_lshl_b32 s55, s55, 1'); e('s_add_u32 s51, s51, s55')
    e('s_lshr_b32 s52, s49, 2')
    e(f's_mov_b32 s7, {fbits(CSC):#x}')
    gens, st = {True: gen_main(P, F), False: gen_helper(P, F)}, {}
    def role1(m):
        next(gens[m]); st[m] = list(P.vm); P.vm = []
    P.variant(None, role1, pred=lambda w, it: (w & 4) == 0, cmp='s_cmp_eq_u32 s81, 0')
    e(f'v_and_b32 v2, 31, v0'); e('v_lshlrev_b32 v2, 2, v2'); e('v_lshl_add_u32 v2, v14, 7, v2'); e(f'v_add_u32 v{FW}, {FLG}, v2')
    e('v_and_b32 v2, 3, v0'); e('v_mul_u32_u24 v2, 132, v2'); e(f'v_add_u32 v{FRL}, {FLG + 1536}, v2')
    e('v_and_b32 v2, 7, v0'); e('v_mul_u32_u24 v2, 132, v2'); e(f'v_add_u32 v{FRC}, {FLG}, v2')
    e(f'v_mov_b32 v{FV}, 0')
    e(f'ds_write_b32 v{FW}, v{FV}'); e(f'ds_write_b32 v{FW}, v{FV} offset:1024'); e('s_waitcnt lgkmcnt(0)')
    def role(m):
        P.vm = st[m]
        for _ in gens[m]: pass
        P.lg = []; P.vm = []
    P.variant(None, role, pred=lambda w, it: (w & 4) == 0, cmp='s_cmp_eq_u32 s81, 0')
    P.lab('.Lk1_fin')
    if OPT['ts']:
        e('s_waitcnt vmcnt(0) lgkmcnt(0)')
        stamps_out(P, 0x4000000, 's87', 9)
    P.lab('.Lk1_end')
    e('s_endpgm')
    return P

def o_srd(P):
    e = P.e
    e('s_mul_i32 s3, s50, 72'); e('s_mul_i32 s26, s52, 9'); e('s_add_u32 s3, s3, s26'); e('s_lshl_b32 s3, s3, 7')
    e('s_lshl_b32 s26, s51, 2'); e('s_add_u32 s3, s3, s26'); e('s_lshl_b32 s3, s3, 10')
    e('s_add_u32 s24, s24, s3'); e('s_addc_u32 s25, s25, 0'); srd(P, SO, 24, 25, (8 * 128 + 8) * 1024)

def qrot(P):
    e = P.e
    if OPT['qrot']:
        e('s_add_u32 s53, s55, s52'); e('s_and_b32 s53, s53, 7'); e('s_mul_i32 s53, s53, 9'); e('s_lshr_b32 s53, s53, 2')
    else: e('s_mov_b32 s53, 0')

def latest(P, tags):
    need = [t for t in tags if t in P.lg]
    if need: P.wait(lg=max(need, key=lambda t: len(P.lg) - 1 - P.lg[::-1].index(t)))

def ablate(items, ab):
    out = []
    for x in items:
        if isinstance(x, Ins):
            if 'mfma' in ab and x.kind == 'mfma': continue
            if 'valu' in ab and x.op in ('v_exp_f32', 'v_add_f32', 'v_cvt_pk_bf16_f32', 'v_max3_f32'): continue
            if 'exp' in ab and x.op in ('v_exp_f32', 'v_add_f32', 'v_cvt_pk_bf16_f32'): continue
            if 'pv' in ab and x.kind == 'mfma' and re.match(r'v\[(0|16|32|48):', x.ops[0]): continue
            if 'tr' in ab and 'tr_b16' in x.op: continue
            if 'ds' in ab and x.kind == 'dsr' and f'v{FT},' not in x.text: continue
            if 'dma' in ab and x.kind == 'dma' and ' nt ' in x.text: continue
            if 'st' in ab and x.kind == 'vstore' and 's[44:47]' in x.text: continue
            if 'qdma' in ab and x.kind == 'dma' and ' nt ' not in x.text: continue
        elif isinstance(x, Variant): x.A = ablate(x.A, ab); x.B = ablate(x.B, ab)
        elif isinstance(x, Loop): x.body = ablate(x.body, ab)
        out.append(x)
    return out

def gen_main(P, F):
    e = P.e
    O, S, FB, AK, AV, QA, QBr = 0, 64, 128, 160, 168, 224, 192
    LA_, ONES, M_, R_, T1, VST = 152, 164, 184, (FRC, LANE), (FT, FV), FT
    AW, AX, BFm, AW2, VW, SAV = 160, 168, 170, 64, 74, 76
    ACC = (0, 192)
    t = 20
    e(f'v_and_b32 v{t}, 15, v{LANE}'); e(f'v_lshrrev_b32 v{t+1}, 4, v{LANE}')
    for u in range(2):
        e('s_lshl_b32 s3, s4, 3'); e(f's_add_u32 s3, s3, {4*u}'); e(f'v_add_u32 v{t+4}, s3, v{t+1}'); e(f'v_and_b32 v{t+5}, 15, v{t+4}')
        femit(P, t+6, t+5, t+7, t+8)
        e(f'v_xor_b32 v{t+6}, v{t+6}, v{t}'); e(f'v_lshlrev_b32 v{t+6}, 4, v{t+6}'); e(f'v_lshl_add_u32 v{VW+u}, v{t+4}, 13, v{t+6}')
    e('s_lshl_b32 s6, s4, 11')
    qrot(P); e('s_lshl_b32 s54, s53, 18')
    e('s_waitcnt lgkmcnt(0)')
    e('s_cmp_eq_u32 s50, 0'); e('s_cselect_b64 s[14:15], s[14:15], s[22:23]')
    e('s_lshl_b32 s3, s51, 8'); e('s_add_u32 s14, s14, s3'); e('s_addc_u32 s15, s15, 0')
    srd(P, SW, 14, 15, 575 * 8192 + 512)
    def wpiece(s, k):
        hd, u = k // 2, k % 2
        def pre(): e(f's_add_u32 m0, s6, {QB0 + sidx(s)*STG + XB + hd*8192 + u*1024 - hd*256}')
        def post():
            P.vmem(f'buffer_load_dwordx4 v{VW+u}, s[{SW}:{SW+3}], s54 offen offset:{hd*256} {OPT["w_pol"]} lds', ('q', s))
        return pre, post
    def wadv(): e('s_add_u32 s54, s54, 262144'); e(f's_cmp_eq_u32 s54, {18*262144}'); e('s_cselect_b32 s54, 0, s54')
    for s in range(2):
        for k in range(4): a_, b_ = wpiece(s, k); a_(); b_()
        wadv()
    yield
    e(f'v_lshrrev_b32 v{t+2}, 2, v{t}'); e(f'v_and_b32 v{t+3}, 3, v{t}')
    def traddr(dst, shift, base):
        e(f'v_lshl_add_u32 v{t+4}, v{t+1}, {shift}, v{t+2}'); e(f'v_and_b32 v{t+5}, 15, v{t+4}'); femit(P, t+6, t+5, t+7, t+8)
        e(f'v_lshrrev_b32 v{t+7}, 1, v{t+3}'); e(f'v_xor_b32 v{t+6}, v{t+6}, v{t+7}')
        e(f'v_lshlrev_b32 v{t+6}, 4, v{t+6}'); e(f'v_and_b32 v{t+7}, 1, v{t+3}'); e(f'v_lshl_or_b32 v{t+6}, v{t+7}, 3, v{t+6}')
        e(f'v_lshl_add_u32 v{t+6}, v{t+4}, 8, v{t+6}'); e(f'v_add_u32 v{dst}, {base}, v{t+6}')
    traddr(AW, 3, QB0 + XB)
    for d in range(1, 8): e(f'v_xor_b32 v{AW+d}, {d << 5}, v{AW}')
    e(f'v_sub_u32 v{t+6}, 4, v{t+2}'); e(f'v_and_b32 v{t+6}, 3, v{t+6}'); e(f'v_xor_b32 v{t+6}, v{t+6}, v{t+1}'); e(f'v_lshlrev_b32 v{t+6}, 4, v{t+6}')
    e(f'v_lshl_add_u32 v{t+6}, v{t}, 6, v{t+6}'); e(f's_add_u32 s3, s6, {QB0}'); e(f'v_add_u32 v{AX}, s3, v{t+6}')
    for k in range(9): e(f'v_add_u32 v{AW2+k}, {2*STG}, v{AW+k}')
    def qa(s): return (AW, sidx(s)*STG) if sidx(s) < 2 else (AW2, (sidx(s) - 2)*STG)
    traddr(SAV, 2, 32768)
    femit(P, t+6, t, t+7, t+8)
    e(f'v_xor_b32 v{t+6}, v{t+6}, v{t+1}'); e(f'v_lshlrev_b32 v{t+6}, 4, v{t+6}'); e(f'v_lshl_add_u32 v{FRC}, v{t}, 8, v{t+6}')
    o_srd(P)
    P.wait(vm=('q', 0))
    seq = [(s, hd, dt) for s in range(18) for hd in range(2) for dt in range(8)]
    NB, LA = 8, 5
    def rdA(i, hf):
        s, hd, dt = seq[i]; a, off = qa(s)
        P.ds(f'ds_read_b64_tr_b16 {vr(FB + 4*(i % NB) + 2*hf, 2)}, v{a + (dt ^ hf)} offset:{off + hd*8192 + 1024*hf}', ('A', i))
    def rdB(s, j):
        a, off = qa(s)
        P.ds(f'ds_read_b128 {vr(BFm + 8*(s % 2) + 4*j, 4)}, v{a + 8} offset:{off + 1024*j}', ('B', s, j))
    e('s_barrier')
    stamp(P, 1, not OPT['ts2'])
    rdB(0, 0); rdB(0, 1)
    for i in range(LA): rdA(i, 0); rdA(i, 1)
    for k in range(4): a_, b_ = wpiece(2, k); a_(); b_()
    wadv()
    i0 = len(P.cur)
    for i, (s, hd, dt) in enumerate(seq):
        k = i % 16
        WP = {1: 0, 3: 1, 5: 2, 7: 3}
        if k in WP and s + 3 < 18: wpiece(s + 3, WP[k])[0]()
        latest(P, [('A', i), ('B', s, 0), ('B', s, 1)])
        mfma(P, ACC[hd] + dt*8, FB + 4*(i % NB), BFm + 8*(s % 2), s == 0)
        if k in WP and s + 3 < 18: wpiece(s + 3, WP[k])[1]()
        if k == 8 and s + 3 < 18: wadv()
        if s < 17 and k == 16 - LA - 1:
            P.wait(vm=('q', s + 1)); e('s_barrier')
        if i + LA < len(seq): rdA(i + LA, 0)
        mfma(P, ACC[hd] + dt*8 + 4, FB + 4*(i % NB), BFm + 8*(s % 2) + 4, s == 0)
        if i + LA < len(seq): rdA(i + LA, 1)
        if s < 17:
            if k == 11: rdB(s + 1, 0)
            if k == 12: rdB(s + 1, 1)
        if i == len(seq) - 1: e('s_barrier')
    if OPT['abl']: P.cur[i0:] = ablate(P.cur[i0:], OPT['abl'].split())
    stamp(P, 2, not OPT['ts2'])
    P.wait(vm='all')
    e(f'v_mov_b32 v{AK}, v{FRC}')
    for u in range(1, 4): e(f'v_xor_b32 v{AK+u}, {u << 6}, v{AK}')
    e(f'v_mov_b32 v{AV}, v{SAV}')
    for d in range(1, 8): e(f'v_xor_b32 v{AV+d}, {d << 5}, v{AV}')
    for k in range(4): e(f'v_mov_b32 v{ONES+k}, 0x3f803f80')
    NB = 6
    PX = 176
    order = [('S', 0), ('S', 1), ('P', 2), ('S', 2), ('S', 3), ('P', 3), ('P', 0), ('P', 1)]
    pbase = lambda b, j: PX + 4*j if b == 3 else S + 16*b + 8*j
    mf, reads = [], []
    for kind, b in order:
        for k in range(8):
            if kind == 'S':
                tt, u = k // 4, k % 4
                reads.append((('K', b, k), 1, AK + u, b*8192 + tt*4096))
                mf.append([(S + 16*b + 8*j + 4*tt, QA + 8*u + 4*j, u == 0) for j in range(2)])
            else:
                reads.append((('V', b, k), 2, AV + k, b*8192))
                mf.append([(O + 32*j + 4*k, pbase(b, j), False) for j in range(2)])
    prev = lambda m: order[m // 8] in (('P', 2), ('P', 3))
    CHK, LA = 48, OPT['lak']
    def rd(i, it=0):
        tag, n, ad, off = reads[i]; b = FB + 4*(i % NB)
        if n == 1: P.ds(f'ds_read_b128 {vr(b,4)}, v{ad} offset:{off}', (it,) + tag)
        else:
            P.ds(f'ds_read_b64_tr_b16 {vr(b,2)}, v{ad} offset:{off}', (it,) + tag)
            P.ds(f'ds_read_b64_tr_b16 {vr(b+2,2)}, v{ad} offset:{off + 4096}', (it,) + tag)
    groups = [(b, j) for b in range(4) for j in range(2)]
    gb = {g: S + 16*g[0] + 8*g[1] for g in groups}
    sdone = {0: 7, 1: 15, 2: 31, 3: 39}
    dline = {0: 48, 1: 56, 2: 80, 3: 96}
    def valu_plan():
        T0 = OPT['t0']
        at = {m: [] for m in range(128)}
        for b in range(4):
            for k in range(8): at[min(sdone[b] + 1 + k, CHK - 1)].append(((b, k // 4), 'max', k % 4))
        for i, g in enumerate(groups):
            for k in range(8):
                m = T0 + 8*i + k
                at[m].insert(0, (g, 'exp', k))
                if k % 2 == 1: at[m + 1].append((g, 'cvt', k // 2))
            assert T0 + 8*i + 8 < dline[g[0]] and T0 + 8*i > min(sdone[g[0]] + 1 + 4*g[1] + 3, CHK - 1)
        post = {m: [(1,) + o for o in at[m + 64]] + [(0,) + o for o in at[m]] for m in range(64)}
        for m in post: post[m].sort(key=lambda o: o[2] != 'exp')
        return post
    vpost = valu_plan()
    def vop(o, m, slow=False):
        lag, g, k_, k = o; r = gb[g]; j = g[1]
        if k_ == 'max': e(f'v_max3_f32 v{M_+j}, v{M_+j}, v{r+2*k}, v{r+2*k+1}')
        elif k_ == 'exp': e(f'v_exp_f32 v{r+k}, v{r+k}')
        else: e(f'v_cvt_pk_bf16_f32 v{pbase(*g)+k}, v{r+2*k}, v{r+2*k+1}')
    CK = {16 - LA - 1: 's90', 24 - LA - 1: 's91', 48 - LA - 1: 's92', 64 - LA - 1: 's93'}
    POST = {47: 's94', 49: 's95', 63: 's96'}
    def qfin(a, pk):
        ops = [f'v_pk_mul_f32 {vr(a+k,2)}, {vr(a+k,2)}, s[84:85] op_sel:[0,1]' for k in range(0, 64, 2)] if pk else [f'v_mul_f32 v{a+k}, s85, v{a+k}' for k in range(64)]
        for u in range(4):
            for j in range(2):
                q, X, Y = a + 8*u + 4*j, a + 16*u + 4*j, a + 16*u + 8 + 4*j
                ops += [f'v_cvt_pk_bf16_f32 v{q}, v{X}, v{X+1}', f'v_cvt_pk_bf16_f32 v{q+1}, v{X+2}, v{X+3}',
                        f'v_cvt_pk_bf16_f32 v{q+2}, v{Y}, v{Y+1}', f'v_cvt_pk_bf16_f32 v{q+3}, v{Y+2}, v{Y+3}']
        for sw in ('32', '16'):
            for q in range(a, a + 32, 4): ops += [f'v_permlane{sw}_swap_b32 v{q}, v{q+2}', f'v_permlane{sw}_swap_b32 v{q+1}, v{q+3}']
        return ops
    def vst(): e(f'v_mbcnt_lo_u32_b32 v{VST}, -1, 0'); e(f'v_mbcnt_hi_u32_b32 v{VST}, -1, v{VST}'); e(f'v_lshlrev_b32 v{VST}, 4, v{VST}')
    def ostore(D, k): P.vmem(f'buffer_store_dwordx4 {vr(D + 4*k,4)}, v{VST}, s[{SO}:{SO+3}], s{88 if k < 4 else 99} offen offset:{(k % 4)*1024} {OPT["o_st"]}', 'st', optional=True)
    def slots(lo, hi, mode, events=True, zero=False, fin=False):
        STS = {x: i + 1 for i, x in enumerate(OPT['st'].split(','))} if mode == 'fast' else {}
        skip = lambda m: (mode in ('first', 'redo') and prev(m)) or (mode == 'tail' and not prev(m))
        keep = lambda o: mode == 'fast' or (mode == 'first' and o[0] == 0) or (mode == 'tail' and o[0] == 1)
        extra = qfin(ACC[1], False) if mode == 'first' else []
        for m in range(lo, hi):
            ops = [o for o in vpost[m] if keep(o)]
            qb = (lambda r: r - QA + ACC[0]) if mode == 'first' else (lambda r: r)
            if not skip(m):
                w2 = m + 1 if (OPT['w2'] and m % 2 == 0 and (0,) + reads[m + 1][0] in P.lg) else m
                P.wait(lg=(0,) + reads[w2][0])
                mfma(P, mf[m][0][0], FB + 4*(m % NB), qb(mf[m][0][1]), mf[m][0][2] or zero)
            if ops: vop(ops.pop(0), m)
            if not skip(m): mfma(P, mf[m][1][0], FB + 4*(m % NB), qb(mf[m][1][1]), mf[m][1][2] or zero)
            if not skip(m) and order[m // 8][0] == 'P' and m % 8 in (2, 5):
                j = m % 8 // 3
                mfma(P, LA_ + 4*j, ONES, mf[m][j][1], zero)
            if f'{m}' in STS: stamp_it(P, STS[f'{m}'], OPT['sti'])
            if events:
                if m + 2 in CK and not (mode == 'first' and CK[m + 2] == 's90'): F.read(FRL)
                if m in CK and not (mode == 'first' and CK[m] == 's90'): F.check(FRL, CK[m])
                if m == 45 and mode == 'fast': P.ool(['s_cmp_eq_u32 s27, 6'], 's_cbranch_scc1', lambda: e('s_waitcnt vmcnt(0)'), lambda w, it: it == 6)
                if m in POST: F.post(POST[m])
            i = m + LA
            if i >= 64:
                if events: rd(i - 64, 1)
            elif not skip(i) and not (mode in ('redo', 'tail') and i >= CHK): rd(i)
            for o in ops: vop(o, m)
            if fin and m % 2 == 1 and m + 1 < hi: finish_u(QBr, (m + 1 - CHK) // 2)
            if mode == 'first':
                for _ in range(OPT['qx'] if m < 32 else 99):
                    if extra: e(extra.pop(0))
                if m >= 40:
                    for k in range(4): e(f'v_mov_b32 v{QA + 4*(m-40) + k}, v{ACC[0] + 4*(m-40) + k}')
            if events and m % 16 == 6 and mode != 'first':
                P.ool(['s_cmp_eq_u32 s27, 5'], 's_cbranch_scc1', lambda: (vst(), ostore(QBr, m // 16 * 2), ostore(QBr, m // 16 * 2 + 1)), lambda w, it: it == 5)
            if events and 50 <= m < 54: e(f'v_xor_b32 v{AK + m - 50}, 0x10000, v{AK + m - 50}')
            if events and m == 47 - LA and mode != 'first':
                for k in range(8): e(f'v_xor_b32 v{AV + k}, 0x10000, v{AV + k}')
    e('s_mov_b32 s85, s7')
    F.need(FRL, 19)
    for i in range(LA):
        if i == LA - 1: F.post(18)
        rd(i)
    for t_ in qfin(ACC[0], True): e(t_)
    def reset():
        for j in range(2): e(f'v_mov_b32 v{R_[j]}, 0')
        e(f's_mov_b32 s7, {fbits(64.0):#x}')
    def mreset():
        for j in range(2): e(f'v_mov_b32 v{M_+j}, {fbits(-1e30):#x}')
    reset(); mreset()
    e(f's_mov_b32 s89, {fbits(64.0):#x}'); e('s_mov_b32 s90, 19'); e('s_mov_b32 s94, 19'); e('s_mov_b32 s97, 0xee')
    e('s_lshl_b32 s88, s4, 18'); e('s_add_u32 s99, s88, 131072')
    stamp(P, 3, not OPT['ts2'])
    def xlane(R, op):
        for sw in ('32', '16'):
            for j in range(2): e(f'v_mov_b32 v{T1[j]}, v{R+j}')
            for j in range(2): e(f'v_permlane{sw}_swap_b32 v{R+j}, v{T1[j]}')
            for j in range(2): e(f'{op} v{R+j}, v{R+j}, v{T1[j]}')
    LI = PX
    def finish_l():
        for j in range(2): e(f'v_rcp_f32 v{LI+j}, v{LA_ + 4*j}')
    def finish_u(D, u, pk=False):
        for j in range(2):
            a = O + 32*j + 8*u
            if pk:
                for k in range(0, 8, 2): e(f'v_pk_mul_f32 {vr(a+k,2)}, {vr(a+k,2)}, {vr(LI,2)} ' + ('op_sel:[0,1]' if j else 'op_sel_hi:[1,0]'))
            else:
                for k in range(8): e(f'v_mul_f32 v{a+k}, v{a+k}, v{LI+j}')
            for k in range(4): e(f'v_cvt_pk_bf16_f32 v{D + 16*j + 4*u + k}, v{a+2*k}, v{a+2*k+1}')
    def body():
        for k in range(1, 4): e(f's_add_u32 s{90+k}, s90, {k}')
        for k in range(1, 3): e(f's_add_u32 s{94+k}, s94, {k}')
        if OPT['st'] == 'I':
            for k in range(1, 7): stamp_it(P, k, k + OPT['sti'])
        def switch():
            for k in range(32): e(f'v_mov_b32 v{QA+k}, v{QBr+k}')
            mreset()
        P.ool(['s_cmp_eq_u32 s27, 4'], 's_cbranch_scc1', switch, lambda w, it: it == 4)
        P.ool(['s_cmp_eq_u32 s27, 0'], 's_cbranch_scc1', lambda: slots(0, CHK, 'first'), lambda w, it: it == 0, lambda: slots(0, CHK, 'fast'))
        def fin_a():
            finish_l(); reset()
        P.ool(['s_cmp_eq_u32 s27, 4'], 's_cbranch_scc1', fin_a, lambda w, it: it == 4)
        e(f'v_max_f32 v{T1[0]}, abs(v{M_}), abs(v{M_+1})')
        e(f'v_cmp_lt_f32 vcc, s7, v{T1[0]}')
        def pv(mode):
            def start():
                if mode == 'fast':
                    P.variant(None, lambda f: (finish_u(QBr, 0) if f else None, slots(CHK, CHK + 8, mode, zero=True, fin=f)),
                              pred=lambda w, it: it == 4, cmp='s_cmp_eq_u32 s27, 4')
                else: slots(CHK, CHK + 8, mode, zero=True)
            P.ool(['s_bitcmp0_b32 s97, s27'], 's_cbranch_scc1', start, lambda w, it: it % 4 == 0, lambda: slots(CHK, CHK + 8, mode))
            slots(CHK + 8, 64, mode)
        def rest(fast):
            if fast:
                pv('fast'); return
            P.only(None, lambda: [finish_u(QBr, u, True) for u in range(4)], pred=lambda w, it: it == 4, cmp='s_cmp_eq_u32 s27, 4')
            P.wait(lg='all')
            for i in range(LA): rd(i)
            slots(0, CHK, 'redo', events=False)
            xlane(M_, 'v_max_f32')
            for j in range(2):
                e(f'v_sub_f32 v{T1[j]}, v{R_[j]}, v{M_+j}'); e(f'v_min_f32 v{T1[j]}, s89, v{T1[j]}'); e(f'v_exp_f32 v{T1[j]}, v{T1[j]}')
                e(f'v_mov_b32 v{R_[j]}, v{M_+j}')
            e('s_mov_b32 s7, -1.0')
            for j in range(2): e(f'v_mul_f32 v{LA_+4*j}, v{LA_+4*j}, v{T1[j]}')
            for g in groups:
                for k in range(8): e(f'v_sub_f32 v{gb[g]+k}, v{gb[g]+k}, v{M_+g[1]}')
            for k in range(64): e(f'v_mul_f32 v{O+k}, v{O+k}, v{T1[k // 32]}')
            for m in range(64):
                for o in vpost[m]:
                    if o[0] == 0 and o[2] != 'max': vop(o, m, slow=True)
            for i in range(CHK, CHK + LA): rd(i)
            pv('slow')
        P.ool([], 's_cbranch_vccnz', lambda: rest(False), lambda w, it: (w >> 3) % 2 == 1, lambda: rest(True))
        e('s_add_u32 s90, s90, 4'); e('s_add_u32 s94, s94, 3')
    i0 = len(P.cur)
    P.vm = []
    P.loop(8, 's27', body, lambda t: (t[0] - 1,) + tuple(t[1:]) if isinstance(t, tuple) else t)
    P.wait(lg='all')
    slots(0, CHK, 'tail', events=False)
    e('s_add_u32 s88, s88, 4096'); e('s_add_u32 s99, s99, 4096')
    finish_l(); vst()
    for u in range(4):
        finish_u(S, u, True); ostore(S, u); ostore(S, 4 + u)
    if OPT['abl2']: P.cur[i0:] = ablate(P.cur[i0:], OPT['abl2'].split())
    stamp(P, 4, not OPT['ts2'])
    gen_oproj(P)

def gen_helper(P, F):
    e = P.e
    kvp, xp, wp = OPT['kv_pol'], OPT['x_pol'], OPT['w_pol']
    O8, Q8, S8, FB, QA8 = 0, 32, 64, 72, 136
    VKV, VW, VX, AK8, AV8, AW8, AX8, L16, FRH = 152, 156, 158, 161, 165, 173, 175, 176, 177
    R_, L_, T, M_, FA, TK = 178, 179, 180, 156, 157, 132
    if OPT['hprio']: e(f's_setprio {OPT["hprio"]}')
    e(f'v_and_b32 v3, 15, v{LANE}'); e(f'v_lshrrev_b32 v4, 4, v{LANE}'); e('v_lshrrev_b32 v5, 2, v3'); e('v_and_b32 v6, 3, v3')
    e(f'v_lshrrev_b32 v7, 2, v{LANE}'); e('v_lshrrev_b32 v8, 2, v7'); e('v_sub_u32 v8, 4, v8'); e('v_and_b32 v8, 3, v8')
    e('v_xor_b32 v8, v8, v6'); e('v_lshlrev_b32 v8, 4, v8')
    e('v_mul_u32_u24 v9, 1152, v7'); e('v_add_u32 v9, v9, v8'); e(f'v_add_u32 v{VX+2}, {128*1152}, v9')
    e('s_mul_i32 s3, s4, 18432'); e(f'v_add_u32 v{VX}, s3, v9'); e(f'v_add_u32 v{VX+1}, 73728, v{VX}')
    e('s_lshl_b32 s5, s4, 10'); e('s_lshl_b32 s6, s4, 11'); e('s_lshl_b32 s59, s4, 12')
    e('s_waitcnt lgkmcnt(0)')
    e('s_cmp_eq_u32 s50, 0')
    for k in range(4): e(f's_cselect_b64 s[{8+2*k}:{9+2*k}], s[{8+2*k}:{9+2*k}], s[{16+2*k}:{17+2*k}]')
    e('s_mul_i32 s3, s52, 165888'); e('s_add_u32 s8, s8, s3'); e('s_addc_u32 s9, s9, 0')
    srd(P, SX, 8, 9, 165888)
    qrot(P); e('s_lshl_b32 s53, s53, 6')
    def qstage(s):
        st, tag = QB0 + sidx(s)*STG, ('q', s)
        for u in range(2):
            e(f's_add_u32 m0, s5, {st + u*4096}')
            P.vmem(f'buffer_load_dwordx4 v{VX+u}, s[{SX}:{SX+3}], s53 offen {xp} lds', tag)
        def x8():
            e(f's_mov_b32 m0, {st + 8192}')
            P.vmem(f'buffer_load_dwordx4 v{VX+2}, s[{SX}:{SX+3}], s53 offen {xp} lds', tag, optional=True)
        P.only(s % 4, x8)
        e('s_add_u32 s53, s53, 64'); e('s_cmp_eq_u32 s53, 1152'); e('s_cselect_b32 s53, 0, s53')
    qstage(0); qstage(1)
    yield
    i00 = len(P.cur)
    def tag():
        e('s_memrealtime s[84:85]'); e('s_waitcnt lgkmcnt(0)'); e('s_or_b32 s84, s84, 1')
        e('v_mov_b32 v7, 0'); e('v_mov_b32 v8, s84')
        e('s_mov_b64 exec, 1')
        P.vmem('global_store_dword v7, v8, s[82:83] sc1', 'tag', optional=True)
        e('s_mov_b64 exec, -1')
    e('s_lshl_b32 s3, s2, 3'); e('s_add_u32 s3, s3, s87')
    P.ool(['s_cmp_eq_u32 s3, 4'], 's_cbranch_scc1', tag, lambda w, it: w == 4)
    if OPT['krot'] == 1: e('s_lshr_b32 s58, s2, 3')
    elif OPT['krot'] == 2: e('s_mov_b32 s58, s2')
    elif OPT['krot'] == 3:
        e('s_lshr_b32 s58, s2, 3'); e('s_add_u32 s58, s58, s2'); e('s_lshr_b32 s3, s2, 6'); e('s_add_u32 s58, s58, s3')
    else: e('s_mov_b32 s58, 0')
    e('s_and_b32 s58, s58, 7'); e('s_lshl_b32 s58, s58, 14')
    e('s_lshl_b32 s3, s52, 5'); e('s_add_u32 s3, s3, s51'); e('s_lshl_b32 s3, s3, 17')
    e('s_add_u32 s10, s10, s3'); e('s_addc_u32 s11, s11, 0'); srd(P, SK, 10, 11, 262144)
    e('s_add_u32 s12, s12, s3'); e('s_addc_u32 s13, s13, 0'); srd(P, SV, 12, 13, 262144)
    o_srd(P)
    if OPT['tlb']:
        e(f'v_and_b32 v7, 7, v{LANE}'); e('v_lshlrev_b32 v7, 15, v7')
        def tk():
            P.vmem(f'buffer_load_dword v252, v7, s[{SK}:{SK+3}], 0 offen nt', 'tl', optional=True)
            P.vmem(f'buffer_load_dword v253, v7, s[{SV}:{SV+3}], 0 offen nt', 'tl', optional=True)
            e(f'v_min_u32 v8, 8, v{LANE}'); e('v_lshlrev_b32 v8, 17, v8')
            P.vmem(f'buffer_store_dword v8, v8, s[{SO}:{SO+3}], 0 offen sc1', 'tl', optional=True)
        P.only(1, tk)
    for t in range(4):
        e(f'v_add_u32 v7, {4*t}, v4'); femit(P, 8, 7, 9, 10)
        e('v_xor_b32 v8, v8, v3'); e('v_lshlrev_b32 v8, 4, v8'); e('v_lshl_add_u32 v8, v4, 8, v8'); e(f'v_add_u32 v{VKV+t}, s59, v8')
    femit(P, 8, 3, 9, 10)
    e('v_xor_b32 v8, v8, v4'); e('v_lshlrev_b32 v8, 4, v8'); e('v_lshl_add_u32 v8, v3, 8, v8'); e(f'v_add_u32 v{AK8}, s59, v8')
    for u in range(1, 4): e(f'v_xor_b32 v{AK8+u}, {u << 6}, v{AK8}')
    def traddr16(dst, shift, base_s, base):
        e(f'v_lshl_add_u32 v7, v4, {shift}, v5'); e('v_and_b32 v11, 15, v7'); femit(P, 8, 11, 9, 10)
        e('v_lshrrev_b32 v9, 1, v6'); e('v_xor_b32 v8, v8, v9'); e('s_lshl_b32 s3, s4, 2'); e('v_xor_b32 v8, s3, v8')
        e('v_lshlrev_b32 v8, 4, v8'); e('v_and_b32 v9, 1, v6'); e('v_lshl_or_b32 v8, v9, 3, v8'); e('v_lshl_add_u32 v8, v7, 8, v8')
        if base_s: e(f'v_add_u32 v8, {base_s}, v8')
        e(f'v_add_u32 v{dst}, {base}, v8')
    traddr16(AV8, 2, 's59', 32768)
    for d in range(1, 8): e(f'v_xor_b32 v{AV8+d}, {d << 5}, v{AV8}')
    traddr16(AW8, 3, None, QB0 + XB); e(f'v_xor_b32 v{AW8+1}, 32, v{AW8}')
    e('v_sub_u32 v8, 4, v5'); e('v_and_b32 v8, 3, v8'); e('v_xor_b32 v8, v8, v4'); e('v_lshlrev_b32 v8, 4, v8')
    e('v_lshl_add_u32 v8, v3, 6, v8'); e(f'v_add_u32 v{AX8}, {QB0 + 8192}, v8')
    e(f'v_lshlrev_b32 v{L16}, 4, v{LANE}')
    AW8b = 183
    for k in range(3): e(f'v_add_u32 v{AW8b+k}, {2*STG}, v{AW8+k}')
    e(f'v_add_u32 v{FRH}, {FLG + 512 - (FLG + 1536)}, v{FRL}')
    def item(n):
        S = SK if n % 4 < 2 else SV
        e(f's_add_u32 m0, s59, {(n % 8)*16384}')
        e(f's_xor_b32 s26, s58, {(n // 4)*32768 + (n % 2)*16384}')
        for t in range(4):
            if 'kv8' in OPT['abl2'] and n >= 8: continue
            P.vmem(f'buffer_load_dwordx4 v{VKV+t}, s[{S}:{S+3}], s26 offen offset:{t*1024} {kvp} lds', ('kv', n))
    SEQ = [0, 1, 2] + [x for c in range(1, 8) for x in (4*c, 4*c - 1, 4*c + 1, 4*c + 2)] + [31]
    def cneed(n):
        c, k = (n - 8) // 4, n % 4
        return 19 + 3*c + (1, 1, 2, 3)[k]
    PFI = [int(x) for x in OPT['pfi'].split(',')] if OPT['pfi'] else []
    PFS = [int(x) for x in OPT['pfs'].split(',')][:len(PFI)]
    def pf(i):
        e(f's_mov_b32 s26, {(PFI[i] + 2)*32768}')
        for t in range(4):
            P.vmem(f'buffer_load_dwordx4 {vr(192 + 16*i + 4*t, 4)}, v{VKV+t}, s[{SV}:{SV+3}], s26 offen offset:{t*1024} {kvp}', 'pf')
    e(f'v_mov_b32 v135, {BIG}')
    EA = [int(x) for x in OPT['ea'].split(',')]
    P.wait(vm=('q', 0)); e('s_barrier')
    stamp(P, 1, not OPT['ts2'])
    qstage(2)
    for s in range(18):
        a, off = (AW8, sidx(s)*STG) if sidx(s) < 2 else (AW8b, (sidx(s) - 2)*STG)
        P.ds(f'ds_read_b128 {vr(FB,4)}, v{a+2} offset:{off}', 'b')
        for hd in range(2):
            for dd in range(2):
                b = FB + 4 + 8*hd + 4*dd if hd == 0 else S8 + 4*dd
                P.ds(f'ds_read_b64_tr_b16 {vr(b,2)}, v{a+dd} offset:{off + hd*8192}', ('a', hd, dd))
                P.ds(f'ds_read_b64_tr_b16 {vr(b+2,2)}, v{a+(dd^1)} offset:{off + hd*8192 + 1024}', ('a', hd, dd))
        if s + 3 < 18: qstage(s + 3)
        for i, x in enumerate(EA):
            if x == s: item(i)
        for i, x in enumerate(PFS):
            if x == s: pf(i)
        for hd in range(2):
            for dd in range(2):
                P.wait(lg=('a', hd, dd)); mfma(P, QA8 + 8*hd + 4*dd, FB + 4 + 8*hd + 4*dd if hd == 0 else S8 + 4*dd, FB, s == 0)
        if s < 17: P.wait(vm=('q', s + 1))
        e('s_barrier')
    stamp(P, 2, not OPT['ts2'])
    for i, x in enumerate(EA):
        if x == 18: item(i)
    P.wait(vm=('kv', 0)); F.post(19, 1024)
    item(SEQ[3]); P.wait(vm=('kv', 1)); F.post(20, 1024)
    item(SEQ[4]); P.wait(vm=('kv', 2)); F.post(21, 1024)
    item(SEQ[5]); item(SEQ[6])
    for k in range(16): e(f'v_mul_f32 v{QA8+k}, s7, v{QA8+k}')
    e(f's_add_u32 s3, s5, {XCH}'); e(f'v_add_u32 v{T}, s3, v{L16}')
    for hd in range(2):
        d, X, Y = FB + 4*hd, QA8 + 8*hd, QA8 + 8*hd + 4
        e(f'v_cvt_pk_bf16_f32 v{d}, v{X}, v{X+1}'); e(f'v_cvt_pk_bf16_f32 v{d+1}, v{X+2}, v{X+3}')
        e(f'v_cvt_pk_bf16_f32 v{d+2}, v{Y}, v{Y+1}'); e(f'v_cvt_pk_bf16_f32 v{d+3}, v{Y+2}, v{Y+3}')
        for sw in ('32', '16'):
            e(f'v_permlane{sw}_swap_b32 v{d}, v{d+2}'); e(f'v_permlane{sw}_swap_b32 v{d+1}, v{d+3}')
        P.ds(f'ds_write_b128 v{T}, {vr(d,4)} offset:{hd*4096}', 'xw')
    e(f's_mov_b32 s89, {fbits(64.0):#x}')
    hep = [1000]
    def hsync():
        P.wait(lg='all'); hep[0] += 1
        F.post(hep[0]); F.need(FRH, hep[0])
    hsync()
    e(f'v_add_u32 v{T}, {XCH}, v{L16}')
    for k in range(8): P.ds(f'ds_read_b128 {vr(Q8+4*k,4)}, v{T} offset:{k*1024}', 'q8')
    P.wait(lg='all')
    stamp(P, 3, not OPT['ts2'])
    e('s_mov_b32 s98, 21')
    def postL(v):
        e(f's_max_u32 s98, s98, {v}'); F.post('s98', 1024)
    def touch():
        e('s_getpc_b64 s[56:57]'); lb = P.newlab('pc'); P.lab(lb)
        e(f's_sub_u32 s56, s56, {lb}-{KNAME}'); e('s_subb_u32 s57, s57, 0')
        e(f'v_lshlrev_b32 v242, 7, v{LANE}'); e('s_lshl_b32 s3, s4, 14'); e('v_add_u32 v242, s3, v242')
        e(f's_mov_b32 s3, .Lcode_end-{KNAME}-4')
        for k in range(2):
            e(f'v_min_u32 v243, s3, v242'); P.vmem(f'global_load_dword v{244+k}, v243, s[56:57]', 'ct', optional=True)
            e('v_add_u32 v242, 8192, v242')
    def need_free(val, lv, nxt):
        P.wait(lg='fr')
        def slow():
            done = P.newlab('nf')
            vm0 = list(P.vm)
            e(f'ds_read_b32 v{FT}, v{FRC}'); e('s_waitcnt lgkmcnt(0)'); P.lg = []
            e(f'v_cmp_gt_u32 vcc, {val}, v{FT}'); e(f's_cbranch_vccz {done}')
            for i, tg in enumerate(nxt):
                if not any(t[0] == tg for t in P.vm): break
                P.wait(vm=tg); e(f's_add_u32 s3, {lv}, {i + 1}'); postL('s3')
                e(f'ds_read_b32 v{FT}, v{FRC}'); e('s_waitcnt lgkmcnt(0)'); P.lg = []
                e(f'v_cmp_gt_u32 vcc, {val}, v{FT}'); e(f's_cbranch_vccz {done}')
            sp = P.newlab('sp'); P.lab(sp)
            e(f's_sleep {OPT["slp"]}'); e(f'ds_read_b32 v{FT}, v{FRC}'); e('s_waitcnt lgkmcnt(0)')
            e(f'v_cmp_gt_u32 vcc, {val}, v{FT}'); e(f's_cbranch_vccnz {sp}')
            P.lab(done)
            P.vm = vm0
        P.ool([f'v_cmp_gt_u32 vcc, {val}, v{FT}'], 's_cbranch_vccnz', slow, lambda w, it: False)
    def scores_rd():
        for tt in range(2):
            for u in range(4): P.ds(f'ds_read_b128 {vr(FB + 16*tt + 4*u, 4)}, v{AK8+u} offset:{tt*16384}', ('k', tt, u))
    def scores(rd=True):
        if rd: scores_rd()
        for u in range(4):
            for tt in range(2):
                P.wait(lg=('k', tt, u)); mfma(P, S8 + 4*tt, FB + 16*tt + 4*u, Q8 + 4*u, u == 0)
        for u in range(4): e(f'v_xor_b32 v{AK8+u}, 0x10000, v{AK8+u}')
        for k in range(4): e(f'v_max3_f32 v{M_}, v{M_}, v{S8+2*k}, v{S8+2*k+1}')
        e(f'v_cmp_lt_f32 vcc, s7, abs(v{M_})')
        def shift():
            for sw in ('32', '16'):
                e(f'v_mov_b32 v{T}, v{M_}'); e(f'v_permlane{sw}_swap_b32 v{M_}, v{T}'); e(f'v_max_f32 v{M_}, v{M_}, v{T}')
            e(f'v_sub_f32 v{T}, v{R_}, v{M_}'); e(f'v_min_f32 v{T}, s89, v{T}'); e(f'v_exp_f32 v{T}, v{T}')
            e(f'v_mov_b32 v{R_}, v{M_}'); e('s_mov_b32 s7, -1.0')
            for k in range(8): e(f'v_sub_f32 v{S8+k}, v{S8+k}, v{M_}')
            e(f'v_mul_f32 v{L_}, v{L_}, v{T}')
            for k in range(32): e(f'v_mul_f32 v{O8+k}, v{O8+k}, v{T}')
        P.ool([], 's_cbranch_vccnz', shift, lambda w, it: (w >> 3) % 2 == 1)
        for k in range(8): e(f'v_exp_f32 v{S8+k}, v{S8+k}')
        for k in range(8): e(f'v_add_f32 v{L_}, v{L_}, v{S8+k}')
        for k in range(4): e(f'v_cvt_pk_bf16_f32 v{S8+k}, v{S8+2*k}, v{S8+2*k+1}')
    def rv(d):
        P.ds(f'ds_read_b64_tr_b16 {vr(FB + 4*d, 2)}, v{AV8+d}', ('v', d))
        P.ds(f'ds_read_b64_tr_b16 {vr(FB + 4*d + 2, 2)}, v{AV8+d} offset:16384', ('v', d))
    def pv8_rd():
        for d in range(6): rv(d)
    def pv8(rd=True):
        if rd: pv8_rd()
        for d in range(8):
            P.wait(lg=('v', d)); mfma(P, O8 + 4*d, FB + 4*d, S8)
            if d < 2: rv(6 + d)
        for d in range(8): e(f'v_xor_b32 v{AV8+d}, 0x10000, v{AV8+d}')
    def hreset():
        for k in range(32): e(f'v_mov_b32 v{O8+k}, 0')
        e(f'v_mov_b32 v{M_}, {fbits(-1e30):#x}'); e(f'v_mov_b32 v{L_}, 0'); e(f'v_mov_b32 v{R_}, 0'); e(f's_mov_b32 s7, {fbits(64.0):#x}')
    OS, SS, W = 112, 120, 124
    def combine1():
        for sw in ('32', '16'):
            e(f'v_mov_b32 v{T}, v{L_}'); e(f'v_permlane{sw}_swap_b32 v{L_}, v{T}'); e(f'v_add_f32 v{L_}, v{L_}, v{T}')
        for q in range(1, 4):
            e(f's_xor_b32 s3, s4, {q}'); e('s_mul_i32 s3, s3, 6144'); e(f's_add_u32 s3, s3, {XCH + (q-1)*2048}')
            e(f'v_add_u32 v{T}, s3, v{L16}')
            for k in range(2): P.ds(f'ds_write_b128 v{T}, {vr(O8 + 8*q + 4*k, 4)} offset:{k*1024}', 'cw')
        e(f'v_lshrrev_b32 v{SS+2}, 1, v{L16}'); e('s_lshl_b32 s3, s4, 9'); e(f's_add_u32 s3, s3, {XCH + 24576}')
        e(f'v_add_u32 v{SS+2}, s3, v{SS+2}')
        P.ds(f'ds_write_b64 v{SS+2}, {vr(R_,2)}', 'cw')
        for k in range(8): e(f'v_mov_b32 v{OS+k}, v{O8+k}')
        e(f'v_mov_b32 v{SS}, v{R_}'); e(f'v_mov_b32 v{SS+1}, v{L_}')
        P.wait(lg='all'); hep[0] += 1; F.post(hep[0]); P.wait(lg='all')
    def combine2(head):
        F.need(FRH, hep[0])
        e('s_mul_i32 s3, s4, 6144'); e(f's_add_u32 s3, s3, {XCH}'); e(f'v_add_u32 v{T}, s3, v{L16}')
        ST, CB = FB, FB + 8
        for q in range(1, 4):
            e(f'v_xor_b32 v{FT}, {q << 9}, v{SS+2}')
            P.ds(f'ds_read_b64 {vr(ST + 2*q, 2)}, v{FT}', 'cs')
        for q in range(1, 4):
            for k in range(2): P.ds(f'ds_read_b128 {vr(CB + 8*q + 4*k, 4)}, v{T} offset:{(q-1)*2048 + k*1024}', ('co', q))
        e(f'v_mov_b32 v{ST}, v{SS}'); e(f'v_mov_b32 v{ST+1}, v{SS+1}')
        P.wait(lg='cs')
        e(f'v_max3_f32 v{W}, v{ST}, v{ST+2}, v{ST+4}'); e(f'v_max_f32 v{W}, v{W}, v{ST+6}')
        for q in range(4): e(f'v_sub_f32 v{W+4+q}, v{ST+2*q}, v{W}')
        for q in range(4): e(f'v_exp_f32 v{W+4+q}, v{W+4+q}')
        e(f'v_mul_f32 v{W+1}, v{W+4}, v{ST+1}')
        for q in range(1, 4): e(f'v_fma_f32 v{W+1}, v{W+4+q}, v{ST+2*q+1}, v{W+1}')
        e(f'v_rcp_f32 v{W+1}, v{W+1}')
        for q in range(4): e(f'v_mul_f32 v{W+4+q}, v{W+4+q}, v{W+1}')
        for k in range(8): e(f'v_mul_f32 v{OS+k}, v{OS+k}, v{W+4}')
        for q in range(1, 4):
            P.wait(lg=('co', q))
            for k in range(8): e(f'v_fma_f32 v{OS+k}, v{CB+8*q+k}, v{W+4+q}, v{OS+k}')
        for k in range(4): e(f'v_cvt_pk_bf16_f32 v{W+k}, v{OS+2*k}, v{OS+2*k+1}')
        e(f's_add_u32 s26, s5, {1048576 + head*4096}')
        P.vmem(f'buffer_store_dwordx4 {vr(W,4)}, v{L16}, s[{SO}:{SO+3}], s26 offen {OPT["o_st"]}', 'st', optional=True)
    hreset(); scores()
    e('s_load_dwordx2 s[8:9], s[0:1], 32'); e('s_load_dwordx2 s[10:11], s[0:1], 72'); e('s_load_dwordx2 s[12:13], s[0:1], 96')
    e(f'v_mov_b32 v{VX}, 0')
    P.vmem(f'global_load_dword v{VX+1}, v{VX}, s[82:83] sc1', 'tagld', optional=True)
    e('s_lshl_b32 s3, s50, 3'); e('s_add_u32 s3, s3, s52'); e('s_lshl_b32 s3, s3, 4'); e('s_lshr_b32 s26, s51, 1'); e('s_add_u32 s3, s3, s26')
    e('s_lshl_b32 s3, s3, 7'); e(f's_add_u32 s3, s3, {FLAGOFF}'); e(f'v_mov_b32 v{FA}, s3')
    e('s_mov_b32 s20, 22'); e('s_mov_b32 s21, 19'); e('s_mov_b32 s22, 65536'); e('s_mov_b32 s23, s59')
    e('s_mov_b32 s18, 32768'); e('s_add_u32 s19, s59, 65536')
    e('s_waitcnt lgkmcnt(0)'); P.lg = []
    P.vm = [(('kv', -1), False)] * 4 + [(('kv', k), False) for k in range(3) for _ in range(4)] + [('tagld', True)]
    def tr(v):
        if OPT['trace']:
            e('s_memrealtime s[76:77]'); e('s_sub_u32 m0, s24, 19'); e('s_waitcnt lgkmcnt(0)'); e('s_sub_u32 s76, s76, s60'); e(f'v_writelane_b32 v{v}, s76, m0')
    KIND = [(0, 1, 1), (3, 0, 0), (1, 1, 1), (2, 1, 2)]
    def step(k, issue=True, rd=None):
        if issue: F.read(FRC)
        P.wait(vm=('kv', k - 1)); e(f's_add_u32 s24, s20, {k}'); postL('s24')
        if rd: rd()
        tr(246)
        if not issue: return
        kind, nx, co = KIND[k]
        e(f's_add_u32 s25, s21, {co}')
        need_free('s25', 's24', [('kv', k + i) for i in range(3)])
        tr(247)
        S = SK if kind < 2 else SV
        def dma():
            e(f's_add_u32 m0, {"s23" if nx else "s19"}, {kind*16384}')
            e(f's_add_u32 s26, {"s22" if nx else "s18"}, {(kind % 2)*16384}')
            for t in range(4):
                P.vmem(f'buffer_load_dwordx4 v{VKV+t}, s[{S}:{S+3}], s26 offen offset:{t*1024} {kvp} lds', ('kv', k + 3))
        def regs():
            e('s_add_u32 s3, s23, 32768'); e(f'v_add_u32 v{T}, s3, v{L16}')
            for i, it_ in enumerate(PFI):
                def wr():
                    for t in range(4): e(f'ds_write_b128 v{T}, {vr(192 + 16*i + 4*t, 4)} offset:{t*1024}')
                P.only(None, wr, pred=lambda w, it, it_=it_: it == it_, cmp=f's_cmp_eq_u32 s27, {it_}')
            for t in range(4):
                P.vmem(f'buffer_load_dword v134, v135, s[{S}:{S+3}], 0 offen', ('kv', k + 3))
            e('s_waitcnt lgkmcnt(0)')
        if k == 3 and PFI:
            e(f's_mov_b32 s3, {sum(1 << x for x in PFI)}')
            P.ool(['s_bitcmp1_b32 s3, s27'], 's_cbranch_scc1', regs, lambda w, it: it in PFI, dma)
        else: dma()
        tr(248)
    def wtouch():
        e(f'v_lshlrev_b32 v{VX+2}, 7, v{LANE}'); e('s_lshl_b32 s3, s4, 13'); e(f'v_add_u32 v{VX+2}, s3, v{VX+2}')
        e('s_and_b32 s3, s2, 127'); e('s_mul_i32 s3, s3, 36864')
        e('s_cmp_lt_u32 s2, 128'); e('s_cselect_b64 s[8:9], s[8:9], s[10:11]')
        e('s_add_u32 s8, s8, s3'); e('s_addc_u32 s9, s9, 0'); srd(P, SX, 8, 9, 36864)
        if OPT['wpf']:
            e('s_mov_b32 s26, 32768')
            P.vmem(f'buffer_load_dword v250, v{VX+2}, s[{SX}:{SX+3}], 0 offen', 'wt', optional=True)
            P.vmem(f'buffer_load_dword v251, v{VX+2}, s[{SX}:{SX+3}], s26 offen', 'wt', optional=True)
    H = OprojHelper(P, VX + 1)
    def hbody():
        step(0)
        step(1, rd=pv8_rd); pv8(False)
        def mid():
            combine1(); hreset()
            for k in range(16): e(f'v_mov_b32 v{Q8+k}, v{Q8+16+k}')
            if OPT['rtc']: touch()
        P.ool(['s_cmp_eq_u32 s27, 3'], 's_cbranch_scc1', mid, lambda w, it: it == 3)
        step(2, rd=scores_rd); scores(False)
        step(3)
        P.ool(['s_cmp_eq_u32 s27, 3'], 's_cbranch_scc1', lambda: combine2(0), lambda w, it: it == 3)
        e('s_add_u32 s20, s20, 4'); e('s_add_u32 s21, s21, 3'); e('s_mov_b32 s18, s22'); e('s_add_u32 s22, s22, 32768')
        e('s_xor_b32 s23, s23, 65536'); e('s_xor_b32 s19, s19, 65536')
    P.lg = ['fw']
    P.loop(6, 's27', hbody, lambda t: ('kv', t[1] - 4) if t[0] == 'kv' else t)
    P.vm = [(('kv', t[0][1] - 4), t[1]) if t[0][0] == 'kv' else t for t in P.vm]
    step(0, False)
    if OPT['wpos'] == 27: wtouch()
    if OPT['rtc']: touch()
    def respin():
        sp = P.newlab('tg'); P.lab(sp)
        e('s_sleep 8'); e(f'global_load_dword v{VX+1}, v{VX}, s[82:83] sc1'); e('s_waitcnt vmcnt(0)')
        e(f'v_cmp_eq_u32 vcc, 0, v{VX+1}'); e(f's_cbranch_vccnz {sp}')
    P.ool([f'v_cmp_eq_u32 vcc, 0, v{VX+1}'], 's_cbranch_vccnz', respin, lambda w, it: False)
    def ticket():
        if OPT['dyn']:
            e('s_and_b32 s3, s2, 7'); e('s_lshl_b32 s3, s3, 4'); e('s_add_u32 s3, s3, 64')
            e(f'v_mov_b32 v{TK+1}, s3'); e(f'v_mov_b32 v{TK}, 1')
            e('s_mov_b64 exec, 1')
            P.vmem(f'global_atomic_add v{TK}, v{TK+1}, v{TK}, s[82:83] sc0 sc1', 'tk', optional=True)
            e('s_mov_b64 exec, -1')
        else:
            e('s_lshr_b32 s3, s2, 3'); e(f'v_mov_b32 v{TK}, s3')
    P.only(0, ticket)
    step(1)
    hsync()
    def sig_a():
        e('s_mov_b64 exec, 1')
        P.vmem(f'global_store_dword v{FA}, v{VX+1}, s[12:13] offset:64 sc1', 'fa', optional=True)
        e('s_mov_b64 exec, -1')
    P.only(0, sig_a)
    pv8()
    step(2, False)
    def give():
        e('s_waitcnt vmcnt(5)')
        e(f'v_mov_b32 v{TK+1}, v{VX+1}'); e(f'v_mov_b32 v{T}, {NONCE}')
        e('s_mov_b64 exec, 1'); e(f'ds_write_b64 v{T}, {vr(TK,2)}'); e('s_mov_b64 exec, -1')
    P.only(0, give)
    scores()
    hsync()
    e(f'v_mov_b32 v{T}, {NONCE}'); e(f'ds_read_b32 v{T}, v{T}'); e('s_waitcnt lgkmcnt(0)'); e(f'v_readfirstlane_b32 s79, v{T}')
    H.setup()
    step(3, False)
    P.wait(vm='f'); postL(50)
    wtouch()
    pv8(); combine1()
    def pre():
        F.need(FRC, 41); H.first()
    P.only(None, pre, pred=lambda w, it: True, cmp='s_cmp_lt_u32 s79, 27')
    combine2(1)
    ab = (OPT['abl'] + ' ' + OPT['abl2']).split()
    if ab: P.cur[i00:] = ablate(P.cur[i00:], [x for x in ab if x in ('dma', 'qdma', 'st')] + (['mfma', 'ds', 'valu'] if 'hc' in ab else []))
    stamp(P, 4, not OPT['ts2'])
    def signal():
        e('s_mov_b64 exec, 1')
        e(f'global_store_dword v{FA}, v{VX+1}, s[12:13] sc1')
        e('s_mov_b64 exec, -1')
    def idle():
        e('s_waitcnt vmcnt(0)'); e('s_barrier')
        P.only(0, signal)
        e('s_branch .Lk1_fin')
    P.ool(['s_cmp_ge_u32 s79, 27'], 's_cbranch_scc1', idle, lambda w, it: False)
    H.run(signal)

WST, OST, OR0, NS = 12288, 8192, 49152, 4
PBUF, FLAG2 = 0x2800000, 0x2100000

def op_ids(P):
    e = P.e
    e('s_and_b32 s48, s2, 3'); e('s_bfe_u32 s50, s2, 0x10002'); e('s_min_u32 s49, s79, 27')
    e('s_mul_i32 s51, s49, 43'); e('s_lshr_b32 s51, s51, 7'); e('s_mul_i32 s3, s51, 3'); e('s_sub_u32 s52, s49, s3')
    e('s_mul_i32 s53, s50, 27'); e('s_add_u32 s53, s53, s49')

def kstep(P, cnt, dst):
    e = P.e
    e(f's_and_b32 {dst}, {cnt}, 31'); e(f's_add_u32 {cnt}, {cnt}, 1'); e(f's_and_b32 s3, {cnt}, 4'); e(f's_bitcmp1_b32 {cnt}, 6')
    e(f's_cselect_b32 s57, 4, 0'); e('s_xor_b32 s3, s3, s57'); e(f's_add_u32 {cnt}, {cnt}, s3')
    e(f's_cmp_eq_u32 {cnt}, 32'); e(f's_cselect_b32 {cnt}, 68, {cnt}')

def poll_fn(P, val, ad, base, tag):
    def poll():
        sp = P.newlab('fl'); P.lab(sp)
        P.e('s_sleep 2'); P.e(f'global_load_dword v{val}, v{ad}, {base} sc1'); P.e('s_waitcnt vmcnt(0)')
        P.e(f'v_cmp_ne_u32 vcc, v{tag}, v{val}'); P.e(f's_cbranch_vccnz {sp}')
    return poll

class OprojHelper:
    SWO, SO2 = 36, 40
    VW3, VO, FLA, FLV, t = 200, 203, 205, 206, 208
    def __init__(s, P, tag): s.P, s.TAG = P, tag
    def setup(s):
        P = s.P; e = P.e; t = s.t
        op_ids(P)
        for b3 in range(3):
            e(f'v_add_u32 v{t}, {64*b3}, v{LANE}'); e(f'v_mul_u32_u24 v{t+1}, 2731, v{t}'); e(f'v_lshrrev_b32 v{t+1}, 16, v{t+1}')
            e(f'v_mul_u32_u24 v{t+2}, 24, v{t+1}'); e(f'v_sub_u32 v{t+2}, v{t}, v{t+2}')
            e(f'v_bfe_u32 v{t+3}, v{t+1}, 1, 2'); e(f'v_lshlrev_b32 v{t+3}, 1, v{t+3}'); e(f'v_xor_b32 v{t+2}, v{t+2}, v{t+3}'); e(f'v_lshlrev_b32 v{t+2}, 4, v{t+2}')
            e('s_lshl_b32 s3, s4, 3'); e(f'v_add_u32 v{t+1}, s3, v{t+1}'); e(f'v_mul_u32_u24 v{t+1}, 1152, v{t+1}'); e(f'v_add_u32 v{s.VW3+b3}, v{t+1}, v{t+2}')
        e('s_xor_b32 s3, s4, s48'); e('s_lshl_b32 s3, s3, 18'); e(f'v_lshlrev_b32 v{t}, 4, v{LANE}'); e(f'v_add_u32 v{s.VO}, s3, v{t}')
        e(f'v_add_u32 v{s.VO+1}, 131072, v{s.VO}')
        e('s_mul_i32 s14, s4, 3072'); e('s_lshl_b32 s15, s4, 11'); e(f's_add_u32 s15, s15, {OR0}')
        e('s_cmp_eq_u32 s50, 0'); e('s_cselect_b64 s[16:17], s[8:9], s[10:11]')
        e(f's_mul_i32 s3, s48, {1024*1152}'); e('s_mul_i32 s26, s52, 384'); e('s_add_u32 s3, s3, s26')
        e('s_add_u32 s16, s16, s3'); e('s_addc_u32 s17, s17, 0'); srd(P, s.SWO, 16, 17, 1023*1152 + 384)
        e('s_mul_i32 s3, s50, 72'); e('s_lshl_b32 s26, s51, 3'); e('s_add_u32 s3, s3, s26'); e('s_lshl_b32 s3, s3, 2'); e('s_add_u32 s3, s3, s48')
        e('s_lshl_b32 s3, s3, 15'); e('s_add_u32 s16, s12, s3'); e('s_addc_u32 s17, s13, 0'); srd(P, s.SO2, 16, 17, 7*131072 + 32768)
        e('s_lshl_b32 s3, s51, 3'); e('s_add_u32 s26, s3, 7'); e('s_mul_i32 s3, s3, 57'); e('s_lshr_b32 s3, s3, 9'); e('s_mul_i32 s26, s26, 57'); e('s_lshr_b32 s26, s26, 9')
        e('s_min_u32 s3, s3, 7'); e('s_min_u32 s26, s26, 7')
        e(f'v_mov_b32 v{t}, s3'); e(f'v_mov_b32 v{t+1}, s26'); e(f'v_and_b32 v{t+2}, 4, v{LANE}'); e(f'v_cmp_eq_u32 vcc, 0, v{t+2}'); e('s_nop 1')
        e(f'v_cndmask_b32 v{t}, v{t+1}, v{t}, vcc')
        e('s_lshl_b32 s3, s50, 5'); e('s_add_u32 s3, s3, s48'); e('s_lshl_b32 s3, s3, 2')
        e(f'v_lshlrev_b32 v{t}, 4, v{t}'); e(f'v_and_b32 v{t+1}, 3, v{LANE}'); e(f'v_add3_u32 v{t}, v{t}, v{t+1}, s3')
        e(f'v_lshlrev_b32 v{t}, 7, v{t}'); e(f'v_add_u32 v{s.FLA}, {FLAGOFF + 64}, v{t}')
        e('s_mov_b32 s54, 0'); e('s_mov_b32 s55, 0')
        P.vmem(f'global_load_dword v{s.FLV}, v{s.FLA}, s[12:13] sc1', 'f')
    def pages(s):
        P = s.P; e = P.e; t = s.t
        e('s_load_dwordx2 s[16:17], s[0:1], 80')
        e(f'v_lshlrev_b32 v{t}, 16, v{LANE}'); e(f'v_min_u32 v{t+1}, 40, v{LANE}'); e(f'v_lshlrev_b32 v{t+1}, 16, v{t+1}')
        e('s_waitcnt lgkmcnt(0)')
        def f():
            P.vmem(f'global_load_dword v252, v{t}, s[8:9]', 'tl', optional=True)
            P.vmem(f'global_load_dword v253, v{t}, s[10:11]', 'tl', optional=True)
            P.vmem(f'global_load_dword v254, v{t+1}, s[16:17]', 'tl', optional=True)
        P.only(2, f)
    def wo(s, k, opt=False):
        P = s.P; kstep(P, 's54', 's56'); P.e('s_mul_i32 s56, s56, 36864')
        for b3 in range(3):
            P.e(f's_add_u32 m0, s14, {(k % NS)*WST + b3*1024}')
            P.vmem(f'buffer_load_dwordx4 v{s.VW3+b3}, s[{s.SWO}:{s.SWO+3}], s56 offen lds', ('L', k), optional=opt)
    def oo(s, k, opt=False):
        P = s.P; kstep(P, 's55', 's56'); P.e('s_lshl_b32 s56, s56, 10')
        for x in range(2):
            P.e(f's_add_u32 m0, s15, {(k % NS)*OST + x*1024}')
            P.vmem(f'buffer_load_dwordx4 v{s.VO+x}, s[{s.SO2}:{s.SO2+3}], s56 offen sc1 lds', ('L', k), optional=opt)
    def check(s):
        s.P.ool([f'v_cmp_ne_u32 vcc, v{s.TAG}, v{s.FLV}'], 's_cbranch_vccnz', poll_fn(s.P, s.FLV, s.FLA, 's[12:13]', s.TAG), lambda w, it: False)
    def first(s):
        s.check()
        for k in range(NS): s.wo(k, True); s.oo(k, True)
    def run(s, signal):
        P = s.P; e = P.e
        e('s_waitcnt vmcnt(16)'); e('s_barrier')
        stamp(P, 5, not OPT['ts2'])
        P.vm = [(('F', -3), False)] + [(('L', k), False) for k in (1, 2, 3) for _ in range(5)]
        def body():
            for k in range(NS):
                P.wait(vm=('L', k + 1)); e('s_barrier')
                if k == 0:
                    e('s_cmp_eq_u32 s27, 7'); e(f's_cselect_b32 s59, {BIG}, 0')
                    for r in range(5): e(f'v_add_u32 v{s.VW3+r}, s59, v{s.VW3+r}')
                if k == 1:
                    e('s_cmp_eq_u32 s27, 2'); e('s_cselect_b32 s57, 64, 0'); e(f'v_subrev_u32 v{s.FLA}, s57, v{s.FLA}')
                    P.vmem(f'global_load_dword v{s.FLV}, v{s.FLA}, s[12:13] sc1', ('F', 1))
                if k == 3:
                    e('s_lshl_b32 s3, s27, 2'); e('s_add_u32 s3, s3, s4')
                    P.ool(['s_cmp_eq_u32 s3, 0'], 's_cbranch_scc1', signal, lambda w, it: False)
                s.wo(k + NS)
                if k == 0: s.check()
                s.oo(k + NS)
        P.loop(8, 's27', body, lambda t: (t[0], t[1] - NS) if isinstance(t, tuple) else t)
        stamp(P, 6, not OPT['ts2'])
        e('s_barrier')
        def sig2():
            e('s_lshl_b32 s3, s53, 2'); e('s_add_u32 s3, s3, s48'); e('s_lshl_b32 s3, s3, 7'); e(f's_add_u32 s3, s3, {FLAG2}'); e('v_mov_b32 v2, s3')
            e('s_mov_b64 exec, 1'); e(f'global_store_dword v2, v{s.TAG}, s[12:13] sc1'); e('s_mov_b64 exec, -1')
        P.only(0, sig2)

def gen_oproj(P):
    e = P.e
    SP, SOUT = 28, 32
    ACC, AF, BF, AA, AB, L16, VOUT, FLA, FLV, TAG = 0, 96, 144, 176, 182, 183, 184, 185, 186, 235
    def idle():
        e('s_waitcnt vmcnt(0)'); e('s_barrier'); e('s_branch .Lk1_fin')
    e(f'v_mov_b32 v{TAG-1}, {NONCE}'); e(f'ds_read_b64 {vr(TAG-1,2)}, v{TAG-1}'); e('s_waitcnt lgkmcnt(0)'); e(f'v_readfirstlane_b32 s79, v{TAG-1}')
    P.ool(['s_cmp_ge_u32 s79, 27'], 's_cbranch_scc1', idle, lambda w, it: False)
    e('s_load_dwordx2 s[12:13], s[0:1], 80'); e('s_load_dwordx2 s[14:15], s[0:1], 96')
    e('v_mbcnt_lo_u32_b32 v0, -1, 0'); e('v_mbcnt_hi_u32_b32 v0, -1, v0')
    e('v_and_b32 v3, 15, v0'); e('v_lshrrev_b32 v4, 4, v0'); e('v_lshrrev_b32 v5, 2, v3'); e('v_and_b32 v6, 3, v3')
    e(f'v_lshlrev_b32 v{L16}, 4, v0')
    e('s_and_b32 s5, s4, 1'); e('s_lshr_b32 s6, s4, 1')
    e('v_lshl_add_u32 v7, v4, 2, v5'); e('v_bfe_u32 v8, v7, 1, 2'); e('v_mul_u32_u24 v7, 384, v7'); e('v_lshl_add_u32 v7, v6, 3, v7')
    e('s_mul_i32 s3, s5, 6')
    for k in range(6):
        e(f's_add_u32 s26, s3, {k}'); e('v_xor_b32 v9, s26, v8'); e(f'v_lshl_add_u32 v{AA+k}, v9, 5, v7')
    e('s_lshl_b32 s3, s6, 10'); e(f's_add_u32 s3, s3, {OR0}'); e(f'v_add_u32 v{AB}, s3, v{L16}')
    e('v_mul_u32_u24 v7, 2304, v3'); e('v_lshl_add_u32 v7, v4, 4, v7'); e('s_mul_i32 s3, s5, 192'); e(f's_mul_i32 s26, s6, {16*2304}'); e('s_add_u32 s3, s3, s26'); e(f'v_add_u32 v{VOUT}, s3, v7')
    e('v_and_b32 v7, 3, v0'); e('v_max_u32 v7, 1, v7'); e(f'v_mov_b32 v{FLA}, v7')
    for i in range(96): e(f'v_mov_b32 v{i}, 0')
    e('s_waitcnt lgkmcnt(0)'); P.vm = []; P.lg = []
    e('s_barrier')
    stamp(P, 5, not OPT['ts2'])
    def ids():
        op_ids(P)
        e('s_mul_i32 s3, s53, 147456'); e(f's_add_u32 s3, s3, {PBUF}'); e('s_add_u32 s8, s14, s3'); e('s_addc_u32 s9, s15, 0'); srd(P, SP, 8, 9, 147456)
        e('s_lshl_b32 s3, s51, 2'); e('s_add_u32 s3, s3, s48'); e(f's_mul_i32 s3, s3, {32*2304}'); e('s_mul_i32 s26, s50, 1152'); e('s_add_u32 s3, s3, s26')
        e('s_mul_i32 s26, s52, 384'); e('s_add_u32 s3, s3, s26'); e('s_add_u32 s12, s12, s3'); e('s_addc_u32 s13, s13, 0'); srd(P, SOUT, 12, 13, 31*2304 + 384)
        e(f'v_xor_b32 v{FLA}, s48, v{FLA}'); e('s_lshl_b32 s3, s53, 2'); e(f'v_add_u32 v{FLA}, s3, v{FLA}'); e(f'v_lshlrev_b32 v{FLA}, 7, v{FLA}')
        e(f'v_add_u32 v{FLA}, {FLAG2}, v{FLA}')
    def reads(s):
        a, b = AF + 24*(s % 2), BF + 16*(s % 2)
        rb = [(lambda l=l: P.ds(f'ds_read_b128 {vr(b + 4*l, 4)}, v{AB} offset:{(s % NS)*OST + l*2048}', ('R', s))) for l in range(4)]
        ra = [(lambda k=k, hf=hf: P.ds(f'ds_read_b64_tr_b16 {vr(a + 4*k + 2*hf, 2)}, v{AA+k} offset:{(s % NS)*WST + hf*6144}', ('R', s)))
              for k in range(6) for hf in range(2)]
        return rb[:1] + ra[:6] + rb[1:2] + ra[6:] + rb[2:]
    for i, f in enumerate(reads(0)):
        if i == 12: e('s_waitcnt lgkmcnt(8)'); P.lg = P.lg[-8:]
        f()
    ids()
    def body():
        for s in range(NS):
            P.wait(lg='all')
            if s == 3: e('s_waitcnt vmcnt(0)')
            e('s_barrier')
            rs = reads(s + 1)
            for n in range(24):
                l, k = n // 6, n % 6
                mfma(P, ACC + (l*6 + k)*4, AF + 24*(s % 2) + 4*k, BF + 16*(s % 2) + 4*l)
                if n == 13: e('s_waitcnt lgkmcnt(8)'); P.lg = P.lg[-8:]
                if n < 16: rs[n]()
    P.lg = [('R', 0)] * 11
    P.loop(8, 's27', body, lambda t: (t[0], t[1] - NS))
    stamp(P, 6, not OPT['ts2'])
    P.wait(lg='all')
    stamp(P, 1, OPT['st'] == 'X')
    e('s_mul_i32 s49, s4, 3072')
    for r in range(1, 4):
        e(f's_xor_b32 s3, s48, {r}'); e('s_mul_i32 s3, s3, 36864'); e('s_add_u32 s3, s3, s49'); e(f's_add_u32 s26, s3, {(r - 1)*12288}')
        for tp in range(3):
            a, D = ACC + (r*6 + 2*tp)*4, 96 + ((r - 1)*3 + tp)*4
            for i in range(4): e(f'v_cvt_pk_bf16_f32 v{D+i}, v{a+2*i}, v{a+2*i+1}')
            P.vmem(f'buffer_store_dwordx4 {vr(D, 4)}, v{L16}, s[{SP}:{SP+3}], s26 offen offset:{tp*1024} sc1', 'st')
    stamp(P, 2, OPT['st'] == 'X')
    e('s_waitcnt vmcnt(0)'); P.vm = []
    stamp(P, 3, OPT['st'] == 'X')
    e('s_barrier')
    e(f'global_load_dword v{FLV}, v{FLA}, s[14:15] sc1'); e('s_waitcnt vmcnt(0)')
    stamp(P, 4, OPT['st'] == 'X')
    P.ool([f'v_cmp_ne_u32 vcc, v{TAG}, v{FLV}'], 's_cbranch_vccnz', poll_fn(P, FLV, FLA, 's[14:15]', TAG), lambda w, it: False)
    stamp(P, 5, OPT['st'] == 'X')
    e('s_mul_i32 s3, s48, 36864'); e('s_add_u32 s3, s3, s49'); e('s_mov_b32 s57, 0xffff0000')
    RB = lambda q, tp: 24 + (q*3 + tp)*4
    for q in range(3): e(f's_add_u32 s{16+q}, s3, {q*12288}')
    for tp in range(3):
        for q in range(3):
            P.vmem(f'buffer_load_dwordx4 {vr(RB(q, tp), 4)}, v{L16}, s[{SP}:{SP+3}], s{16+q} offen offset:{tp*1024} sc1', ('p', tp))
    for kp in range(3):
        P.wait(vm=('p', kp))
        for q in range(3):
            for i in range(4):
                e(f'v_lshlrev_b32 v64, 16, v{RB(q, kp) + i}'); e(f'v_and_b32 v65, s57, v{RB(q, kp) + i}')
                e(f'v_add_f32 v{ACC + 8*kp + 2*i}, v{ACC + 8*kp + 2*i}, v64'); e(f'v_add_f32 v{ACC + 8*kp + 2*i + 1}, v{ACC + 8*kp + 2*i + 1}, v65')
        X, Y, D = ACC + 8*kp, ACC + 8*kp + 4, 136 + 4*kp
        e(f'v_cvt_pk_bf16_f32 v{D}, v{X}, v{X+1}'); e(f'v_cvt_pk_bf16_f32 v{D+1}, v{X+2}, v{X+3}')
        e(f'v_cvt_pk_bf16_f32 v{D+2}, v{Y}, v{Y+1}'); e(f'v_cvt_pk_bf16_f32 v{D+3}, v{Y+2}, v{Y+3}')
        for sw in ('32', '16'):
            e(f'v_permlane{sw}_swap_b32 v{D}, v{D+2}'); e(f'v_permlane{sw}_swap_b32 v{D+1}, v{D+3}')
        P.vmem(f'buffer_store_dwordx4 {vr(D,4)}, v{VOUT}, s[{SOUT}:{SOUT+3}], 0 offen offset:{kp*64} {OPT["out_st"]}', 'st')
    stamp(P, 6, OPT['st'] == 'X')

HDR = open('cdna_kernels/' + NAME + '.s.ref').read().split('; Override launch')[0]

def kd(name, vg, sg):
    return f""".p2align 6
.amdhsa_kernel {name}
  .amdhsa_next_free_vgpr {vg}
  .amdhsa_next_free_sgpr {sg}
  .amdhsa_accum_offset {(vg+3)//4*4}
  .amdhsa_group_segment_fixed_size 0
  .amdhsa_kernarg_size 104
  .amdhsa_user_sgpr_count 2
  .amdhsa_user_sgpr_kernarg_segment_ptr 1
  .amdhsa_system_sgpr_workgroup_id_x 1
.end_amdhsa_kernel
"""

def build():
    P = gen_k1()
    out = HDR
    out += f'; @launch grid=(256,1,1) block=(512,1,1) lds={K1_LDS}\n'
    out += '.amdgcn_target "amdgcn-amd-amdhsa--gfx950"\n.text\n'
    P.pad_hazards()
    if not OPT["abl"] and not OPT["abl2"] and not OPT["abl3"] and not OPT.get("cyc") and not OPT["trace"]: P.check_loads()
    sys.stderr.write(f'{dict(P.count(0))}\n')
    out += f'.globl {KNAME}\n.p2align 8\n.type {KNAME},@function\n{KNAME}:\n' + '\n'.join(P.emit()) + '\n'
    out += '.Lcode_end:\n'
    out += '.section .rodata,"a"\n' + kd(KNAME, 256, 102)
    return out

if __name__ == '__main__':
    dst = 'cdna_kernels/' + NAME + '.s'
    for a in sys.argv[1:]:
        if '=' in a:
            k, v = a.split('=', 1)
            if k == 'out': dst = v
            elif isinstance(OPT[k], bool): OPT[k] = (v == '1')
            elif isinstance(OPT[k], int): OPT[k] = int(v)
            else: OPT[k] = v.replace('+', ' ')
    open(dst, 'w').write(build())
```

```python
import sys, struct, math, re
from dsl import *

NAME = 'concat_heads__mha_block_cached__gqa_block_cached__near_ridge'
def fbits(x): return struct.unpack('<I', struct.pack('<f', x))[0]
CSC = math.log2(math.e) / math.sqrt(128.0)
BIG = 0x20000000

OPT = dict(kv_pol='nt', x_pol='', w_pol='', o_st='sc1', o_ld='sc1', wo_pol='', out_st='nt', ts=False, ts2=False, clk=False,
           qrot=True, k2a=1, k2b=0, cpf=2, abl='', abl2='', t0=22, lak=2, w2=False, cyc=False, krot=0, slp=3, nw=8, nw0=2, pa=27, dyn=False, nf=True, rtc=0, ea='15,16,16', wpos=31, trace=False, dbg=False, tlb=0, qx=4, qprio=1, oprio=1, probe='', pfi='0,1,4,5', pfs='3,6,9,12', abl3='', wpf=True, spread=True, dla=4, ela=4, la=4, kvq='5,8,11,14', st='', sti=1, hprio=1, post4=3)

def mfma(P, d, a, b, first=False):
    c = '0' if first else vr(d, 4)
    P.e(f'v_mfma_f32_16x16x32_bf16 {vr(d,4)}, {vr(a,4)}, {vr(b,4)}, {c}')

def mfma32(P, d, a, b, first=False):
    c = '0' if first else vr(d, 16)
    P.e(f'v_mfma_f32_32x32x16_bf16 {vr(d,16)}, {vr(a,4)}, {vr(b,4)}, {c}')

def femit(P, dst, x, t1, t2):
    P.e(f'v_lshrrev_b32 v{t1}, 3, v{x}')
    P.e(f'v_lshrrev_b32 v{t2}, 2, v{x}')
    P.e(f'v_xor_b32 v{t2}, v{t2}, v{t1}')
    P.e(f'v_and_b32 v{t2}, 1, v{t2}')
    P.e(f'v_lshl_or_b32 v{t1}, v{t2}, 1, v{t1}')
    P.e(f'v_and_b32 v{dst}, 3, v{x}')
    P.e(f'v_lshl_or_b32 v{dst}, v{dst}, 2, v{t1}')

def srd(P, d, lo, hi, size):
    P.e(f's_mov_b32 s{d}, s{lo}')
    P.e(f's_and_b32 s{d+1}, s{hi}, 0xffff')
    P.e(f's_mov_b32 s{d+2}, {size}')
    P.e(f's_mov_b32 s{d+3}, 0x20000')

def stamp(P, idx, cond=True):
    if OPT['ts'] and cond:
        P.e(f's_memrealtime s[{60+2*idx}:{61+2*idx}]')
        if OPT['clk'] and idx == 3: P.e('s_memtime s[100:101]')
        if OPT['clk'] and idx == 4: P.e('s_memtime s[72:73]'); P.e('s_waitcnt lgkmcnt(0)'); P.e('s_sub_u32 s58, s72, s100')
        if OPT['clk'] and idx in (1, 2): P.e(f's_memtime s[{(100, 72)[idx-1]}:{(101, 73)[idx-1]}]')
        if OPT['clk'] and idx == 2: P.e('s_waitcnt lgkmcnt(0)'); P.e('s_sub_u32 s80, s72, s100')
        P.e('s_waitcnt lgkmcnt(0)')
def stamp_it(P, idx, itv):
    if OPT['ts'] and OPT['ts2']:
        def f():
            P.e(f'{"s_memtime" if OPT["cyc"] else "s_memrealtime"} s[{60+2*idx}:{61+2*idx}]')
            if not OPT['cyc']: P.e('s_waitcnt lgkmcnt(0)')
        P.ool([f's_cmp_eq_u32 s27, {itv}'], 's_cbranch_scc1', f, lambda w, it: it == itv)
def stamps_out(P, off, wreg, wg_shift):
    e = P.e
    P.wait(vm='all')
    stamp(P, 7)
    if OPT['probe']:
        a, b = OPT['probe'].split(',')
        def f():
            e(f's_sub_u32 s3, s{60+2*int(b)}, s{60+2*int(a)}'); e('s_mul_i32 s3, s3, 10'); e('s_min_u32 s3, s3, 60000')
            lb = P.newlab('pr'); P.lab(lb)
            e('s_memrealtime s[8:9]'); e('s_waitcnt lgkmcnt(0)'); e('s_sub_u32 s8, s8, s74'); e('s_sleep 1'); e('s_cmp_lt_u32 s8, s3'); e(f's_cbranch_scc1 {lb}')
        e('s_lshl_b32 s3, s2, 3'); e(f's_add_u32 s3, s3, {wreg}')
        P.only(None, f, pred=lambda w, it: True, cmp=f's_cmp_eq_u32 s3, {8 * 77}')
        return
    if OPT['dbg']:
        def f():
            e('s_not_b32 s3, s60'); e('v_mov_b32 v2, s3'); e('v_mov_b32 v0, 0'); e('s_mov_b64 exec, 1')
            e('global_atomic_umax v0, v2, s[82:83] offset:4 sc1')
            for k in range(8):
                e(f'v_mov_b32 v{3+k}, s{60+2*k}'); e(f'global_atomic_umax v0, v{3+k}, s[82:83] offset:{8+4*k} sc1')
            for i, k in enumerate((1, 2, 4, 7)):
                e(f's_sub_u32 s3, 0, s{60+2*k}'); e(f'v_mov_b32 v{12+i}, s3'); e(f'global_atomic_umax v0, v{12+i}, s[82:83] offset:{40+4*i} sc1')
            e('s_mov_b64 exec, -1'); e('s_waitcnt vmcnt(0)')
        P.only(None, f, pred=lambda w, it: True, cmp=f's_cmp_eq_u32 {wreg}, 0')
        return
    if OPT['clk']:
        e('s_mov_b32 s72, s58'); e('s_mov_b32 s73, 0'); e('s_mov_b32 s70, s80'); e('s_mov_b32 s71, 0')
    if False:
        e('s_sub_u32 s70, s12, s10'); e('s_mov_b32 s71, 0')
        if P.name == 'k1':
            e('s_sub_u32 s72, s16, s14'); e('s_mov_b32 s73, 0')
    e('s_load_dwordx2 s[24:25], s[0:1], 96'); e('s_waitcnt lgkmcnt(0)')
    e(f's_add_u32 s24, s24, {off}'); e('s_addc_u32 s25, s25, 0')
    e(f's_lshl_b32 s3, s2, {wg_shift}'); e(f's_lshl_b32 s26, {wreg}, 6'); e('s_add_u32 s3, s3, s26')
    e('v_mov_b32 v0, s3')
    for k in range(8):
        e(f'v_mov_b32 v2, s{60+2*k}'); e(f'v_mov_b32 v3, s{61+2*k}')
        e(f'global_store_dwordx2 v0, v[2:3], s[24:25] offset:{8*k}')
        e('s_waitcnt vmcnt(0)')

def code_prefetch(P, start, end, dst):
    e = P.e
    e('s_getpc_b64 s[56:57]')
    P.lab(f'.Lpc_{P.name}')
    e(f's_sub_u32 s56, s56, .Lpc_{P.name}-{start}'); e('s_subb_u32 s57, s57, 0')
    if OPT['cpf'] == 2:
        e('s_lshr_b32 s3, s2, 3'); e('s_lshl_b32 s3, s3, 11'); e('v_and_b32 v12, 15, v0'); e('v_lshlrev_b32 v12, 7, v12'); e('v_add_u32 v12, s3, v12')
    else: e('v_lshlrev_b32 v12, 7, v0')
    e(f's_mov_b32 s3, {end}-{start}-4')
    e(f'v_min_u32 v13, s3, v12')
    P.vmem(f'global_load_dword v{dst}, v13, s[56:57]', 'pf')

STG, XB = 25600, 9216
QB0, NQ = 0, 5
XCH = 131072
FLG = 161792
K1_LDS = 163840
SX, SW, SK, SV, SO = 28, 32, 36, 40, 44
FW, FRL, FRC, FT, FV, LANE = 186, 187, 188, 189, 190, 191

def sidx(s): return (s + 2) % NQ

class Flags:
    def __init__(s, P): s.P = P
    def post(s, val, off=0):
        s.P.e(f'v_mov_b32 v{FV}, {val}')
        s.P.ds(f'ds_write_b32 v{FW}, v{FV} offset:{off}', 'fw')
    def read(s, ad): s.P.ds(f'ds_read_b32 v{FT}, v{ad}', 'fr')
    def check(s, ad, val):
        P = s.P
        P.wait(lg='fr')
        def spin():
            sp = P.newlab('sp'); P.lab(sp)
            if OPT['slp']: P.e(f's_sleep {OPT["slp"]}')
            P.e(f'ds_read_b32 v{FT}, v{ad}'); P.e('s_waitcnt lgkmcnt(0)')
            P.e(f'v_cmp_gt_u32 vcc, {val}, v{FT}'); P.e('s_nop 0'); P.e(f's_cbranch_vccnz {sp}')
        P.ool([f'v_cmp_gt_u32 vcc, {val}, v{FT}'], 's_cbranch_vccnz', spin, lambda w, it: False)
    def need(s, ad, val): s.read(ad); s.check(ad, val)

KNAME = NAME + '_kernel'
FLAGOFF = 0x2000000
NONCE = FLG + 1024

def gen_k1():
    P = Prog('k1', 's4'); e = P.e
    F = Flags(P)
    e('s_cmp_ge_u32 s2, 256'); e('s_cbranch_scc1 .Lk1_end')
    e('s_load_dwordx8 s[8:15], s[0:1], 0')
    e('s_load_dwordx8 s[16:23], s[0:1], 40')
    e('s_load_dwordx2 s[24:25], s[0:1], 96')
    e('s_load_dwordx2 s[82:83], s[0:1], 88')
    if OPT['ts']:
        e('s_memrealtime s[60:61]')
        for k in range(62, 76): e(f's_mov_b32 s{k}, 0')
    if OPT['cpf']: code_prefetch(P, KNAME, '.Lcode_end', 87)
    e('v_lshrrev_b32 v14, 6, v0')
    e('v_readfirstlane_b32 s87, v14')
    e(f'v_and_b32 v{LANE}, 63, v0')
    e('s_and_b32 s4, s87, 3'); e('s_lshr_b32 s81, s87, 2')
    e('s_and_b32 s48, s2, 7'); e('s_lshr_b32 s49, s2, 3')
    e('s_lshr_b32 s50, s48, 2')
    e('s_and_b32 s51, s48, 3'); e('s_lshl_b32 s51, s51, 3')
    e('s_and_b32 s55, s49, 3'); e('s_lshl_b32 s55, s55, 1'); e('s_add_u32 s51, s51, s55')
    e('s_lshr_b32 s52, s49, 2')
    e(f's_mov_b32 s7, {fbits(CSC):#x}')
    gens, st = {True: gen_main(P, F), False: gen_helper(P, F)}, {}
    def role1(m):
        next(gens[m]); st[m] = list(P.vm); P.vm = []
    P.variant(None, role1, pred=lambda w, it: (w & 4) == 0, cmp='s_cmp_eq_u32 s81, 0')
    e(f'v_and_b32 v2, 31, v0'); e('v_lshlrev_b32 v2, 2, v2'); e('v_lshl_add_u32 v2, v14, 7, v2'); e(f'v_add_u32 v{FW}, {FLG}, v2')
    e('v_and_b32 v2, 3, v0'); e('v_mul_u32_u24 v2, 132, v2'); e(f'v_add_u32 v{FRL}, {FLG + 1536}, v2')
    e('v_and_b32 v2, 7, v0'); e('v_mul_u32_u24 v2, 132, v2'); e(f'v_add_u32 v{FRC}, {FLG}, v2')
    e(f'v_mov_b32 v{FV}, 0')
    e(f'ds_write_b32 v{FW}, v{FV}'); e(f'ds_write_b32 v{FW}, v{FV} offset:1024'); e('s_waitcnt lgkmcnt(0)')
    def role(m):
        P.vm = st[m]
        for _ in gens[m]: pass
        P.lg = []; P.vm = []
    P.variant(None, role, pred=lambda w, it: (w & 4) == 0, cmp='s_cmp_eq_u32 s81, 0')
    P.lab('.Lk1_fin')
    if OPT['ts']:
        e('s_waitcnt vmcnt(0) lgkmcnt(0)')
        stamps_out(P, 0x4000000, 's87', 9)
    P.lab('.Lk1_end')
    e('s_endpgm')
    return P

def o_srd(P):
    e = P.e
    e('s_mul_i32 s3, s50, 72'); e('s_mul_i32 s26, s52, 9'); e('s_add_u32 s3, s3, s26'); e('s_lshl_b32 s3, s3, 7')
    e('s_lshl_b32 s26, s51, 2'); e('s_add_u32 s3, s3, s26'); e('s_lshl_b32 s3, s3, 10')
    e('s_add_u32 s24, s24, s3'); e('s_addc_u32 s25, s25, 0'); srd(P, SO, 24, 25, (8 * 128 + 8) * 1024)

def qrot(P):
    e = P.e
    if OPT['qrot']:
        e('s_add_u32 s53, s55, s52'); e('s_and_b32 s53, s53, 7'); e('s_mul_i32 s53, s53, 9'); e('s_lshr_b32 s53, s53, 2')
    else: e('s_mov_b32 s53, 0')

def latest(P, tags):
    need = [t for t in tags if t in P.lg]
    if need: P.wait(lg=max(need, key=lambda t: len(P.lg) - 1 - P.lg[::-1].index(t)))

def ablate(items, ab):
    out = []
    for x in items:
        if isinstance(x, Ins):
            if 'mfma' in ab and x.kind == 'mfma': continue
            if 'valu' in ab and x.op in ('v_exp_f32', 'v_add_f32', 'v_cvt_pk_bf16_f32', 'v_max3_f32'): continue
            if 'ds2' in ab and 'tr_b16' in x.op and int(re.search(r'v\[(\d+)', x.text).group(1)) % 8 >= 4: continue
            if 'exp' in ab and x.op in ('v_exp_f32', 'v_add_f32', 'v_cvt_pk_bf16_f32'): continue
            if 'pv' in ab and x.kind == 'mfma' and re.match(r'v\[(0|16|32|48):', x.ops[0]): continue
            if 'tr' in ab and 'tr_b16' in x.op: continue
            if 'ds' in ab and x.kind == 'dsr' and f'v{FT},' not in x.text: continue
            if 'dma' in ab and x.kind == 'dma' and ' nt ' in x.text: continue
            if 'st' in ab and x.kind == 'vstore' and 's[44:47]' in x.text: continue
            if 'qdma' in ab and x.kind == 'dma' and ' nt ' not in x.text: continue
        elif isinstance(x, Variant): x.A = ablate(x.A, ab); x.B = ablate(x.B, ab)
        elif isinstance(x, Loop): x.body = ablate(x.body, ab)
        out.append(x)
    return out

def gen_main(P, F):
    e = P.e
    O, S, FB, AK, AV, QA, QBr = 0, 64, 128, 160, 168, 224, 192
    LA_, ONES, M_, R_, T1, VST = 152, 164, 184, (FRC, LANE), (FT, FV), FT
    AW, AX, BFm, AW2, VW, SAV = 160, 168, 170, 64, 74, 76
    ACC = (0, 192)
    t = 20
    e(f'v_and_b32 v{t}, 15, v{LANE}'); e(f'v_lshrrev_b32 v{t+1}, 4, v{LANE}')
    for u in range(2):
        e('s_lshl_b32 s3, s4, 3'); e(f's_add_u32 s3, s3, {4*u}'); e(f'v_add_u32 v{t+4}, s3, v{t+1}'); e(f'v_and_b32 v{t+5}, 15, v{t+4}')
        femit(P, t+6, t+5, t+7, t+8)
        e(f'v_xor_b32 v{t+6}, v{t+6}, v{t}'); e(f'v_lshlrev_b32 v{t+6}, 4, v{t+6}'); e(f'v_lshl_add_u32 v{VW+u}, v{t+4}, 13, v{t+6}')
    e('s_lshl_b32 s6, s4, 11')
    qrot(P); e('s_lshl_b32 s54, s53, 18')
    e('s_waitcnt lgkmcnt(0)')
    e('s_cmp_eq_u32 s50, 0'); e('s_cselect_b64 s[14:15], s[14:15], s[22:23]')
    e('s_lshl_b32 s3, s51, 8'); e('s_add_u32 s14, s14, s3'); e('s_addc_u32 s15, s15, 0')
    srd(P, SW, 14, 15, 575 * 8192 + 512)
    def wpiece(s, k):
        hd, u = k // 2, k % 2
        def pre(): e(f's_add_u32 m0, s6, {QB0 + sidx(s)*STG + XB + hd*8192 + u*1024 - hd*256}')
        def post():
            P.vmem(f'buffer_load_dwordx4 v{VW+u}, s[{SW}:{SW+3}], s54 offen offset:{hd*256} {OPT["w_pol"]} lds', ('q', s))
        return pre, post
    def wadv(): e('s_add_u32 s54, s54, 262144'); e(f's_cmp_eq_u32 s54, {18*262144}'); e('s_cselect_b32 s54, 0, s54')
    for s in range(2):
        for k in range(4): a_, b_ = wpiece(s, k); a_(); b_()
        wadv()
    yield
    e(f'v_lshrrev_b32 v{t+2}, 2, v{t}'); e(f'v_and_b32 v{t+3}, 3, v{t}')
    def traddr(dst, shift, base):
        e(f'v_lshl_add_u32 v{t+4}, v{t+1}, {shift}, v{t+2}'); e(f'v_and_b32 v{t+5}, 15, v{t+4}'); femit(P, t+6, t+5, t+7, t+8)
        e(f'v_lshrrev_b32 v{t+7}, 1, v{t+3}'); e(f'v_xor_b32 v{t+6}, v{t+6}, v{t+7}')
        e(f'v_lshlrev_b32 v{t+6}, 4, v{t+6}'); e(f'v_and_b32 v{t+7}, 1, v{t+3}'); e(f'v_lshl_or_b32 v{t+6}, v{t+7}, 3, v{t+6}')
        e(f'v_lshl_add_u32 v{t+6}, v{t+4}, 8, v{t+6}'); e(f'v_add_u32 v{dst}, {base}, v{t+6}')
    traddr(AW, 3, QB0 + XB)
    for d in range(1, 8): e(f'v_xor_b32 v{AW+d}, {d << 5}, v{AW}')
    e(f'v_sub_u32 v{t+6}, 4, v{t+2}'); e(f'v_and_b32 v{t+6}, 3, v{t+6}'); e(f'v_xor_b32 v{t+6}, v{t+6}, v{t+1}'); e(f'v_lshlrev_b32 v{t+6}, 4, v{t+6}')
    e(f'v_lshl_add_u32 v{t+6}, v{t}, 6, v{t+6}'); e(f's_add_u32 s3, s6, {QB0}'); e(f'v_add_u32 v{AX}, s3, v{t+6}')
    for k in range(9): e(f'v_add_u32 v{AW2+k}, {2*STG}, v{AW+k}')
    def qa(s): return (AW, sidx(s)*STG) if sidx(s) < 2 else (AW2, (sidx(s) - 2)*STG)
    traddr(SAV, 2, 32768)
    femit(P, t+6, t, t+7, t+8)
    e(f'v_xor_b32 v{t+6}, v{t+6}, v{t+1}'); e(f'v_lshlrev_b32 v{t+6}, 4, v{t+6}'); e(f'v_lshl_add_u32 v{FRC}, v{t}, 8, v{t+6}')
    o_srd(P)
    P.wait(vm=('q', 0))
    seq = [(s, hd, dt) for s in range(18) for hd in range(2) for dt in range(8)]
    NB, LA = 8, 5
    def rdA(i, hf):
        s, hd, dt = seq[i]; a, off = qa(s)
        P.ds(f'ds_read_b64_tr_b16 {vr(FB + 4*(i % NB) + 2*hf, 2)}, v{a + (dt ^ hf)} offset:{off + hd*8192 + 1024*hf}', ('A', i))
    def rdB(s, j):
        a, off = qa(s)
        P.ds(f'ds_read_b128 {vr(BFm + 8*(s % 2) + 4*j, 4)}, v{a + 8} offset:{off + 1024*j}', ('B', s, j))
    e('s_barrier')
    stamp(P, 1, not OPT['ts2'])
    rdB(0, 0); rdB(0, 1)
    for i in range(LA): rdA(i, 0); rdA(i, 1)
    for k in range(4): a_, b_ = wpiece(2, k); a_(); b_()
    wadv()
    i0 = len(P.cur)
    for i, (s, hd, dt) in enumerate(seq):
        k = i % 16
        WP = {1: 0, 3: 1, 5: 2, 7: 3}
        if OPT['st'] == 'Q' and k == 0 and s % 3 == 0: stamp(P, s // 3 + 1)
        if k in WP and s + 3 < 18: wpiece(s + 3, WP[k])[0]()
        latest(P, [('A', i), ('B', s, 0), ('B', s, 1)])
        mfma(P, ACC[hd] + dt*8, FB + 4*(i % NB), BFm + 8*(s % 2), s == 0)
        if k in WP and s + 3 < 18: wpiece(s + 3, WP[k])[1]()
        if k == 8 and s + 3 < 18: wadv()
        if OPT['st'] == 'B' and k == 0 and s in (8, 9): e(f's_memtime s[{62 + 8*(s-8)}:{63 + 8*(s-8)}]')
        if s < 17 and k == 16 - LA - 1:
            if OPT['st'] == 'B' and s in (8, 9): e(f's_memtime s[{64 + 8*(s-8)}:{65 + 8*(s-8)}]')
            P.wait(vm=('q', s + 1))
            if OPT['st'] == 'B' and s == 8: e('s_memtime s[66:67]')
            e('s_barrier')
            if OPT['st'] == 'B' and s == 8: e('s_memtime s[68:69]')
        if i + LA < len(seq): rdA(i + LA, 0)
        mfma(P, ACC[hd] + dt*8 + 4, FB + 4*(i % NB), BFm + 8*(s % 2) + 4, s == 0)
        if i + LA < len(seq): rdA(i + LA, 1)
        if s < 17:
            if k == 11: rdB(s + 1, 0)
            if k == 12: rdB(s + 1, 1)
        if i == len(seq) - 1: e('s_barrier')
    if OPT['abl']: P.cur[i0:] = ablate(P.cur[i0:], OPT['abl'].split())
    stamp(P, 2, not OPT['ts2'])
    P.wait(vm='all')
    e(f'v_mov_b32 v{AK}, v{FRC}')
    for u in range(1, 4): e(f'v_xor_b32 v{AK+u}, {u << 6}, v{AK}')
    e(f'v_mov_b32 v{AV}, v{SAV}')
    for d in range(1, 8): e(f'v_xor_b32 v{AV+d}, {d << 5}, v{AV}')
    for k in range(4): e(f'v_mov_b32 v{ONES+k}, 0x3f803f80')
    NB = 6
    PX = 176
    order = [('S', 0), ('S', 1), ('P', 2), ('S', 2), ('S', 3), ('P', 3), ('P', 0), ('P', 1)]
    pbase = lambda b, j: PX + 4*j if b == 3 else S + 16*b + 8*j
    mf, reads = [], []
    for kind, b in order:
        for k in range(8):
            if kind == 'S':
                tt, u = k // 4, k % 4
                reads.append((('K', b, k), 1, AK + u, b*8192 + tt*4096))
                mf.append([(S + 16*b + 8*j + 4*tt, QA + 8*u + 4*j, u == 0) for j in range(2)])
            else:
                reads.append((('V', b, k), 2, AV + k, b*8192))
                mf.append([(O + 32*j + 4*k, pbase(b, j), False) for j in range(2)])
    prev = lambda m: order[m // 8] in (('P', 2), ('P', 3))
    CHK, LA = 48, OPT['lak']
    def rd(i, it=0):
        tag, n, ad, off = reads[i]; b = FB + 4*(i % NB)
        if n == 1: P.ds(f'ds_read_b128 {vr(b,4)}, v{ad} offset:{off}', (it,) + tag)
        else:
            P.ds(f'ds_read_b64_tr_b16 {vr(b,2)}, v{ad} offset:{off}', (it,) + tag)
            P.ds(f'ds_read_b64_tr_b16 {vr(b+2,2)}, v{ad} offset:{off + 4096}', (it,) + tag)
    groups = [(b, j) for b in range(4) for j in range(2)]
    gb = {g: S + 16*g[0] + 8*g[1] for g in groups}
    sdone = {0: 7, 1: 15, 2: 31, 3: 39}
    dline = {0: 48, 1: 56, 2: 80, 3: 96}
    def valu_plan():
        T0 = OPT['t0']
        at = {m: [] for m in range(128)}
        for b in range(4):
            for k in range(8): at[min(sdone[b] + 1 + k, CHK - 1)].append(((b, k // 4), 'max', k % 4))
        for i, g in enumerate(groups):
            for k in range(8):
                m = T0 + 8*i + k
                at[m].insert(0, (g, 'exp', k))
                if k % 2 == 1: at[m + 1].append((g, 'cvt', k // 2))
            assert T0 + 8*i + 8 < dline[g[0]] and T0 + 8*i > min(sdone[g[0]] + 1 + 4*g[1] + 3, CHK - 1)
        post = {m: [(1,) + o for o in at[m + 64]] + [(0,) + o for o in at[m]] for m in range(64)}
        for m in post: post[m].sort(key=lambda o: o[2] != 'exp')
        return post
    vpost = valu_plan()
    def vop(o, m, slow=False):
        lag, g, k_, k = o; r = gb[g]; j = g[1]
        if k_ == 'max': e(f'v_max3_f32 v{M_+j}, v{M_+j}, v{r+2*k}, v{r+2*k+1}')
        elif k_ == 'exp': e(f'v_exp_f32 v{r+k}, v{r+k}')
        else: e(f'v_cvt_pk_bf16_f32 v{pbase(*g)+k}, v{r+2*k}, v{r+2*k+1}')
    CK = {16 - LA - 1: 's90', 24 - LA - 1: 's91', 48 - LA - 1: 's92', 64 - LA - 1: 's93'}
    POST = {47: 's94', 49: 's95', 63: 's96'}
    def qfin(a, pk):
        ops = [f'v_pk_mul_f32 {vr(a+k,2)}, {vr(a+k,2)}, s[84:85] op_sel:[0,1]' for k in range(0, 64, 2)] if pk else [f'v_mul_f32 v{a+k}, s85, v{a+k}' for k in range(64)]
        for u in range(4):
            for j in range(2):
                q, X, Y = a + 8*u + 4*j, a + 16*u + 4*j, a + 16*u + 8 + 4*j
                ops += [f'v_cvt_pk_bf16_f32 v{q}, v{X}, v{X+1}', f'v_cvt_pk_bf16_f32 v{q+1}, v{X+2}, v{X+3}',
                        f'v_cvt_pk_bf16_f32 v{q+2}, v{Y}, v{Y+1}', f'v_cvt_pk_bf16_f32 v{q+3}, v{Y+2}, v{Y+3}']
        for sw in ('32', '16'):
            for q in range(a, a + 32, 4): ops += [f'v_permlane{sw}_swap_b32 v{q}, v{q+2}', f'v_permlane{sw}_swap_b32 v{q+1}, v{q+3}']
        return ops
    def vst(): e(f'v_mbcnt_lo_u32_b32 v{VST}, -1, 0'); e(f'v_mbcnt_hi_u32_b32 v{VST}, -1, v{VST}'); e(f'v_lshlrev_b32 v{VST}, 4, v{VST}')
    def ostore(D, k): P.vmem(f'buffer_store_dwordx4 {vr(D + 4*k,4)}, v{VST}, s[{SO}:{SO+3}], s{88 if k < 4 else 99} offen offset:{(k % 4)*1024} {OPT["o_st"]}', 'st', optional=True)
    def slots(lo, hi, mode, events=True, zero=False, fin=False):
        STS = {x: i + 1 for i, x in enumerate(OPT['st'].split(','))} if mode == 'fast' else {}
        skip = lambda m: (mode in ('first', 'redo') and prev(m)) or (mode == 'tail' and not prev(m))
        keep = lambda o: mode == 'fast' or (mode == 'first' and o[0] == 0) or (mode == 'tail' and o[0] == 1)
        extra = qfin(ACC[1], False) if mode == 'first' else []
        for m in range(lo, hi):
            ops = [o for o in vpost[m] if keep(o)]
            qb = (lambda r: r - QA + ACC[0]) if mode == 'first' else (lambda r: r)
            if not skip(m):
                w2 = m + 1 if (OPT['w2'] and m % 2 == 0 and (0,) + reads[m + 1][0] in P.lg) else m
                P.wait(lg=(0,) + reads[w2][0])
                mfma(P, mf[m][0][0], FB + 4*(m % NB), qb(mf[m][0][1]), mf[m][0][2] or zero)
            if ops: vop(ops.pop(0), m)
            if not skip(m): mfma(P, mf[m][1][0], FB + 4*(m % NB), qb(mf[m][1][1]), mf[m][1][2] or zero)
            if not skip(m) and order[m // 8][0] == 'P' and m % 8 in (2, 5):
                j = m % 8 // 3
                mfma(P, LA_ + 4*j, ONES, mf[m][j][1], zero)
            if f'{m}' in STS: stamp_it(P, STS[f'{m}'], OPT['sti'])
            if events:
                if m + 2 in CK and not (mode == 'first' and CK[m + 2] == 's90'): F.read(FRL)
                if f'{m}b' in STS: stamp_it(P, STS[f'{m}b'], OPT['sti'])
                if m in CK and not (mode == 'first' and CK[m] == 's90'): F.check(FRL, CK[m])
                if f'{m}c' in STS: stamp_it(P, STS[f'{m}c'], OPT['sti'])
                if m == 45 and mode == 'fast': P.ool(['s_cmp_eq_u32 s27, 6'], 's_cbranch_scc1', lambda: e('s_waitcnt vmcnt(0)'), lambda w, it: it == 6)
                if m in POST: F.post(POST[m])
            i = m + LA
            if i >= 64:
                if events: rd(i - 64, 1)
            elif not skip(i) and not (mode in ('redo', 'tail') and i >= CHK): rd(i)
            for o in ops: vop(o, m)
            if fin and m % 2 == 1 and m + 1 < hi: finish_u(QBr, (m + 1 - CHK) // 2)
            if mode == 'first':
                for _ in range(OPT['qx'] if m < 32 else 99):
                    if extra: e(extra.pop(0))
                if m >= 40:
                    for k in range(4): e(f'v_mov_b32 v{QA + 4*(m-40) + k}, v{ACC[0] + 4*(m-40) + k}')
            if events and m % 16 == 6 and mode != 'first':
                P.ool(['s_cmp_eq_u32 s27, 5'], 's_cbranch_scc1', lambda: (vst(), ostore(QBr, m // 16 * 2), ostore(QBr, m // 16 * 2 + 1)), lambda w, it: it == 5)
            if events and 50 <= m < 54: e(f'v_xor_b32 v{AK + m - 50}, 0x10000, v{AK + m - 50}')
            if events and m == 47 - LA and mode != 'first':
                for k in range(8): e(f'v_xor_b32 v{AV + k}, 0x10000, v{AV + k}')
    e('s_mov_b32 s85, s7')
    F.need(FRL, 19)
    for i in range(LA):
        if i == LA - 1: F.post(18)
        rd(i)
    for t_ in qfin(ACC[0], True): e(t_)
    def reset():
        for j in range(2): e(f'v_mov_b32 v{R_[j]}, 0')
        e(f's_mov_b32 s7, {fbits(64.0):#x}')
    def mreset():
        for j in range(2): e(f'v_mov_b32 v{M_+j}, {fbits(-1e30):#x}')
    reset(); mreset()
    e(f's_mov_b32 s89, {fbits(64.0):#x}'); e('s_mov_b32 s90, 19'); e('s_mov_b32 s94, 19'); e('s_mov_b32 s97, 0xee')
    e('s_lshl_b32 s88, s4, 18'); e('s_add_u32 s99, s88, 131072')
    stamp(P, 3, not OPT['ts2'])
    def xlane(R, op):
        for sw in ('32', '16'):
            for j in range(2): e(f'v_mov_b32 v{T1[j]}, v{R+j}')
            for j in range(2): e(f'v_permlane{sw}_swap_b32 v{R+j}, v{T1[j]}')
            for j in range(2): e(f'{op} v{R+j}, v{R+j}, v{T1[j]}')
    LI = PX
    def finish_l():
        for j in range(2): e(f'v_rcp_f32 v{LI+j}, v{LA_ + 4*j}')
    def finish_u(D, u, pk=False):
        for j in range(2):
            a = O + 32*j + 8*u
            if pk:
                for k in range(0, 8, 2): e(f'v_pk_mul_f32 {vr(a+k,2)}, {vr(a+k,2)}, {vr(LI,2)} ' + ('op_sel:[0,1]' if j else 'op_sel_hi:[1,0]'))
            else:
                for k in range(8): e(f'v_mul_f32 v{a+k}, v{a+k}, v{LI+j}')
            for k in range(4): e(f'v_cvt_pk_bf16_f32 v{D + 16*j + 4*u + k}, v{a+2*k}, v{a+2*k+1}')
    def body():
        for k in range(1, 4): e(f's_add_u32 s{90+k}, s90, {k}')
        for k in range(1, 3): e(f's_add_u32 s{94+k}, s94, {k}')
        if OPT['st'] == 'I':
            for k in range(1, 7): stamp_it(P, k, k + OPT['sti'])
        def switch():
            for k in range(32): e(f'v_mov_b32 v{QA+k}, v{QBr+k}')
            mreset()
        P.ool(['s_cmp_eq_u32 s27, 4'], 's_cbranch_scc1', switch, lambda w, it: it == 4)
        P.ool(['s_cmp_eq_u32 s27, 0'], 's_cbranch_scc1', lambda: slots(0, CHK, 'first'), lambda w, it: it == 0, lambda: slots(0, CHK, 'fast'))
        def fin_a():
            finish_l(); reset()
        P.ool(['s_cmp_eq_u32 s27, 4'], 's_cbranch_scc1', fin_a, lambda w, it: it == 4)
        e(f'v_max_f32 v{T1[0]}, abs(v{M_}), abs(v{M_+1})')
        e(f'v_cmp_lt_f32 vcc, s7, v{T1[0]}')
        def pv(mode):
            def start():
                if mode == 'fast':
                    P.variant(None, lambda f: (finish_u(QBr, 0) if f else None, slots(CHK, CHK + 8, mode, zero=True, fin=f)),
                              pred=lambda w, it: it == 4, cmp='s_cmp_eq_u32 s27, 4')
                else: slots(CHK, CHK + 8, mode, zero=True)
            P.ool(['s_bitcmp0_b32 s97, s27'], 's_cbranch_scc1', start, lambda w, it: it % 4 == 0, lambda: slots(CHK, CHK + 8, mode))
            slots(CHK + 8, 64, mode)
        def rest(fast):
            if fast:
                pv('fast'); return
            P.only(None, lambda: [finish_u(QBr, u, True) for u in range(4)], pred=lambda w, it: it == 4, cmp='s_cmp_eq_u32 s27, 4')
            P.wait(lg='all')
            for i in range(LA): rd(i)
            slots(0, CHK, 'redo', events=False)
            xlane(M_, 'v_max_f32')
            for j in range(2):
                e(f'v_sub_f32 v{T1[j]}, v{R_[j]}, v{M_+j}'); e(f'v_min_f32 v{T1[j]}, s89, v{T1[j]}'); e(f'v_exp_f32 v{T1[j]}, v{T1[j]}')
                e(f'v_mov_b32 v{R_[j]}, v{M_+j}')
            e('s_mov_b32 s7, -1.0')
            for j in range(2): e(f'v_mul_f32 v{LA_+4*j}, v{LA_+4*j}, v{T1[j]}')
            for g in groups:
                for k in range(8): e(f'v_sub_f32 v{gb[g]+k}, v{gb[g]+k}, v{M_+g[1]}')
            for k in range(64): e(f'v_mul_f32 v{O+k}, v{O+k}, v{T1[k // 32]}')
            for m in range(64):
                for o in vpost[m]:
                    if o[0] == 0 and o[2] != 'max': vop(o, m, slow=True)
            for i in range(CHK, CHK + LA): rd(i)
            pv('slow')
        P.ool([], 's_cbranch_vccnz', lambda: rest(False), lambda w, it: (w >> 3) % 2 == 1, lambda: rest(True))
        e('s_add_u32 s90, s90, 4'); e('s_add_u32 s94, s94, 3')
    i0 = len(P.cur)
    P.vm = []
    P.loop(8, 's27', body, lambda t: (t[0] - 1,) + tuple(t[1:]) if isinstance(t, tuple) else t)
    P.wait(lg='all')
    slots(0, CHK, 'tail', events=False)
    e('s_add_u32 s88, s88, 4096'); e('s_add_u32 s99, s99, 4096')
    finish_l(); vst()
    for u in range(4):
        finish_u(S, u, True); ostore(S, u); ostore(S, 4 + u)
    if OPT['abl2']: P.cur[i0:] = ablate(P.cur[i0:], OPT['abl2'].split())
    stamp(P, 4, not OPT['ts2'])
    gen_oproj(P)

def gen_helper(P, F):
    e = P.e
    kvp, xp, wp = OPT['kv_pol'], OPT['x_pol'], OPT['w_pol']
    O8, Q8, S8, FB, QA8 = 0, 32, 64, 72, 136
    VKV, VW, VX, AK8, AV8, AW8, AX8, L16, FRH = 152, 156, 158, 161, 165, 173, 175, 176, 177
    R_, L_, T, M_, FA, TK = 178, 179, 180, 156, 157, 132
    if OPT['qprio']: e(f's_setprio {OPT["qprio"]}')
    e(f'v_and_b32 v3, 15, v{LANE}'); e(f'v_lshrrev_b32 v4, 4, v{LANE}'); e('v_lshrrev_b32 v5, 2, v3'); e('v_and_b32 v6, 3, v3')
    e(f'v_lshrrev_b32 v7, 2, v{LANE}'); e('v_lshrrev_b32 v8, 2, v7'); e('v_sub_u32 v8, 4, v8'); e('v_and_b32 v8, 3, v8')
    e('v_xor_b32 v8, v8, v6'); e('v_lshlrev_b32 v8, 4, v8')
    e('v_mul_u32_u24 v9, 1152, v7'); e('v_add_u32 v9, v9, v8'); e(f'v_add_u32 v{VX+2}, {128*1152}, v9')
    e('s_mul_i32 s3, s4, 18432'); e(f'v_add_u32 v{VX}, s3, v9'); e(f'v_add_u32 v{VX+1}, 73728, v{VX}')
    e('s_lshl_b32 s5, s4, 10'); e('s_lshl_b32 s6, s4, 11'); e('s_lshl_b32 s59, s4, 12')
    e('s_waitcnt lgkmcnt(0)')
    e('s_cmp_eq_u32 s50, 0')
    for k in range(4): e(f's_cselect_b64 s[{8+2*k}:{9+2*k}], s[{8+2*k}:{9+2*k}], s[{16+2*k}:{17+2*k}]')
    e('s_mul_i32 s3, s52, 165888'); e('s_add_u32 s8, s8, s3'); e('s_addc_u32 s9, s9, 0')
    srd(P, SX, 8, 9, 165888)
    qrot(P); e('s_lshl_b32 s53, s53, 6')
    def qstage(s):
        st, tag = QB0 + sidx(s)*STG, ('q', s)
        for u in range(2):
            e(f's_add_u32 m0, s5, {st + u*4096}')
            P.vmem(f'buffer_load_dwordx4 v{VX+u}, s[{SX}:{SX+3}], s53 offen {xp} lds', tag)
        def x8():
            e(f's_mov_b32 m0, {st + 8192}')
            P.vmem(f'buffer_load_dwordx4 v{VX+2}, s[{SX}:{SX+3}], s53 offen {xp} lds', tag, optional=True)
        P.only(s % 4, x8)
        e('s_add_u32 s53, s53, 64'); e('s_cmp_eq_u32 s53, 1152'); e('s_cselect_b32 s53, 0, s53')
    qstage(0); qstage(1)
    yield
    i00 = len(P.cur)
    def tag():
        e('s_memrealtime s[84:85]'); e('s_waitcnt lgkmcnt(0)'); e('s_or_b32 s84, s84, 1')
        e('v_mov_b32 v7, 0'); e('v_mov_b32 v8, s84')
        e('s_mov_b64 exec, 1')
        P.vmem('global_store_dword v7, v8, s[82:83] sc1', 'tag', optional=True)
        e('s_mov_b64 exec, -1')
    e('s_lshl_b32 s3, s2, 3'); e('s_add_u32 s3, s3, s87')
    P.ool(['s_cmp_eq_u32 s3, 4'], 's_cbranch_scc1', tag, lambda w, it: w == 4)
    if OPT['krot'] == 1: e('s_lshr_b32 s58, s2, 3')
    elif OPT['krot'] == 2: e('s_mov_b32 s58, s2')
    elif OPT['krot'] == 3:
        e('s_lshr_b32 s58, s2, 3'); e('s_add_u32 s58, s58, s2'); e('s_lshr_b32 s3, s2, 6'); e('s_add_u32 s58, s58, s3')
    else: e('s_mov_b32 s58, 0')
    e('s_and_b32 s58, s58, 7'); e('s_lshl_b32 s58, s58, 14')
    e('s_lshl_b32 s3, s52, 5'); e('s_add_u32 s3, s3, s51'); e('s_lshl_b32 s3, s3, 17')
    e('s_add_u32 s10, s10, s3'); e('s_addc_u32 s11, s11, 0'); srd(P, SK, 10, 11, 262144)
    e('s_add_u32 s12, s12, s3'); e('s_addc_u32 s13, s13, 0'); srd(P, SV, 12, 13, 262144)
    o_srd(P)
    if OPT['tlb']:
        e(f'v_and_b32 v7, 7, v{LANE}'); e('v_lshlrev_b32 v7, 15, v7')
        def tk():
            P.vmem(f'buffer_load_dword v252, v7, s[{SK}:{SK+3}], 0 offen nt', 'tl', optional=True)
            P.vmem(f'buffer_load_dword v253, v7, s[{SV}:{SV+3}], 0 offen nt', 'tl', optional=True)
            e(f'v_min_u32 v8, 8, v{LANE}'); e('v_lshlrev_b32 v8, 17, v8')
            P.vmem(f'buffer_store_dword v8, v8, s[{SO}:{SO+3}], 0 offen sc1', 'tl', optional=True)
        P.only(1, tk)
    for t in range(4):
        e(f'v_add_u32 v7, {4*t}, v4'); femit(P, 8, 7, 9, 10)
        e('v_xor_b32 v8, v8, v3'); e('v_lshlrev_b32 v8, 4, v8'); e('v_lshl_add_u32 v8, v4, 8, v8'); e(f'v_add_u32 v{VKV+t}, s59, v8')
    femit(P, 8, 3, 9, 10)
    e('v_xor_b32 v8, v8, v4'); e('v_lshlrev_b32 v8, 4, v8'); e('v_lshl_add_u32 v8, v3, 8, v8'); e(f'v_add_u32 v{AK8}, s59, v8')
    for u in range(1, 4): e(f'v_xor_b32 v{AK8+u}, {u << 6}, v{AK8}')
    def traddr16(dst, shift, base_s, base):
        e(f'v_lshl_add_u32 v7, v4, {shift}, v5'); e('v_and_b32 v11, 15, v7'); femit(P, 8, 11, 9, 10)
        e('v_lshrrev_b32 v9, 1, v6'); e('v_xor_b32 v8, v8, v9'); e('s_lshl_b32 s3, s4, 2'); e('v_xor_b32 v8, s3, v8')
        e('v_lshlrev_b32 v8, 4, v8'); e('v_and_b32 v9, 1, v6'); e('v_lshl_or_b32 v8, v9, 3, v8'); e('v_lshl_add_u32 v8, v7, 8, v8')
        if base_s: e(f'v_add_u32 v8, {base_s}, v8')
        e(f'v_add_u32 v{dst}, {base}, v8')
    traddr16(AV8, 2, 's59', 32768)
    for d in range(1, 8): e(f'v_xor_b32 v{AV8+d}, {d << 5}, v{AV8}')
    traddr16(AW8, 3, None, QB0 + XB); e(f'v_xor_b32 v{AW8+1}, 32, v{AW8}')
    e('v_sub_u32 v8, 4, v5'); e('v_and_b32 v8, 3, v8'); e('v_xor_b32 v8, v8, v4'); e('v_lshlrev_b32 v8, 4, v8')
    e('v_lshl_add_u32 v8, v3, 6, v8'); e(f'v_add_u32 v{AX8}, {QB0 + 8192}, v8')
    e(f'v_lshlrev_b32 v{L16}, 4, v{LANE}')
    AW8b = 183
    for k in range(3): e(f'v_add_u32 v{AW8b+k}, {2*STG}, v{AW8+k}')
    e(f'v_add_u32 v{FRH}, {FLG + 512 - (FLG + 1536)}, v{FRL}')
    def item(n):
        S = SK if n % 4 < 2 else SV
        e(f's_add_u32 m0, s59, {(n % 8)*16384}')
        e(f's_xor_b32 s26, s58, {(n // 4)*32768 + (n % 2)*16384}')
        for t in range(4):
            if 'kv8' in OPT['abl2'] and n >= 8: continue
            P.vmem(f'buffer_load_dwordx4 v{VKV+t}, s[{S}:{S+3}], s26 offen offset:{t*1024} {kvp} lds', ('kv', n))
    SEQ = [0, 1, 2] + [x for c in range(1, 8) for x in (4*c, 4*c - 1, 4*c + 1, 4*c + 2)] + [31]
    def cneed(n):
        c, k = (n - 8) // 4, n % 4
        return 19 + 3*c + (1, 1, 2, 3)[k]
    PFI = [int(x) for x in OPT['pfi'].split(',')] if OPT['pfi'] else []
    PFS = [int(x) for x in OPT['pfs'].split(',')][:len(PFI)]
    def pf(i):
        e(f's_mov_b32 s26, {(PFI[i] + 2)*32768}')
        for t in range(4):
            P.vmem(f'buffer_load_dwordx4 {vr(192 + 16*i + 4*t, 4)}, v{VKV+t}, s[{SV}:{SV+3}], s26 offen offset:{t*1024} {kvp}', 'pf')
    e(f'v_mov_b32 v135, {BIG}')
    EA = [int(x) for x in OPT['ea'].split(',')]
    P.wait(vm=('q', 0)); e('s_barrier')
    stamp(P, 1, not OPT['ts2'])
    qstage(2)
    for s in range(18):
        a, off = (AW8, sidx(s)*STG) if sidx(s) < 2 else (AW8b, (sidx(s) - 2)*STG)
        P.ds(f'ds_read_b128 {vr(FB,4)}, v{a+2} offset:{off}', 'b')
        for hd in range(2):
            for dd in range(2):
                b = FB + 4 + 8*hd + 4*dd if hd == 0 else S8 + 4*dd
                P.ds(f'ds_read_b64_tr_b16 {vr(b,2)}, v{a+dd} offset:{off + hd*8192}', ('a', hd, dd))
                P.ds(f'ds_read_b64_tr_b16 {vr(b+2,2)}, v{a+(dd^1)} offset:{off + hd*8192 + 1024}', ('a', hd, dd))
        if s + 3 < 18: qstage(s + 3)
        for i, x in enumerate(EA):
            if x == s: item(i)
        for i, x in enumerate(PFS):
            if x == s: pf(i)
        for hd in range(2):
            for dd in range(2):
                P.wait(lg=('a', hd, dd)); mfma(P, QA8 + 8*hd + 4*dd, FB + 4 + 8*hd + 4*dd if hd == 0 else S8 + 4*dd, FB, s == 0)
        if s < 17: P.wait(vm=('q', s + 1))
        e('s_barrier')
    stamp(P, 2, not OPT['ts2'])
    e(f's_setprio {OPT["hprio"]}')
    for i, x in enumerate(EA):
        if x == 18: item(i)
    P.wait(vm=('kv', 0)); F.post(19, 1024)
    item(SEQ[3]); P.wait(vm=('kv', 1)); F.post(20, 1024)
    item(SEQ[4]); P.wait(vm=('kv', 2)); F.post(21, 1024)
    item(SEQ[5]); item(SEQ[6])
    for k in range(16): e(f'v_mul_f32 v{QA8+k}, s7, v{QA8+k}')
    e(f's_add_u32 s3, s5, {XCH}'); e(f'v_add_u32 v{T}, s3, v{L16}')
    for hd in range(2):
        d, X, Y = FB + 4*hd, QA8 + 8*hd, QA8 + 8*hd + 4
        e(f'v_cvt_pk_bf16_f32 v{d}, v{X}, v{X+1}'); e(f'v_cvt_pk_bf16_f32 v{d+1}, v{X+2}, v{X+3}')
        e(f'v_cvt_pk_bf16_f32 v{d+2}, v{Y}, v{Y+1}'); e(f'v_cvt_pk_bf16_f32 v{d+3}, v{Y+2}, v{Y+3}')
        for sw in ('32', '16'):
            e(f'v_permlane{sw}_swap_b32 v{d}, v{d+2}'); e(f'v_permlane{sw}_swap_b32 v{d+1}, v{d+3}')
        P.ds(f'ds_write_b128 v{T}, {vr(d,4)} offset:{hd*4096}', 'xw')
    e(f's_mov_b32 s89, {fbits(64.0):#x}')
    hep = [1000]
    def hsync():
        P.wait(lg='all'); hep[0] += 1
        F.post(hep[0]); F.need(FRH, hep[0])
    hsync()
    e(f'v_add_u32 v{T}, {XCH}, v{L16}')
    for k in range(8): P.ds(f'ds_read_b128 {vr(Q8+4*k,4)}, v{T} offset:{k*1024}', 'q8')
    P.wait(lg='all')
    stamp(P, 3, not OPT['ts2'])
    e('s_mov_b32 s98, 21')
    def postL(v):
        e(f's_max_u32 s98, s98, {v}'); F.post('s98', 1024)
    def touch():
        e('s_getpc_b64 s[56:57]'); lb = P.newlab('pc'); P.lab(lb)
        e(f's_sub_u32 s56, s56, {lb}-{KNAME}'); e('s_subb_u32 s57, s57, 0')
        e('s_lshr_b32 s3, s2, 3'); e('s_lshl_b32 s3, s3, 11'); e(f'v_and_b32 v{T}, 15, v{LANE}'); e(f'v_lshlrev_b32 v{T}, 7, v{T}'); e(f'v_add_u32 v{T}, s3, v{T}')
        e(f's_mov_b32 s3, .Lcode_end-{KNAME}-4'); e(f'v_min_u32 v{T}, s3, v{T}')
        P.vmem(f'global_load_dword v150, v{T}, s[56:57]', 'ct', optional=True)
    def need_free(val, lv, nxt):
        P.wait(lg='fr')
        def slow():
            done = P.newlab('nf')
            vm0 = list(P.vm)
            e(f'ds_read_b32 v{FT}, v{FRC}'); e('s_waitcnt lgkmcnt(0)'); P.lg = []
            e(f'v_cmp_gt_u32 vcc, {val}, v{FT}'); e(f's_cbranch_vccz {done}')
            for i, tg in enumerate(nxt):
                if not any(t[0] == tg for t in P.vm): break
                P.wait(vm=tg); e(f's_add_u32 s3, {lv}, {i + 1}'); postL('s3')
                e(f'ds_read_b32 v{FT}, v{FRC}'); e('s_waitcnt lgkmcnt(0)'); P.lg = []
                e(f'v_cmp_gt_u32 vcc, {val}, v{FT}'); e(f's_cbranch_vccz {done}')
            sp = P.newlab('sp'); P.lab(sp)
            e(f's_sleep {OPT["slp"]}'); e(f'ds_read_b32 v{FT}, v{FRC}'); e('s_waitcnt lgkmcnt(0)')
            e(f'v_cmp_gt_u32 vcc, {val}, v{FT}'); e(f's_cbranch_vccnz {sp}')
            P.lab(done)
            P.vm = vm0
        P.ool([f'v_cmp_gt_u32 vcc, {val}, v{FT}'], 's_cbranch_vccnz', slow, lambda w, it: False)
    def scores_rd():
        for tt in range(2):
            for u in range(4): P.ds(f'ds_read_b128 {vr(FB + 16*tt + 4*u, 4)}, v{AK8+u} offset:{tt*16384}', ('k', tt, u))
    def scores(rd=True):
        if rd: scores_rd()
        for u in range(4):
            for tt in range(2):
                P.wait(lg=('k', tt, u)); mfma(P, S8 + 4*tt, FB + 16*tt + 4*u, Q8 + 4*u, u == 0)
        for u in range(4): e(f'v_xor_b32 v{AK8+u}, 0x10000, v{AK8+u}')
        for k in range(4): e(f'v_max3_f32 v{M_}, v{M_}, v{S8+2*k}, v{S8+2*k+1}')
        e(f'v_cmp_lt_f32 vcc, s7, abs(v{M_})')
        def shift():
            for sw in ('32', '16'):
                e(f'v_mov_b32 v{T}, v{M_}'); e(f'v_permlane{sw}_swap_b32 v{M_}, v{T}'); e(f'v_max_f32 v{M_}, v{M_}, v{T}')
            e(f'v_sub_f32 v{T}, v{R_}, v{M_}'); e(f'v_min_f32 v{T}, s89, v{T}'); e(f'v_exp_f32 v{T}, v{T}')
            e(f'v_mov_b32 v{R_}, v{M_}'); e('s_mov_b32 s7, -1.0')
            for k in range(8): e(f'v_sub_f32 v{S8+k}, v{S8+k}, v{M_}')
            e(f'v_mul_f32 v{L_}, v{L_}, v{T}')
            for k in range(32): e(f'v_mul_f32 v{O8+k}, v{O8+k}, v{T}')
        P.ool([], 's_cbranch_vccnz', shift, lambda w, it: (w >> 3) % 2 == 1)
        for k in range(8): e(f'v_exp_f32 v{S8+k}, v{S8+k}')
        for k in range(8): e(f'v_add_f32 v{L_}, v{L_}, v{S8+k}')
        for k in range(4): e(f'v_cvt_pk_bf16_f32 v{S8+k}, v{S8+2*k}, v{S8+2*k+1}')
    def rv(d):
        P.ds(f'ds_read_b64_tr_b16 {vr(FB + 4*d, 2)}, v{AV8+d}', ('v', d))
        P.ds(f'ds_read_b64_tr_b16 {vr(FB + 4*d + 2, 2)}, v{AV8+d} offset:16384', ('v', d))
    def pv8_rd():
        for d in range(6): rv(d)
    def pv8(rd=True):
        if rd: pv8_rd()
        for d in range(8):
            P.wait(lg=('v', d)); mfma(P, O8 + 4*d, FB + 4*d, S8)
            if d < 2: rv(6 + d)
        for d in range(8): e(f'v_xor_b32 v{AV8+d}, 0x10000, v{AV8+d}')
    def hreset():
        for k in range(32): e(f'v_mov_b32 v{O8+k}, 0')
        e(f'v_mov_b32 v{M_}, {fbits(-1e30):#x}'); e(f'v_mov_b32 v{L_}, 0'); e(f'v_mov_b32 v{R_}, 0'); e(f's_mov_b32 s7, {fbits(64.0):#x}')
    OS, SS, W = 112, 120, 124
    def combine1():
        for sw in ('32', '16'):
            e(f'v_mov_b32 v{T}, v{L_}'); e(f'v_permlane{sw}_swap_b32 v{L_}, v{T}'); e(f'v_add_f32 v{L_}, v{L_}, v{T}')
        for q in range(1, 4):
            e(f's_xor_b32 s3, s4, {q}'); e('s_mul_i32 s3, s3, 6144'); e(f's_add_u32 s3, s3, {XCH + (q-1)*2048}')
            e(f'v_add_u32 v{T}, s3, v{L16}')
            for k in range(2): P.ds(f'ds_write_b128 v{T}, {vr(O8 + 8*q + 4*k, 4)} offset:{k*1024}', 'cw')
        e(f'v_lshrrev_b32 v{SS+2}, 1, v{L16}'); e('s_lshl_b32 s3, s4, 9'); e(f's_add_u32 s3, s3, {XCH + 24576}')
        e(f'v_add_u32 v{SS+2}, s3, v{SS+2}')
        P.ds(f'ds_write_b64 v{SS+2}, {vr(R_,2)}', 'cw')
        for k in range(8): e(f'v_mov_b32 v{OS+k}, v{O8+k}')
        e(f'v_mov_b32 v{SS}, v{R_}'); e(f'v_mov_b32 v{SS+1}, v{L_}')
        P.wait(lg='all'); hep[0] += 1; F.post(hep[0]); P.wait(lg='all')
    def combine2(head):
        F.need(FRH, hep[0])
        e('s_mul_i32 s3, s4, 6144'); e(f's_add_u32 s3, s3, {XCH}'); e(f'v_add_u32 v{T}, s3, v{L16}')
        ST, CB = FB, FB + 8
        for q in range(1, 4):
            e(f'v_xor_b32 v{FT}, {q << 9}, v{SS+2}')
            P.ds(f'ds_read_b64 {vr(ST + 2*q, 2)}, v{FT}', 'cs')
        for q in range(1, 4):
            for k in range(2): P.ds(f'ds_read_b128 {vr(CB + 8*q + 4*k, 4)}, v{T} offset:{(q-1)*2048 + k*1024}', ('co', q))
        e(f'v_mov_b32 v{ST}, v{SS}'); e(f'v_mov_b32 v{ST+1}, v{SS+1}')
        P.wait(lg='cs')
        e(f'v_max3_f32 v{W}, v{ST}, v{ST+2}, v{ST+4}'); e(f'v_max_f32 v{W}, v{W}, v{ST+6}')
        for q in range(4): e(f'v_sub_f32 v{W+4+q}, v{ST+2*q}, v{W}')
        for q in range(4): e(f'v_exp_f32 v{W+4+q}, v{W+4+q}')
        e(f'v_mul_f32 v{W+1}, v{W+4}, v{ST+1}')
        for q in range(1, 4): e(f'v_fma_f32 v{W+1}, v{W+4+q}, v{ST+2*q+1}, v{W+1}')
        e(f'v_rcp_f32 v{W+1}, v{W+1}')
        for q in range(4): e(f'v_mul_f32 v{W+4+q}, v{W+4+q}, v{W+1}')
        for k in range(8): e(f'v_mul_f32 v{OS+k}, v{OS+k}, v{W+4}')
        for q in range(1, 4):
            P.wait(lg=('co', q))
            for k in range(8): e(f'v_fma_f32 v{OS+k}, v{CB+8*q+k}, v{W+4+q}, v{OS+k}')
        for k in range(4): e(f'v_cvt_pk_bf16_f32 v{W+k}, v{OS+2*k}, v{OS+2*k+1}')
        e(f's_add_u32 s26, s5, {1048576 + head*4096}')
        P.vmem(f'buffer_store_dwordx4 {vr(W,4)}, v{L16}, s[{SO}:{SO+3}], s26 offen {OPT["o_st"]}', 'st', optional=True)
    hreset(); scores()
    e('s_load_dwordx2 s[8:9], s[0:1], 32'); e('s_load_dwordx2 s[10:11], s[0:1], 72'); e('s_load_dwordx2 s[12:13], s[0:1], 96')
    e(f'v_mov_b32 v{VX}, 0')
    P.vmem(f'global_load_dword v{VX+1}, v{VX}, s[82:83] sc1', 'tagld', optional=True)
    e('s_lshl_b32 s3, s50, 3'); e('s_add_u32 s3, s3, s52'); e('s_lshl_b32 s3, s3, 4'); e('s_lshr_b32 s26, s51, 1'); e('s_add_u32 s3, s3, s26')
    e('s_lshl_b32 s3, s3, 7'); e(f's_add_u32 s3, s3, {FLAGOFF}'); e(f'v_mov_b32 v{FA}, s3')
    e('s_mov_b32 s20, 22'); e('s_mov_b32 s21, 19'); e('s_mov_b32 s22, 65536'); e('s_mov_b32 s23, s59')
    e('s_mov_b32 s18, 32768'); e('s_add_u32 s19, s59, 65536')
    e('s_waitcnt lgkmcnt(0)'); P.lg = []
    P.vm = [(('kv', -1), False)] * 4 + [(('kv', k), False) for k in range(3) for _ in range(4)] + [('tagld', True)]
    def tr(v):
        if OPT['trace']:
            e('s_memrealtime s[76:77]'); e('s_sub_u32 m0, s24, 19'); e('s_waitcnt lgkmcnt(0)'); e('s_sub_u32 s76, s76, s60'); e(f'v_writelane_b32 v{v}, s76, m0')
    KIND = [(0, 1, 1), (3, 0, 0), (1, 1, 1), (2, 1, 2)]
    def step(k, issue=True, rd=None):
        if issue: F.read(FRC)
        P.wait(vm=('kv', k - 1)); e(f's_add_u32 s24, s20, {k}'); postL('s24')
        if rd: rd()
        tr(246)
        if not issue: return
        kind, nx, co = KIND[k]
        e(f's_add_u32 s25, s21, {co}')
        need_free('s25', 's24', [('kv', k + i) for i in range(3)])
        tr(247)
        S = SK if kind < 2 else SV
        def dma():
            e(f's_add_u32 m0, {"s23" if nx else "s19"}, {kind*16384}')
            e(f's_add_u32 s26, {"s22" if nx else "s18"}, {(kind % 2)*16384}')
            for t in range(4):
                P.vmem(f'buffer_load_dwordx4 v{VKV+t}, s[{S}:{S+3}], s26 offen offset:{t*1024} {kvp} lds', ('kv', k + 3))
        def regs():
            e('s_add_u32 s3, s23, 32768'); e(f'v_add_u32 v{T}, s3, v{L16}')
            for i, it_ in enumerate(PFI):
                def wr():
                    for t in range(4): e(f'ds_write_b128 v{T}, {vr(192 + 16*i + 4*t, 4)} offset:{t*1024}')
                P.only(None, wr, pred=lambda w, it, it_=it_: it == it_, cmp=f's_cmp_eq_u32 s27, {it_}')
            for t in range(4):
                P.vmem(f'buffer_load_dword v134, v135, s[{S}:{S+3}], 0 offen', ('kv', k + 3))
            e('s_waitcnt lgkmcnt(0)')
        if k == 3 and PFI:
            e(f's_mov_b32 s3, {sum(1 << x for x in PFI)}')
            P.ool(['s_bitcmp1_b32 s3, s27'], 's_cbranch_scc1', regs, lambda w, it: it in PFI, dma)
        else: dma()
        tr(248)
    def wtouch():
        e(f'v_lshlrev_b32 v{VX+2}, 7, v{LANE}'); e('s_lshl_b32 s3, s4, 13'); e(f'v_add_u32 v{VX+2}, s3, v{VX+2}')
        e('s_and_b32 s3, s2, 3'); e('s_lshl_b32 s3, s3, 5'); e('s_lshr_b32 s26, s2, 3'); e('s_add_u32 s3, s3, s26'); e('s_mul_i32 s3, s3, 36864')
        e('s_bitcmp0_b32 s2, 2'); e('s_cselect_b64 s[8:9], s[8:9], s[10:11]')
        e('s_add_u32 s8, s8, s3'); e('s_addc_u32 s9, s9, 0'); srd(P, SX, 8, 9, 36864)
        if OPT['wpf']:
            e('s_mov_b32 s26, 32768')
            P.vmem(f'buffer_load_dword v250, v{VX+2}, s[{SX}:{SX+3}], 0 offen', 'wt', optional=True)
            P.vmem(f'buffer_load_dword v251, v{VX+2}, s[{SX}:{SX+3}], s26 offen', 'wt', optional=True)
    H = OprojHelper(P, VX + 1)
    def hbody():
        step(0)
        if OPT['rtc']: touch()
        step(1, rd=pv8_rd); pv8(False)
        def mid():
            combine1(); hreset()
            for k in range(16): e(f'v_mov_b32 v{Q8+k}, v{Q8+16+k}')
        P.ool(['s_cmp_eq_u32 s27, 3'], 's_cbranch_scc1', mid, lambda w, it: it == 3)
        step(2, rd=scores_rd); scores(False)
        step(3)
        P.ool(['s_cmp_eq_u32 s27, 3'], 's_cbranch_scc1', lambda: combine2(0), lambda w, it: it == 3)
        e('s_add_u32 s20, s20, 4'); e('s_add_u32 s21, s21, 3'); e('s_mov_b32 s18, s22'); e('s_add_u32 s22, s22, 32768')
        e('s_xor_b32 s23, s23, 65536'); e('s_xor_b32 s19, s19, 65536')
    P.lg = ['fw']
    P.loop(6, 's27', hbody, lambda t: ('kv', t[1] - 4) if t[0] == 'kv' else t)
    P.vm = [(('kv', t[0][1] - 4), t[1]) if t[0][0] == 'kv' else t for t in P.vm]
    step(0, False)
    if OPT['rtc']: touch()
    def respin():
        sp = P.newlab('tg'); P.lab(sp)
        e('s_sleep 8'); e(f'global_load_dword v{VX+1}, v{VX}, s[82:83] sc1'); e('s_waitcnt vmcnt(0)')
        e(f'v_cmp_eq_u32 vcc, 0, v{VX+1}'); e(f's_cbranch_vccnz {sp}')
    P.ool([f'v_cmp_eq_u32 vcc, 0, v{VX+1}'], 's_cbranch_vccnz', respin, lambda w, it: False)
    def ticket():
        if OPT['dyn']:
            e('s_and_b32 s3, s2, 7'); e('s_lshl_b32 s3, s3, 4'); e('s_add_u32 s3, s3, 64')
            e(f'v_mov_b32 v{TK+1}, s3'); e(f'v_mov_b32 v{TK}, 1')
            e('s_mov_b64 exec, 1')
            P.vmem(f'global_atomic_add v{TK}, v{TK+1}, v{TK}, s[82:83] sc0 sc1', 'tk', optional=True)
            e('s_mov_b64 exec, -1')
        else:
            e('s_lshr_b32 s3, s2, 3'); e(f'v_mov_b32 v{TK}, s3')
    P.only(0, ticket)
    step(1)
    hsync()
    def sig_a():
        e('s_mov_b64 exec, 1')
        P.vmem(f'global_store_dword v{FA}, v{VX+1}, s[12:13] offset:64 sc1', 'fa', optional=True)
        e('s_mov_b64 exec, -1')
    P.only(0, sig_a)
    pv8()
    step(2, False)
    def give():
        e('s_waitcnt vmcnt(5)')
        e(f'v_mov_b32 v{TK+1}, v{VX+1}'); e(f'v_mov_b32 v{T}, {NONCE}')
        e('s_mov_b64 exec, 1'); e(f'ds_write_b64 v{T}, {vr(TK,2)}'); e('s_mov_b64 exec, -1')
    P.only(0, give)
    scores()
    hsync()
    e(f'v_mov_b32 v{T}, {NONCE}'); e(f'ds_read_b32 v{T}, v{T}'); e('s_waitcnt lgkmcnt(0)'); e(f'v_readfirstlane_b32 s79, v{T}')
    H.setup()
    step(3, False)
    P.wait(vm='f'); postL(50)
    wtouch()
    pv8(); combine1()
    def pre():
        F.need(FRC, 41); H.first()
    P.only(None, pre, pred=lambda w, it: True, cmp='s_cmp_lt_u32 s79, 27')
    combine2(1)
    ab = (OPT['abl'] + ' ' + OPT['abl2']).split()
    if ab: P.cur[i00:] = ablate(P.cur[i00:], [x for x in ab if x in ('dma', 'qdma', 'st')] + (['mfma', 'ds', 'valu'] if 'hc' in ab else []))
    stamp(P, 4, not OPT['ts2'])
    def signal():
        e('s_mov_b64 exec, 1')
        e(f'global_store_dword v{FA}, v{VX+1}, s[12:13] sc1')
        e('s_mov_b64 exec, -1')
    def idle():
        e('s_waitcnt vmcnt(0)'); e('s_barrier')
        P.only(0, signal)
        e('s_branch .Lk1_fin')
    P.ool(['s_cmp_ge_u32 s79, 27'], 's_cbranch_scc1', idle, lambda w, it: False)
    H.run(signal)

WST, OST, OR0, NS = 12288, 8192, 49152, 4
PBUF, FLAG2 = 0x2800000, 0x2100000

def op_ids(P):
    e = P.e
    e('s_and_b32 s48, s2, 3'); e('s_bfe_u32 s50, s2, 0x10002'); e('s_min_u32 s49, s79, 27')
    e('s_mul_i32 s51, s49, 43'); e('s_lshr_b32 s51, s51, 7'); e('s_mul_i32 s3, s51, 3'); e('s_sub_u32 s52, s49, s3')
    e('s_mul_i32 s53, s50, 27'); e('s_add_u32 s53, s53, s49')

def poll_fn(P, val, ad, base, tag):
    def poll():
        sp = P.newlab('fl'); P.lab(sp)
        P.e('s_sleep 1'); P.e(f'global_load_dword v{val}, v{ad}, {base} sc1'); P.e('s_waitcnt vmcnt(0)')
        P.e(f'v_cmp_ne_u32 vcc, v{tag}, v{val}'); P.e(f's_cbranch_vccnz {sp}')
    return poll

class OprojHelper:
    SWO, SO2 = 36, 40
    VW3, VO, FLA, FLV, t = 200, 203, 205, 206, 208
    def __init__(s, P, tag): s.P, s.TAG = P, tag
    def setup(s):
        P = s.P; e = P.e; t = s.t
        op_ids(P)
        for b3 in range(3):
            e(f'v_add_u32 v{t}, {64*b3}, v{LANE}'); e(f'v_mul_u32_u24 v{t+1}, 2731, v{t}'); e(f'v_lshrrev_b32 v{t+1}, 16, v{t+1}')
            e(f'v_mul_u32_u24 v{t+2}, 24, v{t+1}'); e(f'v_sub_u32 v{t+2}, v{t}, v{t+2}')
            e(f'v_bfe_u32 v{t+3}, v{t+1}, 1, 2'); e(f'v_lshlrev_b32 v{t+3}, 1, v{t+3}'); e(f'v_xor_b32 v{t+2}, v{t+2}, v{t+3}'); e(f'v_lshlrev_b32 v{t+2}, 4, v{t+2}')
            e('s_lshl_b32 s3, s4, 3'); e(f'v_add_u32 v{t+1}, s3, v{t+1}'); e(f'v_mul_u32_u24 v{t+1}, 1152, v{t+1}'); e(f'v_add_u32 v{s.VW3+b3}, v{t+1}, v{t+2}')
        e('s_xor_b32 s3, s4, s48'); e('s_lshl_b32 s3, s3, 18'); e(f'v_lshlrev_b32 v{t}, 4, v{LANE}'); e(f'v_add_u32 v{s.VO}, s3, v{t}')
        e(f'v_add_u32 v{s.VO+1}, 131072, v{s.VO}')
        e('s_mul_i32 s14, s4, 3072'); e('s_lshl_b32 s15, s4, 11'); e(f's_add_u32 s15, s15, {OR0}')
        e('s_cmp_eq_u32 s50, 0'); e('s_cselect_b64 s[16:17], s[8:9], s[10:11]')
        e(f's_mul_i32 s3, s48, {1024*1152}'); e('s_mul_i32 s26, s52, 384'); e('s_add_u32 s3, s3, s26')
        e('s_add_u32 s16, s16, s3'); e('s_addc_u32 s17, s17, 0'); srd(P, s.SWO, 16, 17, 1023*1152 + 384)
        e('s_mul_i32 s3, s50, 72'); e('s_lshl_b32 s26, s51, 3'); e('s_add_u32 s3, s3, s26'); e('s_lshl_b32 s3, s3, 2'); e('s_add_u32 s3, s3, s48')
        e('s_lshl_b32 s3, s3, 15'); e('s_add_u32 s16, s12, s3'); e('s_addc_u32 s17, s13, 0'); srd(P, s.SO2, 16, 17, 7*131072 + 32768)
        e('s_lshl_b32 s3, s51, 3'); e('s_add_u32 s26, s3, 7'); e('s_mul_i32 s3, s3, 57'); e('s_lshr_b32 s3, s3, 9'); e('s_mul_i32 s26, s26, 57'); e('s_lshr_b32 s26, s26, 9')
        e('s_min_u32 s3, s3, 7'); e('s_min_u32 s26, s26, 7')
        e(f'v_mov_b32 v{t}, s3'); e(f'v_mov_b32 v{t+1}, s26'); e(f'v_and_b32 v{t+2}, 4, v{LANE}'); e(f'v_cmp_eq_u32 vcc, 0, v{t+2}'); e('s_nop 1')
        e(f'v_cndmask_b32 v{t}, v{t+1}, v{t}, vcc')
        e('s_lshl_b32 s3, s50, 5'); e('s_add_u32 s3, s3, s48'); e('s_lshl_b32 s3, s3, 2')
        e(f'v_lshlrev_b32 v{t}, 4, v{t}'); e(f'v_and_b32 v{t+1}, 3, v{LANE}'); e(f'v_add3_u32 v{t}, v{t}, v{t+1}, s3')
        e(f'v_lshlrev_b32 v{t}, 7, v{t}'); e(f'v_add_u32 v{s.FLA}, {FLAGOFF + 64}, v{t}')
        e('s_mov_b32 s54, 0'); e('s_mov_b32 s55, 0')
        P.vmem(f'global_load_dword v{s.FLV}, v{s.FLA}, s[12:13] sc1', 'f')
    def pages(s):
        P = s.P; e = P.e; t = s.t
        e('s_load_dwordx2 s[16:17], s[0:1], 80')
        e(f'v_lshlrev_b32 v{t}, 16, v{LANE}'); e(f'v_min_u32 v{t+1}, 40, v{LANE}'); e(f'v_lshlrev_b32 v{t+1}, 16, v{t+1}')
        e('s_waitcnt lgkmcnt(0)')
        def f():
            P.vmem(f'global_load_dword v252, v{t}, s[8:9]', 'tl', optional=True)
            P.vmem(f'global_load_dword v253, v{t}, s[10:11]', 'tl', optional=True)
            P.vmem(f'global_load_dword v254, v{t+1}, s[16:17]', 'tl', optional=True)
        P.only(2, f)
    def base(s, it):
        e = s.P.e
        e(f's_and_b32 s54, {it}, 3'); e('s_lshl_b32 s54, s54, 3'); e(f's_and_b32 s3, {it}, 4'); e('s_add_u32 s54, s54, s3')
        e('s_lshl_b32 s55, s54, 10'); e('s_mul_i32 s54, s54, 36864')
    def wo(s, k, opt=False):
        P = s.P
        if k % NS: P.e('s_add_u32 s54, s54, 36864')
        for b3 in range(3):
            P.e(f's_add_u32 m0, s14, {(k % NS)*WST + b3*1024}')
            P.vmem(f'buffer_load_dwordx4 v{s.VW3+b3}, s[{s.SWO}:{s.SWO+3}], s54 offen lds', ('L', k), optional=opt)
    def oo(s, k, opt=False):
        P = s.P
        for x in range(2):
            P.e(f's_add_u32 m0, s15, {(k % NS)*(OST - 1024) + x*1024}')
            P.vmem(f'buffer_load_dwordx4 v{s.VO+x}, s[{s.SO2}:{s.SO2+3}], s55 offen offset:{(k % NS)*1024} sc1 lds', ('L', k), optional=opt)
    def check(s):
        s.P.ool([f'v_cmp_ne_u32 vcc, v{s.TAG}, v{s.FLV}'], 's_cbranch_vccnz', poll_fn(s.P, s.FLV, s.FLA, 's[12:13]', s.TAG), lambda w, it: False)
    def first(s):
        s.check()
        for k in range(NS): s.wo(k, True); s.oo(k, True)
    def run(s, signal):
        P = s.P; e = P.e
        e(f's_setprio {OPT["oprio"]}')
        e('s_waitcnt vmcnt(16)'); e('s_barrier')
        stamp(P, 5, not OPT['ts2'])
        P.vm = [(('F', -3), False)] + [(('L', k), False) for k in (1, 2, 3) for _ in range(5)]
        def body():
            for k in range(NS):
                P.wait(vm=('L', k + 1)); e('s_barrier')
                if k == 0:
                    e('s_add_u32 s56, s27, 1'); s.base('s56')
                    e('s_cmp_eq_u32 s27, 7'); e(f's_cselect_b32 s59, {BIG}, 0')
                    for r in range(5): e(f'v_add_u32 v{s.VW3+r}, s59, v{s.VW3+r}')
                if k == 1:
                    e('s_cmp_eq_u32 s27, 2'); e('s_cselect_b32 s57, 64, 0'); e(f'v_subrev_u32 v{s.FLA}, s57, v{s.FLA}')
                    P.vmem(f'global_load_dword v{s.FLV}, v{s.FLA}, s[12:13] sc1', ('F', 1))
                if k == 3:
                    e('s_lshl_b32 s3, s27, 2'); e('s_add_u32 s3, s3, s4')
                    P.ool(['s_cmp_eq_u32 s3, 0'], 's_cbranch_scc1', signal, lambda w, it: False)
                s.wo(k + NS)
                if k == 0: s.check()
                s.oo(k + NS)
        P.loop(8, 's27', body, lambda t: (t[0], t[1] - NS) if isinstance(t, tuple) else t)
        if OPT['abl3']:
            ab = OPT['abl3'].split()
            P.cur[-1].body = [x for x in P.cur[-1].body if not (isinstance(x, Ins) and x.kind == 'dma' and (('o' in ab and 'sc1' in x.text) or ('w' in ab and 'sc1' not in x.text)))]
        stamp(P, 6, not OPT['ts2'])

def gen_oproj(P):
    e = P.e
    SP, SOUT = 28, 32
    ACC, AF, BF, AA, AB, L16, VOUT, FLA, FLV, TAG, FLO = 0, 96, 144, 176, 182, 183, 184, 185, 186, 235, 187
    def idle():
        e('s_waitcnt vmcnt(0)'); e('s_barrier'); e('s_branch .Lk1_fin')
    e(f'v_mov_b32 v{TAG-1}, {NONCE}'); e(f'ds_read_b64 {vr(TAG-1,2)}, v{TAG-1}'); e('s_waitcnt lgkmcnt(0)'); e(f'v_readfirstlane_b32 s79, v{TAG-1}')
    P.ool(['s_cmp_ge_u32 s79, 27'], 's_cbranch_scc1', idle, lambda w, it: False)
    e('s_load_dwordx2 s[12:13], s[0:1], 80'); e('s_load_dwordx2 s[14:15], s[0:1], 96')
    e('v_mbcnt_lo_u32_b32 v0, -1, 0'); e('v_mbcnt_hi_u32_b32 v0, -1, v0')
    e('v_and_b32 v3, 15, v0'); e('v_lshrrev_b32 v4, 4, v0'); e('v_lshrrev_b32 v5, 2, v3'); e('v_and_b32 v6, 3, v3')
    e(f'v_lshlrev_b32 v{L16}, 4, v0')
    e('s_and_b32 s5, s4, 1'); e('s_lshr_b32 s6, s4, 1')
    e('v_lshl_add_u32 v7, v4, 2, v5'); e('v_bfe_u32 v8, v7, 1, 2'); e('v_mul_u32_u24 v7, 384, v7'); e('v_lshl_add_u32 v7, v6, 3, v7')
    e('s_mul_i32 s3, s5, 6')
    for k in range(6):
        e(f's_add_u32 s26, s3, {k}'); e('v_xor_b32 v9, s26, v8'); e(f'v_lshl_add_u32 v{AA+k}, v9, 5, v7')
    e('s_lshl_b32 s3, s6, 10'); e(f's_add_u32 s3, s3, {OR0}'); e(f'v_add_u32 v{AB}, s3, v{L16}')
    e('v_mul_u32_u24 v7, 2304, v3'); e('v_lshl_add_u32 v7, v4, 4, v7'); e('s_mul_i32 s3, s5, 192'); e(f's_mul_i32 s26, s6, {16*2304}'); e('s_add_u32 s3, s3, s26'); e(f'v_add_u32 v{VOUT}, s3, v7')
    e('v_and_b32 v7, 3, v0'); e('v_max_u32 v7, 1, v7'); e(f'v_mov_b32 v{FLA}, v7')
    for i in range(96): e(f'v_mov_b32 v{i}, 0')
    e('s_waitcnt lgkmcnt(0)'); P.vm = []; P.lg = []
    e('s_barrier')
    stamp(P, 5, not OPT['ts2'])
    def ids():
        op_ids(P)
        e('s_mul_i32 s3, s53, 147456'); e(f's_add_u32 s3, s3, {PBUF}'); e('s_add_u32 s8, s14, s3'); e('s_addc_u32 s9, s15, 0'); srd(P, SP, 8, 9, 147456)
        e('s_lshl_b32 s3, s51, 2'); e('s_add_u32 s3, s3, s48'); e(f's_mul_i32 s3, s3, {32*2304}'); e('s_mul_i32 s26, s50, 1152'); e('s_add_u32 s3, s3, s26')
        e('s_mul_i32 s26, s52, 384'); e('s_add_u32 s3, s3, s26'); e('s_add_u32 s12, s12, s3'); e('s_addc_u32 s13, s13, 0'); srd(P, SOUT, 12, 13, 31*2304 + 384)
        e(f'v_xor_b32 v{FLA}, s48, v{FLA}'); e('s_lshl_b32 s3, s53, 2'); e(f'v_add_u32 v{FLA}, s3, v{FLA}'); e(f'v_lshl_add_u32 v{FLA}, v{FLA}, 2, s4')
        e(f'v_lshlrev_b32 v{FLA}, 7, v{FLA}')
        e('s_add_u32 s3, s3, s48'); e('s_lshl_b32 s3, s3, 2'); e('s_add_u32 s3, s3, s4'); e('s_lshl_b32 s3, s3, 7'); e(f's_add_u32 s3, s3, {FLAG2}'); e(f'v_mov_b32 v{FLO}, s3')
        e(f'v_add_u32 v{FLA}, {FLAG2}, v{FLA}')
    def reads(s):
        a, b = AF + 24*(s % 2), BF + 16*(s % 2)
        rb = [(lambda l=l: P.ds(f'ds_read_b128 {vr(b + 4*l, 4)}, v{AB} offset:{(s % NS)*OST + l*2048}', ('R', s))) for l in range(4)]
        ra = [(lambda k=k, hf=hf: P.ds(f'ds_read_b64_tr_b16 {vr(a + 4*k + 2*hf, 2)}, v{AA+k} offset:{(s % NS)*WST + hf*6144}', ('R', s)))
              for k in range(6) for hf in range(2)]
        return rb[:1] + ra[:6] + rb[1:2] + ra[6:] + rb[2:]
    for i, f in enumerate(reads(0)):
        if i == 12: e('s_waitcnt lgkmcnt(8)'); P.lg = P.lg[-8:]
        f()
    ids()
    def body():
        for s in range(NS):
            P.wait(lg='all')
            if s == 3: e('s_waitcnt vmcnt(0)')
            e('s_barrier')
            rs = reads(s + 1)
            for n in range(24):
                l, k = n // 6, n % 6
                mfma(P, ACC + (l*6 + k)*4, AF + 24*(s % 2) + 4*k, BF + 16*(s % 2) + 4*l)
                if n == 13: e('s_waitcnt lgkmcnt(8)'); P.lg = P.lg[-8:]
                if n < 16: rs[n]()
    P.lg = [('R', 0)] * 11
    P.loop(8, 's27', body, lambda t: (t[0], t[1] - NS))
    if 'ds' in OPT['abl3']: P.cur[-1].body = [x for x in P.cur[-1].body if x.kind != 'dsr']
    if 'mf' in OPT['abl3']: P.cur[-1].body = [x for x in P.cur[-1].body if x.kind != 'mfma']
    stamp(P, 6, not OPT['ts2'])
    P.wait(lg='all')
    stamp(P, 1, OPT['st'] == 'X')
    e('s_mul_i32 s49, s4, 3072')
    for r in range(1, 4):
        e(f's_xor_b32 s3, s48, {r}'); e('s_mul_i32 s3, s3, 36864'); e('s_add_u32 s3, s3, s49'); e(f's_add_u32 s26, s3, {(r - 1)*12288}')
        for tp in range(3):
            a, D = ACC + (r*6 + 2*tp)*4, 96 + ((r - 1)*3 + tp)*4
            for i in range(4): e(f'v_cvt_pk_bf16_f32 v{D+i}, v{a+2*i}, v{a+2*i+1}')
            P.vmem(f'buffer_store_dwordx4 {vr(D, 4)}, v{L16}, s[{SP}:{SP+3}], s26 offen offset:{tp*1024} sc1', 'st')
    stamp(P, 2, OPT['st'] == 'X')
    e(f'global_load_dword v{FLV}, v{FLA}, s[14:15] sc1')
    e('s_waitcnt vmcnt(0)'); P.vm = []
    stamp(P, 3, OPT['st'] == 'X')
    e('s_mov_b64 exec, 1'); e(f'global_store_dword v{FLO}, v{TAG}, s[14:15] sc1'); e('s_mov_b64 exec, -1')
    stamp(P, 4, OPT['st'] == 'X')
    P.ool([f'v_cmp_ne_u32 vcc, v{TAG}, v{FLV}'], 's_cbranch_vccnz', poll_fn(P, FLV, FLA, 's[14:15]', TAG), lambda w, it: False)
    stamp(P, 5, OPT['st'] == 'X')
    e('s_mul_i32 s3, s48, 36864'); e('s_add_u32 s3, s3, s49'); e('s_mov_b32 s57, 0xffff0000')
    RB = lambda q, tp: 24 + (q*3 + tp)*4
    for q in range(3): e(f's_add_u32 s{16+q}, s3, {q*12288}')
    for tp in range(3):
        for q in range(3):
            P.vmem(f'buffer_load_dwordx4 {vr(RB(q, tp), 4)}, v{L16}, s[{SP}:{SP+3}], s{16+q} offen offset:{tp*1024} sc1', ('p', tp))
    for kp in range(3):
        P.wait(vm=('p', kp))
        for q in range(3):
            for i in range(4):
                e(f'v_lshlrev_b32 v64, 16, v{RB(q, kp) + i}'); e(f'v_and_b32 v65, s57, v{RB(q, kp) + i}')
                e(f'v_add_f32 v{ACC + 8*kp + 2*i}, v{ACC + 8*kp + 2*i}, v64'); e(f'v_add_f32 v{ACC + 8*kp + 2*i + 1}, v{ACC + 8*kp + 2*i + 1}, v65')
        X, Y, D = ACC + 8*kp, ACC + 8*kp + 4, 136 + 4*kp
        e(f'v_cvt_pk_bf16_f32 v{D}, v{X}, v{X+1}'); e(f'v_cvt_pk_bf16_f32 v{D+1}, v{X+2}, v{X+3}')
        e(f'v_cvt_pk_bf16_f32 v{D+2}, v{Y}, v{Y+1}'); e(f'v_cvt_pk_bf16_f32 v{D+3}, v{Y+2}, v{Y+3}')
        for sw in ('32', '16'):
            e(f'v_permlane{sw}_swap_b32 v{D}, v{D+2}'); e(f'v_permlane{sw}_swap_b32 v{D+1}, v{D+3}')
        P.vmem(f'buffer_store_dwordx4 {vr(D,4)}, v{VOUT}, s[{SOUT}:{SOUT+3}], 0 offen offset:{kp*64} {OPT["out_st"]}', 'st')
    stamp(P, 6, OPT['st'] == 'X')

HDR = open('cdna_kernels/' + NAME + '.s.ref').read().split('; Override launch')[0]

def kd(name, vg, sg):
    return f""".p2align 6
.amdhsa_kernel {name}
  .amdhsa_next_free_vgpr {vg}
  .amdhsa_next_free_sgpr {sg}
  .amdhsa_accum_offset {(vg+3)//4*4}
  .amdhsa_group_segment_fixed_size 0
  .amdhsa_kernarg_size 104
  .amdhsa_user_sgpr_count 2
  .amdhsa_user_sgpr_kernarg_segment_ptr 1
  .amdhsa_system_sgpr_workgroup_id_x 1
.end_amdhsa_kernel
"""

def build():
    P = gen_k1()
    out = HDR
    out += f'; @launch grid=(256,1,1) block=(512,1,1) lds={K1_LDS}\n'
    out += '.amdgcn_target "amdgcn-amd-amdhsa--gfx950"\n.text\n'
    P.pad_hazards()
    if not OPT["abl"] and not OPT["abl2"] and not OPT["abl3"] and not OPT.get("cyc") and not OPT["trace"]: P.check_loads()
    sys.stderr.write(f'{dict(P.count(0))}\n')
    out += f'.globl {KNAME}\n.p2align 8\n.type {KNAME},@function\n{KNAME}:\n' + '\n'.join(P.emit()) + '\n'
    out += '.Lcode_end:\n'
    out += '.section .rodata,"a"\n' + kd(KNAME, 256, 102)
    return out

if __name__ == '__main__':
    dst = 'cdna_kernels/' + NAME + '.s'
    for a in sys.argv[1:]:
        if '=' in a:
            k, v = a.split('=', 1)
            if k == 'out': dst = v
            elif isinstance(OPT[k], bool): OPT[k] = (v == '1')
            elif isinstance(OPT[k], int): OPT[k] = int(v)
            else: OPT[k] = v.replace('+', ' ')
    open(dst, 'w').write(build())
```
